```python
import torch

def _softmax(x, axis=-1):
    return torch.softmax(x, dim=axis)

def _gelu(x):
    return torch.nn.functional.gelu(x, approximate='tanh')

def _silu(x):
    return torch.nn.functional.silu(x)

def _sigmoid(x):
    return torch.sigmoid(x)

def _layernorm(x, axis=-1, eps=1e-05):
    m = x.mean(dim=axis, keepdim=True)
    v = x.var(dim=axis, keepdim=True, unbiased=False)
    return (x - m) / torch.sqrt(v + eps)

def _scatter_add(tgt, idx, src, axis=0):
    return tgt.clone().index_add_(axis, idx, src)

def _segment_sum(src, seg, n):
    out = torch.zeros((n,) + src.shape[1:], dtype=src.dtype)
    return out.index_add_(0, seg, src)

def _pad(x, pw):
    flat = tuple((v for pair in reversed(pw) for v in pair))
    return torch.nn.functional.pad(x, flat)
kernel_name = 'parallel_sum__memory_aug_recurrent_mem_tr__dense_activation_silu__prompt'

def setup_inputs():

    _w = lambda a: (lambda t: t.to(torch.bfloat16) if t.is_floating_point() else t)(torch.as_tensor(a))

    def _A_setup():
        B, S, Dm = (1, 2048, 512)
        H, Dh = (32, 128)
        M, seg = (8, 32)
        seg = min(seg, S)
        S = S // seg * seg
        return {'x': _w((lambda *s: torch.randn(*s, dtype=torch.bfloat16) * 0.05)(B, S, Dm)), 'mem0': _w((lambda *s: torch.randn(*s, dtype=torch.bfloat16) * 0.4)(B, M, Dm)), 'Wq': _w((lambda *s: torch.randn(*s, dtype=torch.bfloat16) * 3.2)(Dm, H, Dh) * Dm ** (-0.5)), 'Wk': _w((lambda *s: torch.randn(*s, dtype=torch.bfloat16) * 3.2)(Dm, H, Dh) * Dm ** (-0.5)), 'Wv': _w((lambda *s: torch.randn(*s, dtype=torch.bfloat16) * 0.4)(Dm, H, Dh) * Dm ** (-0.5)), 'Wo': _w((lambda *s: torch.randn(*s, dtype=torch.bfloat16) * 0.4)(H, Dh, Dm) * (H * Dh) ** (-0.5)), 'seg_len': seg}
    _A_in = _A_setup()

    def _B_setup():
        B, S, D, F = (1, 2048, 512, 1792)
        return {'x': _w((lambda *s: torch.randn(*s, dtype=torch.bfloat16) * 0.05)(B, S, D)), 'w1': _w((lambda *s: torch.randn(*s, dtype=torch.bfloat16) * 1.6)(D, F) * D ** (-0.5)), 'w2': _w((lambda *s: torch.randn(*s, dtype=torch.bfloat16) * 0.1)(F, D) * F ** (-0.5))}
    _B_in = _B_setup()
    return {'A_x': _A_in['x'], 'A_mem0': _A_in['mem0'], 'A_Wq': _A_in['Wq'], 'A_Wk': _A_in['Wk'], 'A_Wv': _A_in['Wv'], 'A_Wo': _A_in['Wo'], 'A_seg_len': _A_in['seg_len'], 'B_x': _B_in['x'], 'B_w1': _B_in['w1'], 'B_w2': _B_in['w2']}

def reference(A_x, A_mem0, A_Wq, A_Wk, A_Wv, A_Wo, A_seg_len, B_x, B_w1, B_w2):

    def _A_ref(x, mem0, Wq, Wk, Wv, Wo, seg_len):
        B, S, Dm = x.shape
        H, Dh = (Wq.shape[1], Wq.shape[2])
        M = mem0.shape[1]
        scale = Dh ** (-0.5)
        n_seg = S // seg_len
        L = M + seg_len
        idx = torch.arange(L)
        mask = (idx[:, None] < M) | (idx[:, None] >= idx[None, :])
        mem = mem0
        outs = []
        for s in range(n_seg):
            xs = x[:, s * seg_len:(s + 1) * seg_len, :].clone()
            h = torch.concatenate([mem, xs], axis=1)
            q = torch.einsum('btd,dhe->bhte', h, Wq)
            k = torch.einsum('btd,dhe->bhte', h, Wk)
            v = torch.einsum('btd,dhe->bhte', h, Wv)
            scores = torch.einsum('bhqe,bhke->bhqk', q, k) * scale
            scores = torch.where(mask[None, None], scores, -1000000000.0)
            p = _softmax(scores, axis=-1)
            o = torch.einsum('bhqk,bhke->bhqe', p, v)
            o = torch.einsum('bhte,hed->btd', o, Wo)
            mem = o[:, :M, :].clone()
            outs.append(o[:, M:, :])
        return torch.concatenate(outs, axis=1)

    def _B_ref(x, w1, w2):
        h = torch.einsum('bsd,df->bsf', x, w1)
        h = _silu(h)
        out = torch.einsum('bsf,fd->bsd', h, w2)
        return out
    x = A_x
    xn = _layernorm(x, axis=-1)
    return x + _A_ref(xn, A_mem0, A_Wq, A_Wk, A_Wv, A_Wo, A_seg_len) + _B_ref(xn, B_w1, B_w2)
```

```python
import re

_REG = re.compile(r'^(-|abs\()?([vas])(\d+)\)?$')
_RNG = re.compile(r'^(-|abs\()?([vas])\[(\d+):(\d+)\]\)?$')

TRANS = ('v_exp_f32', 'v_log_f32', 'v_rcp_f32', 'v_rsq_f32', 'v_sqrt_f32', 'v_sin_f32', 'v_cos_f32')


def regs_of(tok):
    tok = tok.strip()
    m = _REG.match(tok)
    if m:
        return [(m.group(2), int(m.group(3)))]
    m = _RNG.match(tok)
    if m:
        return [(m.group(2), i) for i in range(int(m.group(3)), int(m.group(4)) + 1)]
    if tok == 'vcc':
        return [('s', 106), ('s', 107)]
    if tok == 'exec':
        return [('s', 126), ('s', 127)]
    if tok == 'm0':
        return [('s', 124)]
    return []


def split_ops(s):
    out, depth, cur = [], 0, ''
    for ch in s:
        if ch in '[(':
            depth += 1
        if ch in '])':
            depth -= 1
        if ch == ',' and depth == 0:
            out.append(cur.strip())
            cur = ''
        else:
            cur += ch
    if cur.strip():
        out.append(cur.strip())
    return out


class Ins:
    __slots__ = ('text', 'mn', 'cls', 'wr', 'rd', 'srcc', 'ab', 'passes', 'dpp', 'nop', 'wide_data', 'lds_dma', 'raw')

    def __init__(self, text):
        self.text = text
        self.raw = False
        t = text.split(';')[0].strip()
        parts = t.split(None, 1)
        self.mn = mn = parts[0]
        rest = parts[1] if len(parts) > 1 else ''
        ops = split_ops(rest)
        mods = []
        if ops:
            lp = ops[-1].split()
            ops[-1] = lp[0] if lp else ''
            mods = lp[1:]
        self.wr, self.rd, self.srcc, self.ab = [], [], [], []
        self.passes = 0
        self.dpp = False
        self.nop = 0
        self.wide_data = []
        self.lds_dma = False
        R = [regs_of(o) for o in ops]
        if mn.startswith('v_mfma') or mn.startswith('v_smfmac'):
            self.cls = 'mfma'
            self.passes = 8 if '32x32' in mn else 4
            self.wr = R[0]
            if mn.startswith('v_smfmac'):
                self.srcc = R[0]
                self.ab = R[1] + R[2] + R[3]
            else:
                self.srcc = R[3]
                self.ab = R[1] + R[2]
            self.rd = self.srcc + self.ab
        elif mn.startswith('v_'):
            self.cls = 'trans' if mn.replace('_e32', '').replace('_e64', '') in TRANS else 'valu'
            self.dpp = mn.endswith('_dpp')
            if mn.startswith('v_permlane'):
                self.cls = 'permlane'
                self.wr = R[0] + R[1]
                self.rd = R[0] + R[1]
            elif mn.startswith('v_cmp'):
                self.wr = R[0]
                self.rd = sum(R[1:], [])
            elif mn.startswith('v_readfirstlane') or mn.startswith('v_readlane'):
                self.cls = 'readlane'
                self.wr = R[0]
                self.rd = sum(R[1:], [])
            elif mn.startswith('v_add_co') or mn.startswith('v_addc_co') or mn.startswith('v_sub_co'):
                self.wr = R[0] + R[1]
                self.rd = sum(R[2:], [])
            else:
                self.wr = R[0]
                self.rd = sum(R[1:], [])
                if mn.startswith('v_fmac') or mn.startswith('v_dot2c') or self.dpp:
                    self.rd = self.rd + R[0]
        elif mn.startswith('ds_'):
            self.cls = 'ds'
            if mn.startswith('ds_read') or mn.startswith('ds_bpermute') or mn.startswith('ds_swizzle'):
                self.wr = R[0]
                self.rd = sum(R[1:], [])
            else:
                self.rd = sum(R, [])
        elif mn.startswith('buffer_') or mn.startswith('global_'):
            self.cls = 'vmem'
            if 'lds' in mods or mn.startswith('global_load_lds'):
                self.lds_dma = True
                self.rd = sum(R, []) + [('s', 124)]
            elif '_load_' in mn:
                self.wr = R[0]
                self.rd = sum(R[1:], [])
            elif '_atomic_' in mn:
                self.rd = sum(R, [])
                if 'sc0' in mods:
                    self.wr = R[0]
            else:
                self.rd = sum(R, [])
                if mn.endswith('x4') or mn.endswith('x3'):
                    self.wide_data = R[0] if mn.startswith('buffer_') else R[1]
        elif mn == 's_nop':
            self.cls = 'nop'
            self.nop = int(ops[0], 0) + 1
        elif mn.startswith('s_'):
            self.cls = 'salu'
            if mn.startswith(('s_cmp', 's_cbranch', 's_branch', 's_waitcnt', 's_barrier', 's_sleep', 's_setprio',
                              's_endpgm', 's_bitcmp')):
                self.rd = sum(R, [])
            elif mn.endswith('saveexec_b64'):
                self.wr = R[0] + [('s', 126), ('s', 127)]
                self.rd = sum(R[1:], [])
            else:
                self.wr = R[0] if R else []
                self.rd = sum(R[1:], [])
        else:
            raise ValueError('unknown instruction: ' + text)

    def states(self):
        return self.nop if self.cls == 'nop' else 1


def need(p, c):
    n = 0
    pw = set(p.wr)
    valu_p = p.cls in ('valu', 'trans', 'permlane', 'readlane')
    valu_c = c.cls in ('valu', 'trans', 'permlane', 'readlane')
    if valu_p:
        vw = {r for r in pw if r[0] != 's'}
        sw = {r for r in pw if r[0] == 's'}
        if c.cls == 'mfma' and vw & set(c.rd):
            n = max(n, 2)
        if c.cls == 'permlane' and vw & set(c.rd):
            n = max(n, 2)
        if c.dpp and vw & set(c.rd):
            n = max(n, 2)
        if c.cls == 'readlane' and vw & set(c.rd):
            n = max(n, 1)
        if p.cls == 'trans' and vw & set(c.rd) and c.cls != 'trans':
            n = max(n, 1)
        if sw & set(c.rd):
            if valu_c:
                n = max(n, 4 if c.cls == 'readlane' else 2)
            if c.cls == 'vmem':
                n = max(n, 5)
            if c.cls == 'salu' and not c.mn.startswith('s_cbranch'):
                n = max(n, 1)
    if p.cls == 'mfma':
        big = p.passes == 8
        if c.cls == 'mfma':
            if pw & set(c.ab):
                n = max(n, 12 if big else 8)
            if pw & set(c.srcc):
                if not (p.wr == c.srcc and p.mn == c.mn):
                    n = max(n, 12 if big else 8)
            elif pw & set(c.wr):
                n = max(n, 12 if big else 8)
        else:
            if pw & (set(c.rd) | set(c.wr)):
                n = max(n, 12 if big else 8)
            if valu_c and set(p.srcc) & set(c.wr):
                n = max(n, 7 if big else 3)
    if p.cls == 'salu' and ('s', 124) in pw and c.lds_dma:
        n = max(n, 1)
    if p.wide_data and set(p.wide_data) & set(c.wr):
        n = max(n, 2)
    return n


class Asm:
    def __init__(self):
        self.items = []
        self._lab = 0

    def __call__(self, text):
        for line in text.strip().split('\n'):
            line = line.strip()
            if not line:
                continue
            if line.startswith(';') or line.endswith(':') or line.startswith('.'):
                self.items.append(line)
            else:
                self.items.append(Ins(line))

    def label(self, name):
        self.items.append(name + ':')

    def newlabel(self, base='L'):
        self._lab += 1
        return '%s_%d' % (base, self._lab)

    def fence(self):
        self('s_nop 7')
        self('s_nop 3')

    def render(self):
        out = []
        hist = []
        pos = 0
        nins = 0
        mf_free = 0
        for it in self.items:
            if isinstance(it, str):
                out.append(it if it.endswith(':') or it.startswith('.') else '    ' + it)
                if it.endswith(':'):
                    mf_free = 0
                continue
            ipos = max(pos, mf_free) if it.cls == 'mfma' else pos
            req = 0
            for (p, ppos) in hist:
                n = need(p, it)
                if n > ipos - ppos:
                    req = max(req, n - (pos - ppos))
            while req > 0:
                k = min(req, 16)
                out.append('    s_nop %d' % (k - 1))
                pos += k
                req -= k
                nins += 1
            if it.cls == 'mfma':
                pos = max(pos, mf_free)
                mf_free = pos + it.passes
            out.append('    ' + it.text)
            pos += it.states()
            hist.append((it, pos))
            hist = [(p, pp) for (p, pp) in hist if pos - pp < 14]
        self.auto_nops = nins
        return '\n'.join(out) + '\n'


class Q:
    def __init__(self, a, name, maxn):
        self.a, self.name, self.maxn = a, name, maxn
        self.ops = []

    def issue(self, text, tag=None):
        self.a(text)
        self.ops.append(tag)

    def wait(self, *tags):
        idx = -1
        for t in tags:
            found = [i for i, o in enumerate(self.ops) if o == t]
            if found:
                idx = max(idx, found[-1])
        if idx < 0:
            return
        n = len(self.ops) - 1 - idx
        n = min(n, self.maxn)
        self.a('s_waitcnt %s(%d)' % (self.name, n))
        self.ops = self.ops[len(self.ops) - n:] if n else []

    def drain(self):
        self.a('s_waitcnt %s(0)' % self.name)
        self.ops = []

    def reset(self):
        self.ops = []
```

```python
import math

WS_BYTES = 268435456
PART = 0x0000000
MEM = 0x0080000
PROG = 0x0090000
STAMP = 0x00A0000
KVM_KT = 0x0100000
KVM_VP = 0x0900000
KX = 0x1000000
VX = 0x2000000
QX = 0x3000000
OX = 0x4000000
HX = 0x5000000

S_WS, S_DBG, S_WQ, S_WK, S_WV, S_WO, S_M0, S_X, S_W1, S_W2, S_OUT = 8, 12, 16, 20, 24, 28, 32, 36, 40, 44, 48


def srd(b):
    return 's[%d:%d]' % (b, b + 3)


D_XCD = 0
D_RINIT = 8
D_ERR = 9
D_KV = 16

SCALE_LOG2E = (128 ** -0.5) * math.log2(math.e)


def f32bits(x):
    import struct
    return struct.unpack('<I', struct.pack('<f', x))[0]

XN = 0x0A00000
ZX = 0x4000000
ZS = 184 * 2048
D_LN = 10
D_QH = 32
D_OC = 40
```

```python
from common import *
from asm import Q

L_MEM0, L_EX, L_WO = 0, 16384, 32768
L_ZERO = L_EX + 1024
L_KVB = L_WO
SENT = 0xFFBFFFBF

sH, sW, sS, sSPIN = 52, 53, 54, 55
sPLD, sMCW, sMNX, sMCU, sMTH = 57, 58, 59, 60, 61
sKX, sT, sT2, sKVM = 62, 63, 64, 65
sXCC = 66
sM0 = 67
sMB = 68
sCOL = 70
sC = 78
sST = 80
sFLG = 84
sSENT, sBIG, sPRG, sPPO = 86, 87, 88, 89
sPS = 2
PST_S = [2, 3, 4, 5, 6, 7, 56, 100]
sMPO = 101
sKVL = 51 if False else 1

vL16, vIDX, vMRD, vEXW, vOR, vPST, vPLD, vMST, vWOB, vRV = range(10)
vRL = 10
vWOH, vX = 12, 13
vPM = 14
vSEL = 16
vONE = 20
vP = 24
vL = 28
vAW = 32
vKV = 48
vT = 52
vQ, vK, vV = 64, 72, 80
vKX, vVX = 88, 96
vWS = 104
vWV = 128

SPIN_MAX = 0x200000


def v(i, n=1):
    return 'v%d' % i if n == 1 else 'v[%d:%d]' % (i, i + n - 1)


def AW(k):
    return vAW + 4 * (k % 4)


def WQ(u, k):
    b = (u * 8 + k) * 8
    return 'a[%d:%d]' % (b, b + 7)


def WK(u, k):
    b = 128 + (u * 8 + k) * 8
    return 'a[%d:%d]' % (b, b + 7)


def WV(u, k):
    return v(vWV + (u * 8 + k) * 8, 8)


def mpos(k):
    return 2 * (k & 3) + (k >> 2)


def smf(d, a, b):
    return 'v_smfmac_f32_16x16x64_bf16 %s, %s, %s, v%d' % (v(d, 4), v(a, 4), b, vIDX)


def m16(d, a, b, c=None):
    return 'v_mfma_f32_16x16x16_bf16 %s, %s, %s, %s' % (v(d, 4), v(a, 2), v(b, 2), '0' if c is None else v(c, 4))


def m32(d, a, b, c=None):
    return 'v_mfma_f32_16x16x32_bf16 %s, %s, %s, %s' % (v(d, 4), v(a, 4), v(b, 4), '0' if c is None else v(c, 4))


def cvt(d, x, y):
    return f'v_cvt_pk_bf16_f32 v{d}, v{x}, v{y}'


def pka(d, x, y):
    return f'v_pk_add_f32 {v(d,2)}, {v(x,2)}, {v(y,2)}'


def spin(a, fail):
    a('s_add_u32 s%d, s%d, 1' % (sSPIN, sSPIN))
    a('s_cmp_gt_u32 s%d, 0x%x' % (sSPIN, SPIN_MAX))
    a('s_cbranch_scc1 %s' % fail)


def stamp(a, opts, i):
    if not opts.get('fine'):
        return
    a(f'''
    s_memtime s[{sST+2}:{sST+3}]
    s_waitcnt lgkmcnt(0)
    s_sub_u32 s{sFLG}, s{sST+2}, s{sFLG+1}
    s_add_u32 s{90+i}, s{90+i}, s{sFLG}
    s_mov_b32 s{sFLG+1}, s{sST+2}
    ''')


def emit_r_init(a, opts):
    a('; ================= R role init =================')
    t = 104
    a(f'''
    v_lshrrev_b32 v{t}, 6, v0
    s_nop 0
    v_readfirstlane_b32 s{sW}, v{t}
    v_and_b32 v{t+1}, 63, v0
    v_and_b32 v{t+2}, 15, v0
    v_bfe_u32 v{t+3}, v0, 4, 2
    v_lshlrev_b32 v{vL16}, 4, v{t+1}
    ''')
    c, g = t + 2, t + 3
    x, y, z = t + 4, t + 5, t + 6
    a(f'''
    v_bfe_u32 v{x}, v{c}, 1, 1          ; b
    v_mul_u32_u24 v{y}, 0xAAAA, v{x}
    v_add_u32 v{vIDX}, 0x4444, v{y}
    ; MRD = g*256 + b*128 + m*16 , m = 2*(c>>2) + (c&1)
    v_lshlrev_b32 v{y}, 8, v{g}
    v_lshl_add_u32 v{y}, v{x}, 7, v{y}
    v_lshrrev_b32 v{z}, 2, v{c}
    v_lshl_add_u32 v{y}, v{z}, 5, v{y}
    v_and_b32 v{z}, 1, v{c}
    v_lshl_add_u32 v{vMRD}, v{z}, 4, v{y}
    s_lshl_b32 s{sT}, s{sW}, 12
    s_add_u32 s{sT}, s{sT}, {L_EX}
    v_add_u32 v{vEXW}, s{sT}, v{vL16}
    v_lshl_add_u32 v{vOR}, v{x}, 12, v{vL16}
    v_add_u32 v{vOR}, {L_EX}, v{vOR}
    s_lshl_b32 s{sT}, s{sW}, 15
    s_add_u32 s{sT}, s{sT}, {L_WO}
    v_add_u32 v{vWOB}, s{sT}, v{vL16}
    ; PST = g*2048 + h*64 + c*4
    s_lshl_b32 s{sT}, s{sH}, 6
    v_lshlrev_b32 v{y}, 11, v{g}
    v_lshl_add_u32 v{y}, v{c}, 2, v{y}
    v_add_u32 v{vPST}, s{sT}, v{y}
    ; PLD = h*8192 + w*2048 + (4g + (c&3))*64 + (c>>2)*16
    s_lshl_b32 s{sT}, s{sH}, 13
    s_lshl_b32 s{sT2}, s{sW}, 11
    s_add_u32 s{sT}, s{sT}, s{sT2}
    v_and_b32 v{y}, 3, v{c}
    v_lshl_add_u32 v{y}, v{g}, 2, v{y}
    v_lshlrev_b32 v{y}, 6, v{y}
    v_lshrrev_b32 v{z}, 2, v{c}
    v_lshl_add_u32 v{y}, v{z}, 4, v{y}
    v_add_u32 v{vPLD}, s{sT}, v{y}
    ''')
    a(f'''
    s_lshr_b32 s{sT}, s{sH}, 2
    s_and_b32 s{sT2}, s{sT}, 3
    s_lshl_b32 s{sT2}, s{sT2}, 1
    s_lshr_b32 s{sT}, s{sT}, 2
    s_add_u32 s{sT}, s{sT}, s{sT2}
    s_lshl_b32 s{sT}, s{sT}, 10
    s_and_b32 s{sT2}, s{sH}, 3
    s_lshl_b32 s{sT2}, s{sT2}, 8
    s_add_u32 s{sT}, s{sT}, s{sT2}
    s_lshl_b32 s{sT2}, s{sW}, 5
    s_add_u32 s{sT}, s{sT}, s{sT2}
    v_lshrrev_b32 v{y}, 1, v{g}
    v_lshlrev_b32 v{y}, 7, v{y}
    v_bfe_u32 v{z}, v{c}, 2, 1
    v_lshl_add_u32 v{y}, v{z}, 4, v{y}
    v_and_b32 v{z}, 1, v{g}
    v_lshl_add_u32 v{y}, v{z}, 3, v{y}
    v_and_b32 v{z}, 3, v{c}
    v_lshl_add_u32 v{y}, v{z}, 1, v{y}
    v_add_u32 v{y}, s{sT}, v{y}
    v_and_b32 v{z}, 9, v{c}
    v_cmp_eq_u32 vcc, 0, v{z}
    v_mov_b32 v{z}, 0x40000000
    v_cndmask_b32 v{vMST}, v{z}, v{y}, vcc
    ''')
    m0o = t + 7
    a(f'''
    s_lshl_b32 s{sT}, s{sW}, 11
    s_lshl_b32 s{sT2}, s{sH}, 5
    s_add_u32 s{sT}, s{sT}, s{sT2}
    v_bfe_u32 v{y}, v{c}, 2, 1
    v_lshlrev_b32 v{y}, 10, v{y}
    v_lshl_add_u32 v{y}, v{g}, 3, v{y}
    v_and_b32 v{z}, 2, v{c}
    v_lshl_add_u32 v{y}, v{z}, 1, v{y}
    v_add_u32 v{m0o}, s{sT}, v{y}
    buffer_load_dword v{t+8}, v{m0o}, {srd(S_M0)}, 0 offen
    ''')
    a(f'''
    v_bfe_u32 v{y}, v{c}, 2, 1
    v_lshlrev_b32 v{y}, 4, v{y}
    v_mov_b32 v{z}, 0x3F80
    v_lshlrev_b32 v{vRV}, v{y}, v{z}
    ; SEL: S = (g == c>>2) ? ((c&1) ? 0x3F800000 : 0x3F80) : 0
    v_and_b32 v{y}, 1, v{c}
    v_lshlrev_b32 v{y}, 4, v{y}
    v_lshlrev_b32 v{y}, v{y}, v{z}
    v_lshrrev_b32 v{z}, 2, v{c}
    v_cmp_eq_u32 vcc, v{z}, v{g}
    v_mov_b32 v{vSEL+1}, 0
    v_mov_b32 v{vSEL+2}, 0
    v_cndmask_b32 v{vSEL}, 0, v{y}, vcc
    v_mov_b32 v{vSEL+3}, v{vSEL}
    v_mov_b32 v{vONE}, 0x3F803F80
    v_mov_b32 v{vONE+1}, 0x3F803F80
    v_mov_b32 v{vONE+2}, 0x3F803F80
    v_mov_b32 v{vONE+3}, 0x3F803F80
    v_mov_b32 v{vPM}, 0
    v_mov_b32 v{vPM+1}, 0
    v_mov_b32 v{vKV}, 0
    v_mov_b32 v{vKV+1}, 0
    v_mov_b32 v{vKV+2}, 0
    v_mov_b32 v{vKV+3}, 0
    s_mov_b32 s{sMB}, 0xCCCCCCCC
    s_mov_b32 s{sMB+1}, 0xCCCCCCCC
    s_mov_b32 s{sC}, 0x{f32bits(SCALE_LOG2E):x}
    s_mov_b32 s{sC+1}, 0x{f32bits(SCALE_LOG2E):x}
    s_mov_b32 s{sSENT}, 0x{SENT:x}
    s_mov_b32 s{sBIG}, 0x{f32bits(2.0**opts.get('biglog', 60)):x}
    ''')
    for k in range(4):
        m = 0x11111111 << k
        a(f's_mov_b32 s{sCOL+2*k}, 0x{m:x}')
        a(f's_mov_b32 s{sCOL+2*k+1}, 0x{m:x}')
    r0, r1, f3, rowb = t + 9, t + 10, t + 11, t + 12
    wv = vT
    wo = vT + 4
    a(f'''
    v_bfe_u32 v{r0}, v{c}, 2, 1
    v_bfe_u32 v{r1}, v{c}, 3, 1
    v_lshrrev_b32 v{y}, 1, v{g}
    v_lshlrev_b32 v{rowb}, 4, v{y}
    v_and_b32 v{y}, 1, v{g}
    v_lshl_add_u32 v{rowb}, v{y}, 2, v{rowb}
    v_add_u32 v{rowb}, v{rowb}, v{r0}
    v_lshl_add_u32 v{rowb}, v{r1}, 3, v{rowb}
    v_lshl_add_u32 v{f3}, v{y}, 1, v{r0}
    v_lshl_add_u32 v{f3}, v{r1}, 2, v{f3}
    s_lshl_b32 s{sT}, s{sW}, 1
    v_xor_b32 v{y}, s{sT}, v{f3}
    v_lshlrev_b32 v{y}, 5, v{y}
    v_lshl_add_u32 v{y}, v{rowb}, 8, v{y}
    v_and_b32 v{z}, 3, v{c}
    v_lshl_add_u32 v{y}, v{z}, 3, v{y}
    v_add_u32 v{wv}, {L_WO}, v{y}
    v_xor_b32 v{wv+1}, 32, v{wv}
    v_add_u32 v{wv+2}, 0x10000, v{wv}
    v_add_u32 v{wv+3}, 0x10000, v{wv+1}
    v_and_b32 v{y}, 1, v{g}
    v_lshlrev_b32 v{rowb}, 4, v{y}
    v_lshrrev_b32 v{y}, 1, v{g}
    v_lshl_add_u32 v{rowb}, v{y}, 2, v{rowb}
    v_add_u32 v{rowb}, v{rowb}, v{r0}
    v_lshl_add_u32 v{rowb}, v{r1}, 5, v{rowb}
    v_xor_b32 v{y}, s{sW}, v{f3}
    v_lshlrev_b32 v{y}, 5, v{y}
    v_lshl_add_u32 v{y}, v{rowb}, 8, v{y}
    v_lshl_add_u32 v{y}, v{z}, 3, v{y}
    v_add_u32 v{wo}, {L_WO}, v{y}
    v_xor_b32 v{wo+1}, 128, v{wo}
    v_add_u32 v{wo+2}, 0x10000, v{wo}
    v_add_u32 v{wo+3}, 0x10000, v{wo+1}
    ''')
    dq, dw = vT + 8, vT + 9
    a(f'''
    v_and_b32 v{y}, 1, v{g}
    s_lshl_b32 s{sT}, s{sW}, 1
    v_or_b32 v{y}, s{sT}, v{y}
    v_lshlrev_b32 v{y}, 1, v{y}
    v_xor_b32 v{y}, v{y}, v{c}
    v_lshlrev_b32 v{y}, 4, v{y}
    s_lshl_b32 s{sT}, s{sW}, 15
    s_lshl_b32 s{sT2}, s{sH}, 8
    s_add_u32 s{sT}, s{sT}, s{sT2}
    v_lshl_add_u32 v{dq}, v{g}, 13, v{y}
    v_add_u32 v{dq}, s{sT}, v{dq}
    s_lshl_b32 s{sT}, s{sW}, 14
    s_lshl_b32 s{sT2}, s{sH}, 17
    s_add_u32 s{sT}, s{sT}, s{sT2}
    v_lshl_add_u32 v{dw}, v{g}, 10, v{y}
    v_add_u32 v{dw}, s{sT}, v{dw}
    s_lshl_b32 s{sT}, s{sW}, 11
    s_add_u32 s{sT}, s{sT}, {L_WO}
    v_add_u32 v{vWOB}, s{sT}, v{vL16}
    v_add_u32 v{vWOH}, 0x10000, v{vWOB}
    ''')
    nt = ' nt' if opts.get('nt') else ''

    def issue(cn):
        slot = cn & 3
        kind = cn >> 2
        for j in range(8):
            if kind != 3:
                so = ((cn & 3) * 128 + 16 * j) * 8192
                a(f's_lshl_b32 s{sT}, s{sW}, 10')
                a(f's_add_u32 m0, s{sT}, {L_WO + slot * 32768 + j * 4096}')
                a(f's_mov_b32 s{sT2}, {so}')
                sr = (S_WQ, S_WK, S_WV)[kind]
                a(f'buffer_load_dwordx4 v{dq}, {srd(sr)}, s{sT2} offen{nt} lds')
            else:
                jh, jl = j >> 2, j & 3
                so = (64 * jh + 4 * jl) * 1024 + (cn & 3) * 256
                a(f's_lshl_b32 s{sT}, s{sW}, 12')
                a(f's_add_u32 m0, s{sT}, {L_WO + slot * 32768 + (64 * jh + 4 * jl) * 256}')
                a(f's_mov_b32 s{sT2}, {so}')
                a(f'buffer_load_dwordx4 v{dw}, {srd(S_WO)}, s{sT2} offen{nt} lds')

    def consume(cn):
        slot = cn & 3
        kind = cn >> 2
        if kind < 3:
            for kk in range(2):
                k = 2 * (cn & 3) + kk
                for u in range(2):
                    for q in range(4):
                        off = (64 * (k & 3) + 32 * (q >> 1) + 2 * (q & 1)) * 256
                        if kind < 2:
                            b = kind * 128 + (u * 8 + k) * 8 + 2 * q
                            d = 'a[%d:%d]' % (b, b + 1)
                        else:
                            d = v(vWV + (u * 8 + k) * 8 + 2 * q, 2)
                        a(f'ds_read_b64_tr_b16 {d}, v{wv + (k >> 2) * 2 + u} offset:{off}')
        else:
            for tl in range(2):
                for k2 in range(2):
                    for q in range(4):
                        off = (slot & 1) * 32768 + (64 * k2 + 8 * (q >> 1) + 2 * (q & 1)) * 256
                        a(f'ds_read_b64_tr_b16 {v(64+(tl*2+k2)*8+2*q,2)}, v{wo + (slot>>1)*2 + tl} offset:{off}')

    for cn in range(4):
        issue(cn)
    se = vAW
    a(f'''
    v_mov_b32 v{se}, s{sSENT}
    v_mov_b32 v{se+1}, s{sSENT}
    v_mov_b32 v{se+2}, s{sSENT}
    v_mov_b32 v{se+3}, s{sSENT}
    s_mov_b32 s{sT}, {PART}
    s_mov_b32 s{sT2}, {PART + 0x40000}
    buffer_store_dwordx4 {v(se,4)}, v{vPLD}, {srd(S_WS)}, s{sT} offen sc1
    buffer_store_dwordx4 {v(se,4)}, v{vPLD}, {srd(S_WS)}, s{sT} offen offset:1024 sc1
    buffer_store_dwordx4 {v(se,4)}, v{vPLD}, {srd(S_WS)}, s{sT2} offen sc1
    buffer_store_dwordx4 {v(se,4)}, v{vPLD}, {srd(S_WS)}, s{sT2} offen offset:1024 sc1
    s_mov_b32 s{sT}, {MEM + 8192}
    s_mov_b32 s{sT2}, {MEM + 16384}
    buffer_store_dword v{se}, v{vMST}, {srd(S_WS)}, s{sT} offen sc1
    buffer_store_dword v{se}, v{vMST}, {srd(S_WS)}, s{sT2} offen sc1
    s_lshl_b32 s{sT}, s{sW}, 11
    v_add_u32 v{y}, s{sT}, v{vL16}
    ds_write_b128 v{y}, {v(se,4)} offset:{L_MEM0}
    ds_write_b128 v{y}, {v(se,4)} offset:{L_MEM0+1024}
    ds_write_b128 v{y}, {v(se,4)} offset:{L_MEM0+8192}
    ds_write_b128 v{y}, {v(se,4)} offset:{L_MEM0+8192+1024}
    v_pk_mov_b32 {v(se+4,2)}, 0, 0
    v_pk_mov_b32 {v(se+6,2)}, 0, 0
    ds_write_b128 v{vEXW}, {v(se+4,4)} offset:1024
    s_waitcnt vmcnt(38)
    v_cmp_eq_u32 vcc, s{sSENT}, v{t+8}
    v_xor_b32 v{y}, 0x00400040, v{t+8}
    v_cndmask_b32 v{t+8}, v{t+8}, v{y}, vcc
    s_mov_b32 s{sT}, {MEM}
    buffer_store_dword v{t+8}, v{vMST}, {srd(S_WS)}, s{sT} offen sc1
    s_lshl_b32 s{sT}, s{sH}, 7
    s_lshl_b32 s{sT2}, s{sW}, 2
    s_add_u32 s{sT}, s{sT}, s{sT2}
    s_add_u32 s{sPRG}, s{sT}, {PROG}
    buffer_store_dword v{vSEL+1}, v{vSEL+1}, {srd(S_WS)}, s{sPRG} offen sc1
    ''')
    for cn in range(16):
        if cn <= 3:
            n = 32
        elif cn <= 12:
            n = 24
        else:
            n = 8 * (15 - cn)
        a(f's_waitcnt vmcnt({n})')
        a('s_barrier')
        if cn == 4:
            lab = a.newlabel('R_noarr')
            a(f'''
            s_cmp_lg_u32 s{sW}, 0
            s_cbranch_scc1 {lab}
            s_cmp_eq_u32 s{sXCC}, 0
            s_cselect_b32 s{sT}, 0x10001, 1
            v_mov_b32 v{y}, s{sT}
            v_mov_b32 v{z}, {D_RINIT*4}
            s_mov_b64 exec, 1
            buffer_atomic_add v{y}, v{z}, {srd(S_DBG)}, 0 offen
            s_mov_b64 exec, -1
            {lab}:
            ''')
        consume(cn)
        a('s_waitcnt lgkmcnt(0)')
        a('s_barrier')
        if cn < 12:
            issue(cn + 4)
        else:
            slot = cn & 3
            if slot >= 2:
                a(f'v_add_u32 v{y}, 0x10000, v{vWOB}')
            else:
                a(f'v_mov_b32 v{y}, v{vWOB}')
            for f in range(4):
                if slot == 0 and f < 3:
                    continue
                for hf in range(2):
                    a(f'ds_write_b128 v{y}, {v(64+f*8+hf*4,4)} offset:{(slot&1)*32768 + f*8192 + hf*1024}')
            if slot == 0:
                resident = True
                for r in range(24):
                    a(f'v_mov_b32 v{vAW+0 if False else 24+r}, v{64+r}')
            a('s_waitcnt lgkmcnt(0)')
    for r in range(24):
        a(f'v_mov_b32 v{vWS+r}, v{24+r}')
    a(f'''
    s_mov_b32 s{sS}, 0
    s_mov_b32 s{sSPIN}, 0
    s_mov_b32 s{sPLD}, {PART}
    s_mov_b32 s{sPPO}, {PART + 0x40000}
    s_mov_b32 s{sMCU}, {MEM}
    s_mov_b32 s{sMNX}, {MEM+8192}
    s_mov_b32 s{sMTH}, {MEM+16384}
    s_lshl_b32 s{sM0}, s{sW}, 11
    s_lshl_b32 s{sT}, s{sH}, 13
    s_lshl_b32 s{sT2}, s{sW}, 11
    s_add_u32 s{sKX}, s{sT}, s{sT2}
    s_lshr_b32 s{sKVM}, s{sKX}, 1
    s_sub_u32 s{sKVM}, s{sKVM}, 0x20000
    s_lshl_b32 s{sT}, s{sW}, 13
    ''')
    for i in range(8):
        a(f's_add_u32 s{PST_S[i]}, s{sT}, {PART + i*0x8000}')
    a('s_barrier')


def wo_addr(i, k2, hf):
    slot = i >> 1
    off = slot * 32768 + ((i & 1) * 2 + k2) * 8192 + hf * 1024
    return off


def emit_kv_poll(a, fail, tmp):
    lab = a.newlabel('R_kvw')
    a(f'''
    s_lshl_b32 s{sT}, s{sT}, 3
    s_add_u32 s{sT}, s{sT}, {D_KV*4}
    {lab}:
    buffer_load_dwordx2 {v(tmp,2)}, v{vSEL+1}, {srd(S_DBG)}, s{sT} offen sc1
    s_waitcnt vmcnt(0)
    v_and_b32 v{tmp}, v{tmp}, v{tmp+1}
    s_nop 0
    v_readfirstlane_b32 s{sT2}, v{tmp}
    ''')
    spin(a, fail)
    a(f'''
    s_bitcmp1_b32 s{sT2}, s{sH}
    s_cbranch_scc0 {lab}
    ''')


def emit_r_loop(a, opts, fast, tag):
    sc = '' if fast else ' sc1'
    WSr = srd(S_WS)
    FAIL = 'R_fail'
    LOOP, DONE = f'R_loop_{tag}', f'R_done_{tag}'
    SLOW, SLOWRET = f'R_slow_{tag}', f'R_slowret_{tag}'
    RP, RPOK = f'R_rp_{tag}', f'R_rpok_{tag}'
    lq = Q(a, 'lgkmcnt', 15)
    vq = Q(a, 'vmcnt', 63)
    T = vT
    c0 = vX
    ZR = vSEL + 1
    nocomm = opts.get('nocomm', 0)
    if nocomm:
        a_real = a
        class Filt:
            def __call__(self, text):
                for line in text.strip().split('\n'):
                    l = line.strip()
                    if l.startswith('s_cbranch_vccnz R_rt'):
                        continue
                    if l.startswith('s_cbranch_vccz R_rpok'):
                        l = l.replace('s_cbranch_vccz', 's_branch')
                    if l.startswith('s_cbranch_vccnz R_slow'):
                        continue
                    if nocomm >= 2 and l.startswith('buffer_') and self.on:
                        continue
                    a_real(l)
            def label(self, n):
                if n == LOOP:
                    self.on = True
                if n == DONE:
                    self.on = False
                a_real.label(n)
            def newlabel(self, b='L'):
                return a_real.newlabel(b)
            def fence(self):
                a_real.fence()
        a = Filt()
        a.on = False
        lq.a = a
        vq.a = a

    def dma(second):
        return f'buffer_load_dwordx4 v{vL16}, {WSr}, s{sMCW} offen' + (' offset:1024' if second else '') + ' sc1 lds'

    def rdA(k, dst=None):
        return f'ds_read_b128 {v(AW(k) if dst is None else dst,4)}, v{vMRD} offset:{mpos(k)*1024}'

    def chk(k):
        r = AW(k)
        return [f'v_max3_u32 v{c0}, v{r}, v{r+1}, v{r+2}',
                f'v_max_u32 v{c0}, v{c0}, v{r+3}',
                f'v_cmp_eq_u32 vcc, s{sSENT}, v{c0}']

    STG = [vKX, vVX, vV]
    order = []
    for ip in range(4):
        order += [(2 * ip, 0), (2 * ip + 1, 0), (2 * ip, 1), (2 * ip + 1, 1)]

    def wo_reg(p):
        i, k2 = order[p]
        f = 2 * i + k2
        return vWS + 8 * f if p < 3 else STG[p % 3]

    def wo_rd(p):
        i, k2 = order[p]
        out = []
        for hf in range(2):
            off = wo_addr(i, k2, hf)
            base = vWOB if off < 65536 else vWOH
            out.append(f'ds_read_b128 {v(wo_reg(p)+4*hf,4)}, v{base} offset:{off & 0xffff}')
        return out

    def zero4(d):
        return f'ds_read_b128 {v(d,4)}, v{ZR} offset:{L_ZERO}'

    def Qs(k, u):
        return smf(vQ + 4 * u, AW(k), WQ(u, k))

    def Ks(k, u):
        return smf(vK + 4 * u, AW(k), WK(u, k))

    def add2(d, x, y):
        return [f'v_add_f32 v{d}, v{x}, v{y}', f'v_add_f32 v{d+1}, v{x+1}, v{y+1}']

    dp = 'row_mask:0xf bank_mask:0xf'
    SE = vL
    PZ = vRL
    sKB = sT2

    def kv_dma():
        return [f's_add_u32 s{sT}, s{sKX}, {KX}',
                f's_mov_b32 m0, s{sKVL}',
                f'buffer_load_dwordx4 v{vL16}, {WSr}, s{sT} offen sc1 lds',
                f'buffer_load_dwordx4 v{vL16}, {WSr}, s{sT} offen offset:1024 sc1 lds',
                f's_add_u32 s{sT}, s{sKX}, {VX - 2048}',
                f'buffer_load_dwordx4 v{vL16}, {WSr}, s{sT} offen offset:2048 sc1 lds',
                f'buffer_load_dwordx4 v{vL16}, {WSr}, s{sT} offen offset:3072 sc1 lds',
                f's_add_u32 s{sKX}, s{sKX}, {0 if opts.get("samekv") else 0x40000}']

    def kv_rd():
        return [f'ds_read_b128 {v(vKX+4*j,4)}, v{vEXW} offset:{L_KVB - L_EX + j*1024}' for j in range(4)]

    if not opts.get('no_kv_flags'):
        a(f's_mov_b32 s{sT}, 0')
        emit_kv_poll(a, FAIL, vT)
    a(f's_lshl_b32 s{sKVL}, s{sW}, 12')
    a(f's_add_u32 s{sKVL}, s{sKVL}, {L_KVB}')
    for s_ in kv_dma():
        a(s_)
    a('s_waitcnt vmcnt(0)')
    for s_ in kv_rd():
        a(s_)
    a(f'''
    s_lshl_b32 s{sT}, s{sW}, 11
    s_add_u32 s{sMCW}, s{sMCU}, s{sT}
    s_mov_b32 m0, s{sM0}
    s_mov_b32 s{sMPO}, s{sMTH}
    s_xor_b32 s{sT}, s{sM0}, 0x2000
    v_add_u32 v{PZ}, s{sT}, v{vL16}
    v_mov_b32 v{PZ+1}, 0
    ''')
    for i in range(12):
        a(f'v_pk_mov_b32 {v(vQ+2*i,2)}, 0, 0')
    for r in range(4):
        a(f'v_mov_b32 v{SE+r}, s{sSENT}')
    a('s_waitcnt vmcnt(0) lgkmcnt(0)')
    if opts.get('stamps'):
        a(f's_memtime s[{sST}:{sST+1}]')
        a('s_waitcnt lgkmcnt(0)')
        a(f's_mov_b32 s{sFLG+1}, s{sST}')
        for i in range(10):
            a(f's_mov_b32 s{90+i}, 0')
    a('.p2align 6')
    a.label(LOOP)

    def retry_label(k):
        return f'R_rt{k}_{tag}'

    def go_label(k):
        return f'R_go{k}_{tag}'

    a.label(retry_label(0))
    if opts.get('p0_sleep'):
        a(f's_sleep {opts["p0_sleep"]}')
    a(dma(0))
    a(dma(1))
    a(rdA(0))
    a(rdA(1))
    spin(a, FAIL)
    a('s_waitcnt lgkmcnt(1)')
    for s_ in chk(0):
        a(s_)
    a(f's_cbranch_vccnz {retry_label(0)}')
    stamp(a, opts, 0)
    lq.reset()
    lq.ops = ['A1']
    adma = opts.get('adma', [1, 3])
    nva = opts.get('nva', 0)

    def Vs(k, u):
        return smf(vV + 4 * u, AW(k), WV(u, k))
    for k in range(4):
        if k > 0:
            a.label(go_label(k))
        ck = chk(k + 1)
        a(Qs(k, 0))
        if k in adma:
            a(dma(1))
        lq.wait(f'A{k+1}')
        a(ck[0])
        a(Qs(k, 1))
        a(ck[1])
        a(Ks(k, 0))
        lq.issue(rdA(k + 2), f'A{k+2}')
        a(ck[2])
        a(Ks(k, 1))
        if k < nva:
            a(Vs(k, 0))
            a(Vs(k, 1))
        if k == 3:
            lq.issue(rdA(6), 'A6')
        a(f's_cbranch_vccnz {retry_label(k+1)}')
    for k in range(4, 8):
        a.label(go_label(k))
        a(Qs(k, 0))
        if k == 4:
            lq.issue(rdA(7), 'A7')
        if k < 7:
            ck = chk(k + 1)
            lq.wait(f'A{k+1}')
            a(ck[0])
            a(ck[1])
            a(ck[2])
        a(Qs(k, 1))
        if k < 7:
            a(f's_cbranch_vccnz {retry_label(k+1)}')
    stamp(a, opts, 1)
    QP, QT, KT, SM = vQ + 2, vQ + 4, vK, vQ
    O0, O1 = T + 4, T + 8
    vorder = [(k, u) for k in (4, 5, 6, 7, 0, 1, 2, 3) if k >= nva for u in range(2)]
    vi = [0]

    def V(n=1):
        for _ in range(n):
            if vi[0] >= len(vorder):
                return
            k, u = vorder[vi[0]]
            if k < 4 and u == 0:
                lq.wait(f'R{k}')
            a(Vs(k, u))
            vi[0] += 1
            if u == 1 and k >= 4 and k - 4 >= nva:
                lq.issue(rdA(k - 4), f'R{k-4}')

    if not opts.get('no_kv_flags'):
        lab = a.newlabel('R_nokv')
        a(f'''
        s_add_u32 s{sT}, s{sS}, 1
        s_and_b32 s{sT2}, s{sT}, 7
        s_cmp_lg_u32 s{sT2}, 0
        s_cbranch_scc1 {lab}
        s_cmp_eq_u32 s{sT}, 64
        s_cbranch_scc1 {lab}
        s_lshr_b32 s{sT}, s{sT}, 3
        ''')
        emit_kv_poll(a, FAIL, T)
        a.label(lab)
    kd = kv_dma()
    a(Ks(4, 0))
    a(f's_add_u32 s{sT2}, s{sKVM}, {KVM_KT}')
    a(f'buffer_store_dwordx4 {v(vKV,4)}, v{vL16}, {WSr}, s{sT2} offen sc1')
    a(f'v_add_f32 v{vQ}, v{vQ}, v{vQ+2}')
    a(Ks(4, 1))
    a(kd[0]); a(kd[1])
    a(f'v_add_f32 v{vQ+1}, v{vQ+1}, v{vQ+3}')
    a(Ks(5, 0))
    a(kd[2])
    a(f's_add_u32 s{sKVM}, s{sKVM}, 0x20000')
    a(f'v_add_f32 v{vQ+4}, v{vQ+4}, v{vQ+6}')
    a(f'v_add_f32 v{vQ+5}, v{vQ+5}, v{vQ+7}')
    a(Ks(5, 1))
    a(cvt(QP, vQ, vQ + 1))
    a(cvt(QP + 1, vQ + 4, vQ + 5))
    a(Ks(6, 0))
    a(kd[3]); a(kd[4])
    a(m16(T, QP, vSEL))
    a(m16(T + 4, QP, vSEL + 2))
    a(Ks(6, 1))
    a(Ks(7, 0))
    a(kd[5])
    a(cvt(QT, T, T + 1))
    a(cvt(QT + 1, T + 2, T + 3))
    a(Ks(7, 1))
    a(cvt(QT + 2, T + 4, T + 5))
    a(cvt(QT + 3, T + 6, T + 7))
    a(f'v_add_f32 v{vK}, v{vK}, v{vK+2}')
    a(m32(T, vKX, QT))
    a(f'v_add_f32 v{vK+1}, v{vK+1}, v{vK+3}')
    a(f'v_add_f32 v{vK+4}, v{vK+4}, v{vK+6}')
    a(m32(T + 4, vKX + 4, QT))
    a(f'v_add_f32 v{vK+5}, v{vK+5}, v{vK+7}')
    a(cvt(vKV, vK, vK + 1))
    a(cvt(vKV + 1, vK + 4, vK + 5))
    a(kd[6]); a(kd[7])
    a(m16(T + 8, vKV, vSEL))
    a(m16(vK + 4, vKV, vSEL + 2))
    for r in range(4):
        a(f'v_cndmask_b32 v{T+r}, v{T+r}, v{T+4+r}, s[{sMB}:{sMB+1}]')
    lq.issue(f'ds_write_b128 v{vEXW}, {v(T,4)}', 'wx')
    a(cvt(KT, T + 8, T + 9))
    a(cvt(KT + 1, T + 10, T + 11))
    a(cvt(KT + 2, vK + 4, vK + 5))
    a(cvt(KT + 3, vK + 6, vK + 7))
    V()
    a(m32(SM, KT, QT))
    V(2)
    lq.wait('wx')
    a('s_barrier')
    lq.issue(f'ds_write_b64 v{vEXW}, {v(SM,2)} offset:3072', 'wm')
    X = [T, T + 4, vKX, vKX + 4]
    for j in range(4):
        lq.issue(f'ds_read_b128 {v(X[j],4)}, v{vL16} offset:{L_EX + j*4096}', f'x{j}')
    V(3)
    lq.wait('wm')
    a('s_barrier')
    M = [vQ, vQ + 2, vK + 4, vK + 6]
    for j in range(4):
        lq.issue(f'ds_read_b64 {v(M[j],2)}, v{vL16} offset:{L_EX + j*4096 + 3072}', f'm{j}')
    V()
    a(f'buffer_store_dwordx4 {v(SE,4)}, v{vPLD}, {WSr}, s{sPPO} offen{sc}')
    lq.wait('x1')
    for s_ in add2(T, T, T + 4) + add2(T + 2, T + 2, T + 6):
        a(s_)
    lq.wait('x3')
    for s_ in add2(vKX, vKX, vKX + 4) + add2(vKX + 2, vKX + 2, vKX + 6):
        a(s_)
    V()
    lq.issue(f'ds_write_b128 v{PZ}, {v(SE,4)}', 'pz')
    for r in range(4):
        a(f'v_add_f32 v{T+r}, v{T+r}, v{vKX+r}')
    for r in range(4):
        a(f'v_mul_f32 v{T+r}, s{sC}, v{T+r}')
    V()
    for s_ in wo_rd(3):
        lq.issue(s_, 'f3')
    a(f'v_exp_f32 v{T}, v{T}')
    a(f'v_exp_f32 v{T+1}, v{T+1}')
    lq.wait('m3')
    for s_ in add2(vQ, vQ, vQ + 2):
        a(s_)
    V()
    a(f'buffer_store_dwordx4 {v(SE,4)}, v{vPLD}, {WSr}, s{sPPO} offen offset:1024{sc}')
    a(f'v_exp_f32 v{T+2}, v{T+2}')
    a(f'v_exp_f32 v{T+3}, v{T+3}')
    for s_ in add2(vK + 4, vK + 4, vK + 6):
        a(s_)
    V()
    lq.issue(f'ds_write_b128 v{PZ}, {v(SE,4)} offset:1024', 'pz')
    a(cvt(T + 4, T, T + 1))
    a(cvt(T + 5, T + 2, T + 3))
    for s_ in add2(vQ, vQ, vK + 4):
        a(s_)
    V()
    a(f'buffer_store_dword v{SE}, v{vMST}, {WSr}, s{sMPO} offen{sc}')
    a(f'v_mov_b32_dpp v{vP}, v{T+4} quad_perm:[0,1,0,1] {dp}')
    a(f'v_mov_b32_dpp v{vP+1}, v{T+5} quad_perm:[0,1,0,1] {dp}')
    a(f'v_mov_b32_dpp v{vP+2}, v{T+4} quad_perm:[2,3,2,3] {dp}')
    a(f'v_mov_b32_dpp v{vP+3}, v{T+5} quad_perm:[2,3,2,3] {dp}')
    V()
    a(f's_mov_b64 exec, 1')
    a(f'buffer_store_dword v{PZ+1}, v{ZR}, {WSr}, s{sPRG} offen sc1')
    a(f's_mov_b64 exec, -1')
    a(f'v_mul_f32 v{vQ}, s{sC}, v{vQ}')
    V()
    a(f'v_mul_f32 v{vQ+1}, s{sC}, v{vQ+1}')
    V()
    a(f'v_exp_f32 v{vQ}, v{vQ}')
    V()
    a(f'v_exp_f32 v{vQ+1}, v{vQ+1}')
    V(16)
    a(m32(O0, vVX, vP))
    a(f'v_add_f32 v{vV}, v{vV}, v{vV+2}')
    a(f'v_add_f32 v{vV+1}, v{vV+1}, v{vV+3}')
    a(m32(O1, vVX + 4, vP))
    WDl = [AW(0), AW(1), AW(2), AW(3), T, vK + 4, vQ, vQ + 4]

    def WD(i):
        return WDl[i]
    a(cvt(vPM, vQ, vQ + 1))
    a(cvt(vKV + 2, vV, vV + 1))
    a(m32(vL, vP, vONE))
    a(f'v_add_f32 v{vV+4}, v{vV+4}, v{vV+6}')
    a(f'v_add_f32 v{vV+5}, v{vV+5}, v{vV+7}')
    a(cvt(vV + 2, vV + 4, vV + 5))
    a(cvt(vV + 3, vV + 4, vV + 5))
    a(m16(O0, vKV + 2, vPM, O0))
    a(m16(O1, vV + 2, vPM, O1))
    a(m16(vL, vPM, vONE, vL))
    a(cvt(vKV + 3, vV + 4, vV + 5))
    a(f's_cmp_eq_u32 s{sS}, 63')
    a(f's_cbranch_scc1 {DONE}')
    OP = vV + 4
    a(cvt(OP, O0, O0 + 1))
    a(cvt(OP + 1, O0 + 2, O0 + 3))
    a(cvt(OP + 2, O1, O1 + 1))
    a(cvt(OP + 3, O1 + 2, O1 + 3))
    lq.issue(f'ds_write_b128 v{vEXW}, {v(OP,4)} offset:2048', 'wo')
    lq.issue(zero4(WD(0)), 'z0')
    lq.issue(zero4(WD(1)), 'z1')
    a(f'v_rcp_f32 v{vRL}, v{vL}')
    a(f'v_rcp_f32 v{vRL+1}, v{vL+1}')
    a(f'v_max_f32 v{vX}, v{vL}, v{vL+1}')
    a(f'v_max3_f32 v{vX}, v{vX}, v{vRL}, v{vRL+1}')
    a(f'v_cmp_ngt_f32 vcc, s{sBIG}, v{vX}')
    a(f'''
    s_xor_b32 s{sM0}, s{sM0}, 0x2000
    s_lshl_b32 s{sT}, s{sW}, 11
    s_add_u32 s{sMCW}, s{sMNX}, s{sT}
    s_mov_b32 m0, s{sM0}
    ''')
    a(f's_cbranch_vccnz {SLOW}')
    a(f'R_noslow_{tag}:')
    lq.wait('wo')
    stamp(a, opts, 2)
    a('s_barrier')
    WA = T + 4
    lq.issue(f'ds_read_b128 {v(WA,4)}, v{vOR} offset:2048', 'wa0')
    lq.issue(f'ds_read_b128 {v(WA+4,4)}, v{vOR} offset:{8192+2048}', 'wa1')
    for s_ in wo_rd(4):
        lq.issue(s_, 'f4')
    lq.issue(zero4(WD(2)), 'z2')
    for s_ in wo_rd(5):
        lq.issue(s_, 'f5')
    for i in (3, 4, 5, 6, 7):
        a(f'v_pk_mov_b32 {v(WD(i),2)}, 0, 0')
        a(f'v_pk_mov_b32 {v(WD(i)+2,2)}, 0, 0')
    vq.reset()

    def fin(i):
        d = WD(i)
        return [f'v_add_f32 v{d}, v{d}, v{d+2}',
                f'v_add_f32 v{d+1}, v{d+1}, v{d+3}',
                f'v_mul_f32 v{d}, v{d}, v{vRL}',
                f'v_mul_f32 v{d+1}, v{d+1}, v{vRL+1}',
                cvt(d, d, d + 1),
                ('st', f'buffer_store_dword v{d}, v{vPST}, {WSr}, s{PST_S[i]} offen{sc}')]

    R0, R1 = AW(0), AW(2)

    def pld(rs, tagp):
        vq.issue(f'buffer_load_dwordx4 {v(rs,4)}, v{vPLD}, {WSr}, s{sPLD} offen sc1', tagp + '0')
        vq.issue(f'buffer_load_dwordx4 {v(rs+4,4)}, v{vPLD}, {WSr}, s{sPLD} offen offset:1024 sc1', tagp + '1')

    pend = []
    pa = opts.get('pa', 5)
    lq.wait('wa0')
    for p, (i, k2) in enumerate(order):
        if p >= 3:
            lq.wait(f'f{p}')
        if p == 2:
            lq.wait('wa1')
        if p == 4:
            lq.wait('z2')
        a(smf(WD(i), WA + 4 * k2, v(wo_reg(p), 8)))
        if p >= 3 and p + 3 < 16:
            for s_ in wo_rd(p + 3):
                lq.issue(s_, f'f{p+3}')
        n = 3
        while pend and n > 0:
            it = pend[0]
            if it[0] > p:
                break
            pend.pop(0)
            if isinstance(it[1], tuple):
                vq.issue(it[1][1])
            else:
                a(it[1])
                n -= 1
        if k2 == 1:
            pend += [(p + 1, x_) for x_ in fin(i)]
        if p == 2 * pa + 1:
            pld(R0, 'A')
    for it in pend:
        if isinstance(it[1], tuple):
            vq.issue(it[1][1])
        else:
            a(it[1])
    stamp(a, opts, 3)
    rpd = opts.get('rp_dma', 0)
    rps = opts.get('rp_sleep', 0)
    if pa > 7:
        pld(R0, 'A')
        if rps:
            a(f's_sleep {rps}')
    pld(R1, 'B')
    if rpd:
        vq.issue(dma(0))
    D = vL

    def pchk(rs, ok):
        a(m32(D, rs, vP))
        a(f'v_max3_u32 v{vX}, v{rs}, v{rs+1}, v{rs+2}')
        a(f'v_max3_u32 v{vX}, v{vX}, v{rs+3}, v{rs+4}')
        a(m32(D, rs + 4, vP, D))
        a(f'v_max3_u32 v{vX}, v{vX}, v{rs+5}, v{rs+6}')
        a(f'v_max_u32 v{vX}, v{vX}, v{rs+7}')
        a(f'v_cmp_eq_u32 vcc, s{sSENT}, v{vX}')
        a(f's_cbranch_vccz {ok}')

    for k in range(4):
        a(f'v_cndmask_b32 v{vP+k}, 0, v{vRV}, s[{sCOL+2*k}:{sCOL+2*k+1}]')
    vq.wait('A1')
    pchk(R0, RPOK)
    a.label(RP)
    for (ra, rb) in ((R0, R1), (R1, R0)):
        if rps:
            a(f's_sleep {rps}')
        a(f'buffer_load_dwordx4 {v(ra,4)}, v{vPLD}, {WSr}, s{sPLD} offen sc1')
        a(f'buffer_load_dwordx4 {v(ra+4,4)}, v{vPLD}, {WSr}, s{sPLD} offen offset:1024 sc1')
        if rpd:
            a(dma(0))
        a(f's_waitcnt vmcnt({4 if rpd else 2})')
        pchk(rb, RPOK)
    spin(a, FAIL)
    a(f's_branch {RP}')
    a.label(RPOK)
    a('s_nop 3')
    a(f'v_add_f32 v{D}, v{D}, v{D+1}')
    a(f'v_add_f32 v{D+2}, v{D+2}, v{D+3}')
    a(f'v_add_f32 v{D}, v{D}, v{D+2}')
    a(f'v_mov_b32_dpp v{D+1}, v{D} quad_perm:[1,1,3,3] {dp}')
    a(cvt(vX, D, D + 1))
    a(f'buffer_store_dword v{vX}, v{vMST}, {WSr}, s{sMNX} offen{sc}')
    stamp(a, opts, 4)
    for s_ in kv_rd():
        a(s_)
    for i in range(12):
        a(f'v_pk_mov_b32 {v(vQ+2*i,2)}, 0, 0')
    for r in range(4):
        a(f'v_mov_b32 v{SE+r}, s{sSENT}')
    a(f'''
    s_xor_b32 s{sT}, s{sM0}, 0x2000
    v_add_u32 v{PZ}, s{sT}, v{vL16}
    v_mov_b32 v{PZ+1}, s{sS}
    v_xor_b32 v{vMRD}, 0x2000, v{vMRD}
    s_add_u32 s{sS}, s{sS}, 1
    s_mov_b32 s{sPPO}, s{sPLD}
    s_mov_b32 s{sMPO}, s{sMCU}
    s_xor_b32 s{sPLD}, s{sPLD}, 0x40000
    s_mov_b32 s{sMCU}, s{sMNX}
    s_mov_b32 s{sMNX}, s{sMTH}
    s_mov_b32 s{sMTH}, s{sMPO}
    ''')
    for i in range(8):
        a(f's_xor_b32 s{PST_S[i]}, s{PST_S[i]}, 0x40000')
    a('s_waitcnt vmcnt(1) lgkmcnt(0)')
    stamp(a, opts, 5)
    a(f's_branch {LOOP}')

    for k in range(1, 8):
        a.label(retry_label(k))
        a(dma(0))
        a(dma(1))
        a(rdA(k))
        later = {1: [2], 2: [3], 3: [4], 4: [5, 6], 5: [6, 7], 6: [7], 7: []}[k]
        for kk in later:
            a(rdA(kk))
        spin(a, FAIL)
        a('s_waitcnt lgkmcnt(0)')
        for s_ in chk(k):
            a(s_)
        a(f's_cbranch_vccnz {retry_label(k)}')
        a(f's_branch {go_label(k)}')

    a.label(SLOW)
    a('s_waitcnt lgkmcnt(0)')
    Xs = [AW(0), AW(1), AW(2), AW(3)]
    Ms = [vQ, vQ + 2, vQ + 4, vQ + 6]
    for j in range(4):
        a(f'ds_read_b128 {v(Xs[j],4)}, v{vL16} offset:{L_EX + j*4096}')
        a(f'ds_read_b64 {v(Ms[j],2)}, v{vL16} offset:{L_EX + j*4096 + 3072}')
    a('s_waitcnt lgkmcnt(0)')
    x0, m0_ = Xs[0], Ms[0]
    a(pka(x0, x0, Xs[1]))
    a(pka(x0 + 2, x0 + 2, Xs[1] + 2))
    a(pka(Xs[2], Xs[2], Xs[3]))
    a(pka(Xs[2] + 2, Xs[2] + 2, Xs[3] + 2))
    a(pka(x0, x0, Xs[2]))
    a(pka(x0 + 2, x0 + 2, Xs[2] + 2))
    a(pka(m0_, m0_, Ms[1]))
    a(pka(Ms[2], Ms[2], Ms[3]))
    a(pka(m0_, m0_, Ms[2]))
    mx, my = Xs[1], Xs[1] + 1
    a(f'''
    v_max3_f32 v{mx}, v{x0}, v{x0+1}, v{x0+2}
    v_max3_f32 v{mx}, v{mx}, v{x0+3}, v{m0_}
    v_max_f32 v{mx}, v{mx}, v{m0_+1}
    v_max_f32_dpp v{mx}, v{mx}, v{mx} quad_perm:[2,3,0,1] {dp}
    v_mov_b32 v{my}, v{mx}
    v_permlane32_swap_b32 v{mx}, v{my}
    v_max_f32 v{mx}, v{mx}, v{my}
    v_mov_b32 v{my}, v{mx}
    v_permlane16_swap_b32 v{mx}, v{my}
    v_max_f32 v{mx}, v{mx}, v{my}
    ''')
    for r in [x0, x0 + 1, x0 + 2, x0 + 3, m0_, m0_ + 1]:
        a(f'v_sub_f32 v{r}, v{r}, v{mx}')
        a(f'v_mul_f32 v{r}, s{sC}, v{r}')
        a(f'v_exp_f32 v{r}, v{r}')
    a(cvt(Xs[2], x0, x0 + 1))
    a(cvt(Xs[2] + 1, x0 + 2, x0 + 3))
    a(cvt(vPM, m0_, m0_ + 1))
    a(f'v_mov_b32_dpp v{vP}, v{Xs[2]} quad_perm:[0,1,0,1] {dp}')
    a(f'v_mov_b32_dpp v{vP+1}, v{Xs[2]+1} quad_perm:[0,1,0,1] {dp}')
    a(f'v_mov_b32_dpp v{vP+2}, v{Xs[2]} quad_perm:[2,3,2,3] {dp}')
    a(f'v_mov_b32_dpp v{vP+3}, v{Xs[2]+1} quad_perm:[2,3,2,3] {dp}')
    a(m32(O0, vVX, vP))
    a(m32(O1, vVX + 4, vP))
    a(m32(vL, vP, vONE))
    a(m16(O0, vKV + 2, vPM, O0))
    a(m16(O1, vV + 2, vPM, O1))
    a(m16(vL, vPM, vONE, vL))
    a(zero4(WD(0)))
    a(zero4(WD(1)))
    a.fence()
    a(cvt(OP, O0, O0 + 1))
    a(cvt(OP + 1, O0 + 2, O0 + 3))
    a(cvt(OP + 2, O1, O1 + 1))
    a(cvt(OP + 3, O1 + 2, O1 + 3))
    a(f'ds_write_b128 v{vEXW}, {v(OP,4)} offset:2048')
    a(f'v_rcp_f32 v{vRL}, v{vL}')
    a(f'v_rcp_f32 v{vRL+1}, v{vL+1}')
    a('s_waitcnt lgkmcnt(0)')
    a.fence()
    a(f's_branch R_noslow_{tag}')

    a.label(DONE)
    a(f'''
    s_add_u32 s{sT}, s{sKVM}, {KVM_KT}
    buffer_store_dwordx4 {v(vKV,4)}, v{vL16}, {WSr}, s{sT} offen sc1
    v_mov_b32 v{vRL}, 64
    s_waitcnt vmcnt(0)
    buffer_store_dword v{vRL}, v{ZR}, {WSr}, s{sPRG} offen sc1
    ''')
    if opts.get('stamps'):
        a(f'''
        s_memtime s[{sST+2}:{sST+3}]
        s_waitcnt lgkmcnt(0)
        s_sub_u32 s{sT}, s{sST+2}, s{sST}
        v_mov_b32 v{vX}, s{sT}
        s_lshl_b32 s{sT}, s{sH}, 4
        s_lshl_b32 s{sT2}, s{sW}, 2
        s_add_u32 s{sT}, s{sT}, s{sT2}
        s_add_u32 s{sT}, s{sT}, {STAMP}
        buffer_store_dword v{vX}, v{ZR}, {WSr}, s{sT} offen
        v_mov_b32 v{vRL}, s{sSPIN}
        buffer_store_dword v{vRL}, v{ZR}, {WSr}, s{sT} offen offset:512
        ''')
        for i in range(10):
            a(f'v_mov_b32 v{vT+i}, s{90+i}')
            a(f's_add_u32 s{sT2}, s{sT}, {1024+512*i}')
            a(f'buffer_store_dword v{vT+i}, v{ZR}, {WSr}, s{sT2} offen')
    a('s_endpgm')


def emit_r_role(a, opts):
    emit_r_init(a, opts)
    lab = a.newlabel('R_iw')
    a(f'''
    v_mov_b32 v{vX}, {D_RINIT*4}
    {lab}:
    buffer_load_dword v{vRL}, v{vX}, {srd(S_DBG)}, 0 offen sc1
    s_waitcnt vmcnt(0)
    v_readfirstlane_b32 s{sT}, v{vRL}
    ''')
    spin(a, 'R_fail')
    a(f'''
    s_and_b32 s{sT2}, s{sT}, 0xffff
    s_cmp_lt_u32 s{sT2}, 32
    s_cbranch_scc1 {lab}
    s_lshr_b32 s{sT}, s{sT}, 16
    s_cmp_eq_u32 s{sT}, 32
    s_cbranch_scc0 R_safe_entry
    ''')
    if opts.get('force_safe'):
        a('s_branch R_safe_entry')
    emit_r_loop(a, opts, True, 'f')
    a.label('R_safe_entry')
    emit_r_loop(a, opts, False, 's')
    a.label('R_fail')
    a(f'''
    v_mov_b32 v{vX}, {D_ERR*4}
    v_mov_b32 v{vRL}, 1
    s_mov_b64 exec, 1
    buffer_atomic_add v{vRL}, v{vX}, {srd(S_DBG)}, 0 offen
    s_waitcnt vmcnt(0)
    s_endpgm
    ''')
```

```python
from common import *
from asm import Q
from wrole import *

vL8 = 4
vSEL = 156
vQI = 5
vOO = 6
vRW = 7
T = 12
vQ = 32
vK = 48
vV = 80
vM = 96
vKT = 112
vS = 128
vP = 140
vPM = 144
vO = 148
vA = 160
vB = 176
vB2 = 32


def m32(d, a_, b_, c_=None):
    return f'v_mfma_f32_16x16x32_bf16 {v(d,4)}, {a_}, {b_}, ' + ('0' if c_ is None else v(c_, 4))


def m16(d, a_, b_, c_=None):
    return f'v_mfma_f32_16x16x16_bf16 {v(d,4)}, {v(a_,2)}, {v(b_,2)}, ' + ('0' if c_ is None else v(c_, 4))


def emit_phase3(a, opts):
    WSr = srd(S_WS)
    dp = 'row_mask:0xf bank_mask:0xf'
    y, z = T, T + 1
    a('; ---------------- phase 3 ----------------')
    a(f'''
    v_lshrrev_b32 v{vL8}, 1, v{vL16}
    v_lshrrev_b32 v{y}, 5, v{vL16}
    v_lshlrev_b32 v{y}, 10, v{y}
    v_and_b32 v{z}, 16, v{vL16}
    v_add_u32 v{y}, v{y}, v{z}
    s_lshl_b32 s{sT}, s{sR}, 5
    v_add_u32 v{y}, s{sT}, v{y}
    s_mul_i32 s{sOB}, s{sW}, 40960
    v_add_u32 v{z}, s{sOB}, v{vL8}
    s_lshl_b32 s{sT}, s{sW}, 20
    ''')
    for ks in range(32):
        a(f's_add_u32 m0, s{sOB}, {ks*1024}')
        a(f's_add_u32 s{sT2}, s{sT}, {ks*32768}')
        a(f'buffer_load_dwordx4 v{y}, {srd(S_WO)}, s{sT2} offen lds')
    a('s_waitcnt vmcnt(0)')
    for ks in range(32):
        for hf in range(2):
            a(f'ds_read_b64_tr_b16 {ar(ks*4+2*hf,2)}, v{z} offset:{ks*1024+hf*512}')
    a('s_waitcnt lgkmcnt(0)')
    a(f's_mul_i32 s{sT}, s{sW}, {448*1024}')
    for ks in range(14):
        a(f's_add_u32 m0, s{sOB}, {ks*1024}')
        a(f's_add_u32 s{sT2}, s{sT}, {ks*32768}')
        a(f'buffer_load_dwordx4 v{y}, {srd(S_W2)}, s{sT2} offen lds')
    a('s_waitcnt vmcnt(0)')
    for ks in range(14):
        for hf in range(2):
            a(f'ds_read_b64_tr_b16 {ar((32+ks)*4+2*hf,2)}, v{z} offset:{ks*1024+hf*512}')
    a(f'''
    v_and_b32 v{y}, 1, v{vC}
    v_lshlrev_b32 v{y}, 4, v{y}
    v_mov_b32 v{z}, 0x3F80
    v_lshlrev_b32 v{y}, v{y}, v{z}
    v_lshrrev_b32 v{z}, 2, v{vC}
    v_cmp_eq_u32 vcc, v{z}, v{vG}
    v_mov_b32 v{vSEL+1}, 0
    v_mov_b32 v{vSEL+2}, 0
    v_cndmask_b32 v{vSEL}, 0, v{y}, vcc
    v_mov_b32 v{vSEL+3}, v{vSEL}
    v_mov_b32 v{vPM+1}, 0
    v_mov_b32 v{vPM+2}, 0
    s_and_b32 s{sT}, s{sW}, 1
    s_lshl_b32 s{sT}, s{sT}, 4
    v_add_u32 v{vQI}, s{sT}, v{vC}
    v_lshlrev_b32 v{y}, 2, v{vG}
    v_sub_u32 v{vQI}, v{vQI}, v{y}
    v_add_u32 v{y}, s{sT}, v{vC}
    v_lshlrev_b32 v{y}, 10, v{y}
    v_lshl_add_u32 v{y}, v{vG}, 3, v{y}
    s_lshl_b32 s{sT}, s{sR}, 5
    v_add_u32 v{vOO}, s{sT}, v{y}
    s_lshl_b32 s{sT}, s{sW}, 12
    v_add_u32 v{vRW}, s{sT}, v{vL16}
    s_mov_b32 s{sC}, 0x{f32bits(SCALE_LOG2E):x}
    s_mov_b32 s{sSEG}, s{sX}
    s_waitcnt lgkmcnt(0)
    s_barrier
    ''')
    a(f's_mov_b32 s{sT}, {D_RINIT*4}')

    def c0():
        a(f's_and_b32 s{sT2}, s{sT2}, 0xffff')
        a(f's_cmp_ge_u32 s{sT2}, 32')
    poll_dbg(a, sT, c0, T)
    a.label('W3_seg')
    a(f'''
    s_lshr_b32 s{sT}, s{sSEG}, 3
    s_lshl_b32 s{sT}, s{sT}, 2
    s_add_u32 s{sT}, s{sT}, {D_QH*4}
    ''')

    def c1():
        a(f's_cmp_ge_u32 s{sT2}, 110')
    poll_dbg(a, sT, c1, T)
    vq = Q(a, 'vmcnt', 63)
    a(f'''
    s_lshl_b32 s{sT}, s{sSEG}, 18
    s_lshl_b32 s{sT2}, s{sR}, 13
    s_add_u32 s{sNO}, s{sT}, s{sT2}          ; (s*32+h)*8192
    s_mul_i32 s{sNS}, s{sSEG}, {ZS}
    s_add_u32 s{sNS}, s{sNS}, {ZX}
    s_mul_i32 s{sT}, s{sW}, {14*2048}
    s_add_u32 s{sT}, s{sT}, s{sNS}
    s_add_u32 s{sT}, s{sT}, {128*2048}
    ''')
    def zload(buf, sreg, off, tag):
        vq.issue(f'buffer_load_dwordx4 {v(buf,4)}, v{vL16}, {WSr}, s{sreg} offen offset:{off} sc1', tag)
    nh = 28
    issued = 0

    def hissue(i):
        if i % 4 == 0 and i > 0:
            a(f's_add_u32 s{sT}, s{sT}, 4096')
        zload(vB + 4 * (i % 20), sT, (i % 4) * 1024, f'h{i}')
    for i in range(20):
        hissue(i)
    a(f'''
    s_and_b32 s{sT2}, s{sW}, 1
    s_lshl_b32 s{sT2}, s{sT2}, 10
    s_add_u32 s{sT2}, s{sT2}, s{sNO}
    s_add_u32 s{sT2}, s{sT2}, {QX}
    ''')
    for wp in range(4):
        if wp == 2:
            a(f's_add_u32 s{sT2}, s{sT2}, 4096')
        zload(vQ + 4 * wp, sT2, (wp & 1) * 2048, 'q')
    a(f's_add_u32 s{sT2}, s{sNO}, {KX}')
    for i in range(8):
        if i == 4:
            a(f's_add_u32 s{sT2}, s{sT2}, 4096')
        zload(vK + 4 * i, sT2, (i & 3) * 1024, 'k')
    a(f'''
    s_lshr_b32 s{sT2}, s{sW}, 1
    s_lshl_b32 s{sT2}, s{sT2}, 12
    s_add_u32 s{sT2}, s{sT2}, s{sNO}
    s_add_u32 s{sT2}, s{sT2}, {VX}
    ''')
    for i in range(4):
        zload(vV + 4 * i, sT2, i * 1024, 'v')
    for i in range(nh):
        ks, t = i >> 1, i & 1
        vq.wait(f'h{i}')
        a(m32(vA + 4 * t, ar((32 + ks) * 4, 4), v(vB + 4 * (i % 20), 4), None if ks == 0 else vA + 4 * t))
        if i + 20 < nh:
            hissue(i + 20)
    vq.wait('v')
    for t in range(2):
        for wp in range(4):
            a(m32(vS + 4 * t, v(vK + 4 * (2 * wp + t), 4), v(vQ + 4 * wp, 4), None if wp == 0 else vS + 4 * t))
    lab, ok = a.newlabel('W3_pp'), a.newlabel('W3_pk')
    a(f'''
    s_lshl_b32 s{sT}, s{sR}, 7
    s_add_u32 s{sT}, s{sT}, {PROG}
    {lab}:
    buffer_load_dwordx4 {v(T,4)}, v{vZ}, {WSr}, s{sT} offen sc1
    s_waitcnt vmcnt(0)
    v_min_u32 v{T}, v{T}, v{T+1}
    v_min_u32 v{T+2}, v{T+2}, v{T+3}
    v_min_u32 v{T}, v{T}, v{T+2}
    s_nop 0
    v_readfirstlane_b32 s{sT2}, v{T}
    s_cmp_gt_u32 s{sT2}, s{sSEG}
    s_cbranch_scc1 {ok}
    ''')
    spin(a)
    a(f's_sleep 2')
    a(f's_branch {lab}')
    a.label(ok)
    a(f's_lshr_b32 s{sT}, s{sNO}, 1')
    a(f's_add_u32 s{sT}, s{sT}, {KVM_KT}')
    for wp in range(4):
        a(f'buffer_load_dwordx4 {v(vM+4*wp,4)}, v{vL16}, {WSr}, s{sT} offen offset:{wp*1024} sc1')
    a('s_waitcnt vmcnt(0)')
    for wp in range(4):
        d = T + 8 * (wp & 1)
        a(m16(d, vM + 4 * wp, vSEL))
        a(m16(d + 4, vM + 4 * wp, vSEL + 2))
        for r in range(4):
            a(cvt(vKT + 4 * wp + r, d + 2 * r, d + 2 * r + 1))
    for wp in range(4):
        a(m32(vS + 8, v(vKT + 4 * wp, 4), v(vQ + 4 * wp, 4), None if wp == 0 else vS + 8))
    NEG = 0xff800000
    a(f'v_mov_b32 v{T}, 0x{NEG:x}')
    for t in range(2):
        for r in range(4):
            a(f'v_cmp_le_i32 vcc, {16*t+r}, v{vQI}')
            a(f'v_cndmask_b32 v{vS+4*t+r}, v{T}, v{vS+4*t+r}, vcc')
    mx, my = T + 1, T + 2
    a(f'''
    v_max3_f32 v{mx}, v{vS}, v{vS+1}, v{vS+2}
    v_max3_f32 v{mx}, v{mx}, v{vS+3}, v{vS+4}
    v_max3_f32 v{mx}, v{mx}, v{vS+5}, v{vS+6}
    v_max3_f32 v{mx}, v{mx}, v{vS+7}, v{vS+8}
    v_max_f32 v{mx}, v{mx}, v{vS+9}
    v_mov_b32 v{my}, v{mx}
    v_permlane32_swap_b32 v{mx}, v{my}
    v_max_f32 v{mx}, v{mx}, v{my}
    v_mov_b32 v{my}, v{mx}
    v_permlane16_swap_b32 v{mx}, v{my}
    v_max_f32 v{mx}, v{mx}, v{my}
    ''')
    for r in range(10):
        a(f'v_sub_f32 v{vS+r}, v{vS+r}, v{mx}')
        a(f'v_mul_f32 v{vS+r}, s{sC}, v{vS+r}')
        a(f'v_exp_f32 v{vS+r}, v{vS+r}')
    a(f'v_add_f32 v{mx}, v{vS}, v{vS+1}')
    for r in range(2, 10):
        a(f'v_add_f32 v{mx}, v{mx}, v{vS+r}')
    a(f'''
    v_mov_b32 v{my}, v{mx}
    v_permlane32_swap_b32 v{mx}, v{my}
    v_add_f32 v{mx}, v{mx}, v{my}
    v_mov_b32 v{my}, v{mx}
    v_permlane16_swap_b32 v{mx}, v{my}
    v_add_f32 v{mx}, v{mx}, v{my}
    v_rcp_f32 v{mx}, v{mx}
    ''')
    for r in range(10):
        a(f'v_mul_f32 v{vS+r}, v{vS+r}, v{mx}')
    for r in range(4):
        a(cvt(vP + r, vS + 2 * r, vS + 2 * r + 1))
    a(cvt(vPM, vS + 8, vS + 9))
    a(cvt(vPM + 3, vS + 8, vS + 9))
    l1, l2 = a.newlabel('W3_e'), a.newlabel('W3_e')
    a(f's_cmp_ge_u32 s{sW}, 2')
    a(f's_cbranch_scc1 {l1}')
    for i in range(2):
        a(f'v_mov_b32 v{T+4+2*i}, v{vM+4*i+2}')
        a(f'v_mov_b32 v{T+5+2*i}, v{vM+4*i+3}')
    a(f's_branch {l2}')
    a.label(l1)
    for i in range(2):
        a(f'v_mov_b32 v{T+4+2*i}, v{vM+8+4*i+2}')
        a(f'v_mov_b32 v{T+5+2*i}, v{vM+8+4*i+3}')
    a.label(l2)
    a('s_nop 1')
    a(f'''
    s_lshl_b32 s{sT}, s{sR}, 13
    s_add_u32 s{sT}, s{sT}, s{sNS}
    s_lshr_b32 s{sT2}, s{sW}, 1
    s_lshl_b32 s{sT2}, s{sT2}, 12
    s_add_u32 s{sT}, s{sT}, s{sT2}
    s_and_b32 s{sT2}, s{sW}, 1
    s_lshl_b32 s{sT2}, s{sT2}, 10
    s_add_u32 s{sT}, s{sT}, s{sT2}
    ''')
    for i in range(2):
        for u in range(2):
            a(m32(vO + 4 * u, v(vV + 4 * (2 * i + u), 4), v(vP, 4)))
        for u in range(2):
            a(m16(vO + 4 * u, T + 4 + 2 * i, vPM + 2 * u, vO + 4 * u))
        p = T + 8 + 4 * i
        for r in range(4):
            a(cvt(p + r, vO + 2 * r, vO + 2 * r + 1))
        a(f'buffer_store_dwordx4 {v(p,4)}, v{vL16}, {WSr}, s{sT} offen offset:{i*2048} sc1')
    a(f'''
    s_lshr_b32 s{sT}, s{sSEG}, 2
    s_lshl_b32 s{sT}, s{sT}, 2
    s_add_u32 s{sT}, s{sT}, {D_OC*4}
    s_and_b32 s{sT3}, s{sSEG}, 3
    s_lshl_b32 s{sT3}, s{sT3}, 3
    s_lshl_b32 s{sT2}, 1, s{sT3}
    ''')
    signal_add(a, sT, sT2)
    a(f's_lshl_b32 s{sNO}, s{sSEG}, 15')
    a(f'buffer_load_dwordx2 {v(T+16,2)}, v{vOO}, {srd(S_X)}, s{sNO} offen')

    def c2():
        a(f's_lshr_b32 s{sT2}, s{sT2}, s{sT3}')
        a(f's_and_b32 s{sT2}, s{sT2}, 0xff')
        a(f's_cmp_ge_u32 s{sT2}, 32')
    poll_dbg(a, sT, c2, T)
    vq.reset()
    a(f's_lshl_b32 s{sT}, s{sW}, 16')
    a(f's_add_u32 s{sT}, s{sT}, s{sNS}')
    bufs = [vB + 4 * i for i in range(20)] + [vB2 + 4 * i for i in range(24)]
    nb = len(bufs)

    def oissue(i):
        if i % 4 == 0 and i > 0:
            a(f's_add_u32 s{sT}, s{sT}, 4096')
        zload(bufs[i % nb], sT, (i % 4) * 1024, f'o{i}')
    for i in range(nb):
        oissue(i)
    for i in range(64):
        ks, t = i >> 1, i & 1
        vq.wait(f'o{i}')
        a(m32(vA + 8 + 4 * t, ar(ks * 4, 4), v(bufs[i % nb], 4), None if ks == 0 else vA + 8 + 4 * t))
        if i + nb < 64:
            oissue(i + nb)
    for i in range(4):
        a(f'ds_write_b128 v{vRW}, {v(vA+4*i,4)} offset:{i*1024}')
    a('s_waitcnt lgkmcnt(0)')
    a('s_barrier')
    skip = a.newlabel('W3_nofin')
    a(f's_cmp_ge_u32 s{sW}, 2')
    a(f's_cbranch_scc1 {skip}')
    a(f's_lshl_b32 s{sT}, s{sW}, 10')
    a(f'v_add_u32 v{T}, s{sT}, v{vL16}')
    R = vB
    for wv in range(4):
        a(f'ds_read_b128 {v(R+8*wv,4)}, v{T} offset:{wv*4096}')
        a(f'ds_read_b128 {v(R+8*wv+4,4)}, v{T} offset:{wv*4096+2048}')
    a('s_waitcnt lgkmcnt(0)')
    for r in range(8):
        a(f'v_add_f32 v{R+r}, v{R+r}, v{R+8+r}')
        a(f'v_add_f32 v{R+16+r}, v{R+16+r}, v{R+24+r}')
        a(f'v_add_f32 v{R+r}, v{R+r}, v{R+16+r}')
    X = T + 16
    for pr in range(2):
        a(cvt(T + 2, R + 2 * pr, R + 2 * pr + 1))
        a(cvt(T + 3, R + 4 + 2 * pr, R + 4 + 2 * pr + 1))
        a(f'v_lshlrev_b32 v{T+4}, 16, v{T+3}')
        a(f'v_and_b32 v{T+5}, 0xffff0000, v{T+3}')
        a(f'v_lshlrev_b32 v{T+6}, 16, v{X+pr}')
        a(f'v_and_b32 v{T+7}, 0xffff0000, v{X+pr}')
        a(f'v_add_f32 v{T+4}, v{T+4}, v{T+6}')
        a(f'v_add_f32 v{T+5}, v{T+5}, v{T+7}')
        a(cvt(T + 3, T + 4, T + 5))
        a(f'v_lshlrev_b32 v{T+4}, 16, v{T+3}')
        a(f'v_and_b32 v{T+5}, 0xffff0000, v{T+3}')
        a(f'v_lshlrev_b32 v{T+6}, 16, v{T+2}')
        a(f'v_and_b32 v{T+7}, 0xffff0000, v{T+2}')
        a(f'v_add_f32 v{T+4}, v{T+4}, v{T+6}')
        a(f'v_add_f32 v{T+5}, v{T+5}, v{T+7}')
        a(cvt(T + 8 + pr, T + 4, T + 5))
    a(f'buffer_store_dwordx2 {v(T+8,2)}, v{vOO}, {srd(S_OUT)}, s{sNO} offen')
    a.label(skip)
    a(f'''
    s_barrier
    s_add_u32 s{sSEG}, s{sSEG}, 7
    s_cmp_lt_u32 s{sSEG}, 64
    s_cbranch_scc1 W3_seg
    ''')
```

```python
from common import *
from asm import Q

sX, sR, sW = 52, 53, 54
sRB, sJ, sCB = 55, 56, 57
sT, sT2, sT3 = 58, 59, 60
sSPIN = 61
sNB = 62
S_NX = 64
sNO = 68
sNS = 69
sSEG = 70
sC = 71
sOB = 72
sPB = 73
sM = 74
SPIN_MAX = 0x400000


def v(i, n=1):
    return 'v%d' % i if n == 1 else 'v[%d:%d]' % (i, i + n - 1)


def ar(i, n=1):
    return 'a%d' % i if n == 1 else 'a[%d:%d]' % (i, i + n - 1)


def cvt(d, x, y):
    return f'v_cvt_pk_bf16_f32 v{d}, v{x}, v{y}'


def spin(a):
    a(f's_add_u32 s{sSPIN}, s{sSPIN}, 1')
    a(f's_cmp_gt_u32 s{sSPIN}, 0x{SPIN_MAX:x}')
    a('s_cbranch_scc1 W_fail')


vL16, vZ, vC, vG = 0, 1, 2, 3
vDA, vDB, vDN = 4, 5, 6
vTR = 8
vTMP = 10
vWF = 32
vACC = 128


def poll_dbg(a, word_expr_s, cond, tmpv):
    lab = a.newlabel('W_poll')
    ok = a.newlabel('W_pok')
    a.label(lab)
    a(f'buffer_load_dword v{tmpv}, v{vZ}, {srd(S_DBG)}, s{word_expr_s} offen sc1')
    a('s_waitcnt vmcnt(0)')
    a(f'v_readfirstlane_b32 s{sT2}, v{tmpv}')
    cond()
    a(f's_cbranch_scc1 {ok}')
    spin(a)
    a('s_sleep 4')
    a(f's_branch {lab}')
    a.label(ok)


def signal_add(a, off_s, val_s, op='add'):
    lab = a.newlabel('W_sig')
    a('s_waitcnt vmcnt(0)')
    a('s_barrier')
    a(f'''
    s_cmp_lg_u32 s{sW}, 0
    s_cbranch_scc1 {lab}
    v_mov_b32 v{vTMP}, s{val_s}
    s_mov_b64 exec, 1
    buffer_atomic_{op} v{vTMP}, v{vZ}, {srd(S_DBG)}, s{off_s} offen
    s_mov_b64 exec, -1
    {lab}:
    ''')


def emit_ln(a):
    WSr = srd(S_WS)
    dp = 'row_mask:0xf bank_mask:0xf'
    a(f'''
    s_lshl_b32 s{sT}, s{sX}, 5
    s_add_u32 s{sT}, s{sT}, s{sR}
    s_cmp_ge_u32 s{sT}, 128
    s_cbranch_scc1 W_noln
    s_lshl_b32 s{sT2}, s{sT}, 14
    s_lshl_b32 s{sT3}, s{sW}, 12
    s_add_u32 s{sT2}, s{sT2}, s{sT3}
    v_lshlrev_b32 v{vTMP}, 10, v{vG}
    v_lshl_add_u32 v{vTMP}, v{vC}, 4, v{vTMP}
    ''')
    X = vWF
    F = vACC
    for i in range(4):
        a(f'buffer_load_dwordx4 {v(X+4*i,4)}, v{vTMP}, {srd(S_X)}, s{sT2} offen offset:{256*i}')
    a('s_waitcnt vmcnt(0)')
    for i in range(16):
        a(f'v_lshlrev_b32 v{F+2*i}, 16, v{X+i}')
        a(f'v_and_b32 v{F+2*i+1}, 0xffff0000, v{X+i}')
    s_, q_, t_ = vTMP + 1, vTMP + 2, vTMP + 3
    a(f'v_add_f32 v{s_}, v{F}, v{F+1}')
    for i in range(2, 32):
        a(f'v_add_f32 v{s_}, v{s_}, v{F+i}')

    def rowsum(r):
        for sh in (1, 2, 4, 8):
            a(f'v_add_f32_dpp v{r}, v{r}, v{r} row_ror:{sh} {dp}')
    rowsum(s_)
    a(f'v_mul_f32 v{s_}, 0x{f32bits(1.0/512):x}, v{s_}')
    a(f'v_sub_f32 v{t_}, v{F}, v{s_}')
    a(f'v_mul_f32 v{q_}, v{t_}, v{t_}')
    for i in range(1, 32):
        a(f'v_sub_f32 v{t_}, v{F+i}, v{s_}')
        a(f'v_fmac_f32 v{q_}, v{t_}, v{t_}')
    rowsum(q_)
    a(f'v_mul_f32 v{q_}, 0x{f32bits(1.0/512):x}, v{q_}')

    def rnd(r):
        a(cvt(r, r, r))
        a(f'v_lshlrev_b32 v{r}, 16, v{r}')
    rnd(s_)
    rnd(q_)
    a(f'v_add_f32 v{q_}, 0x{f32bits(1e-5):x}, v{q_}')
    rnd(q_)
    a(f'v_sqrt_f32 v{q_}, v{q_}')
    rnd(q_)
    a(f'v_rcp_f32 v{t_}, v{q_}')
    a(f'v_fma_f32 v{vTMP+4}, -v{q_}, v{t_}, 1.0')
    a(f'v_fma_f32 v{t_}, v{vTMP+4}, v{t_}, v{t_}')
    for i in range(16):
        a(f'v_sub_f32 v{F+2*i}, v{F+2*i}, v{s_}')
        a(f'v_sub_f32 v{F+2*i+1}, v{F+2*i+1}, v{s_}')
        a(cvt(X + i, F + 2 * i, F + 2 * i + 1))
        a(f'v_lshlrev_b32 v{F+2*i}, 16, v{X+i}')
        a(f'v_and_b32 v{F+2*i+1}, 0xffff0000, v{X+i}')
        a(f'v_mul_f32 v{F+2*i}, v{F+2*i}, v{t_}')
        a(f'v_mul_f32 v{F+2*i+1}, v{F+2*i+1}, v{t_}')
        a(cvt(X + i, F + 2 * i, F + 2 * i + 1))
    a(f's_add_u32 s{sT2}, s{sT2}, {XN}')
    for i in range(4):
        a(f'buffer_store_dwordx4 {v(X+4*i,4)}, v{vTMP}, {WSr}, s{sT2} offen offset:{256*i} sc1')
    a(f'''
    s_lshr_b32 s{sT}, s{sT}, 4
    s_lshr_b32 s{sT2}, s{sT}, 2
    s_lshl_b32 s{sT2}, s{sT2}, 2
    s_add_u32 s{sT2}, s{sT2}, {D_LN*4}
    s_and_b32 s{sT}, s{sT}, 3
    s_lshl_b32 s{sT}, s{sT}, 3
    s_lshl_b32 s{sT}, 1, s{sT}
    ''')
    signal_add(a, sT2, sT)
    a.label('W_noln')


def set_next_block(a):
    l1, l2, l3, dn = (a.newlabel('W_nb') for _ in range(4))

    def cp(src):
        for i in range(4):
            a(f's_mov_b32 s{S_NX+i}, s{src+i}')
    a(f'''
    s_cmp_ge_u32 s{sNB}, 96
    s_cbranch_scc1 {l3}
    s_and_b32 s{sNO}, s{sNB}, 31
    s_lshl_b32 s{sNO}, s{sNO}, 8
    s_mov_b32 s{sNS}, {16*8192}
    v_mov_b32 v{vDN}, v{vDA}
    s_cmp_ge_u32 s{sNB}, 64
    s_cbranch_scc1 {l2}
    s_cmp_ge_u32 s{sNB}, 32
    s_cbranch_scc1 {l1}
    ''')
    cp(S_WK)
    a(f's_branch {dn}')
    a.label(l1)
    cp(S_WV)
    a(f's_branch {dn}')
    a.label(l2)
    cp(S_WQ)
    a(f's_branch {dn}')
    a.label(l3)
    a(f'''
    s_sub_u32 s{sNO}, s{sNB}, 96
    s_cmp_ge_u32 s{sNB}, 110
    s_cselect_b32 s{sNO}, 0, s{sNO}
    s_lshl_b32 s{sNO}, s{sNO}, 8
    s_mov_b32 s{sNS}, {16*3584}
    v_mov_b32 v{vDN}, v{vDB}
    ''')
    cp(S_W1)
    a.label(dn)


def dma_chunk(c):
    out = []
    for j in range(4):
        out.append([f's_add_u32 m0, s{sOB}, {c*16384 + j*4096}',
                    f's_mul_i32 s{sT3}, s{sNS}, {4*c + j}',
                    f's_add_u32 s{sT3}, s{sT3}, s{sNO}',
                    f'buffer_load_dwordx4 v{vDN}, {srd(S_NX)}, s{sT3} offen lds'])
    return out


def w_reads(ks, buf):
    out = []
    for ct in range(8):
        for hf in range(2):
            off = (32 * ks + 4 * hf) * 256
            base = vTR + 2 * ct + (1 if off >= 65536 else 0)
            out.append((ct, f'ds_read_b64_tr_b16 {v(vWF+32*buf+4*ct+2*hf,2)}, v{TRB(ct, off >= 65536)} offset:{off & 0xffff}'))
    return out


def TRB(ct, hi):
    return 96 + 2 * ct + (1 if hi else 0)


def XF(tt, ks):
    return ar((tt * 16 + ks) * 4, 4)


def ACC(tt, ct):
    return vACC + (tt * 8 + ct) * 4


def emit_signal(a):
    lab = a.newlabel('W_nosig')
    a(f'''
    s_cmp_lg_u32 s{sW}, 0
    s_cbranch_scc1 {lab}
    s_cmp_ge_u32 s{sPB}, 110
    s_cbranch_scc1 {lab}
    s_mov_b64 exec, 1
    s_lshl_b32 s{sT}, s{sRB}, 2
    s_add_u32 s{sT}, s{sT}, {D_QH*4}
    v_mov_b32 v{vTMP}, 1
    buffer_atomic_add v{vTMP}, v{vZ}, {srd(S_DBG)}, s{sT} offen
    s_and_b32 s{sT2}, s{sPB}, 31
    s_lshl_b32 s{sT2}, 1, s{sT2}
    s_cmp_lt_u32 s{sPB}, 64
    s_cselect_b32 s{sT2}, s{sT2}, 0
    s_lshr_b32 s{sT3}, s{sPB}, 5
    s_and_b32 s{sT3}, s{sT3}, 1
    s_lshl_b32 s{sT}, s{sRB}, 1
    s_add_u32 s{sT}, s{sT}, s{sT3}
    s_lshl_b32 s{sT}, s{sT}, 2
    s_add_u32 s{sT}, s{sT}, {D_KV*4}
    v_mov_b32 v{vTMP+1}, s{sT2}
    buffer_atomic_or v{vTMP+1}, v{vZ}, {srd(S_DBG)}, s{sT} offen
    s_mov_b64 exec, -1
    s_nop 3
    {lab}:
    ''')


def emit_block(a, kind):
    WSr = srd(S_WS)
    lq = Q(a, 'lgkmcnt', 15)
    for ks in range(16):
        buf = ks & 1
        c = ks >> 1
        side = []
        if ks & 1:
            if ks == 1:
                a('s_waitcnt vmcnt(40)')
            elif ks == 3:
                a('s_waitcnt vmcnt(4)')
            elif ks == 15:
                a('s_waitcnt vmcnt(24)')
            a('s_barrier')
            if ks == 3:
                emit_signal(a)
            side = dma_chunk(c)
        rd = [r for _, r in w_reads((ks + 1) & 15, buf ^ 1)]
        n = 0
        for tt in range(4):
            for ct in range(8):
                W = v(vWF + 32 * buf + 4 * ct, 4)
                D = v(ACC(tt, ct), 4)
                C = '0' if ks == 0 else D
                if kind == 'v':
                    a(f'v_mfma_f32_16x16x32_bf16 {D}, {XF(tt,ks)}, {W}, {C}')
                else:
                    a(f'v_mfma_f32_16x16x32_bf16 {D}, {W}, {XF(tt,ks)}, {C}')
                n += 1
                if n <= 16:
                    a(rd[n - 1])
                elif side and n % 4 == 1:
                    for s_ in side.pop(0):
                        a(s_)
        a('s_waitcnt lgkmcnt(0)')
    P = vTMP + 2
    if kind in ('k', 'v'):
        a(f'''
        s_lshl_b32 s{sT}, s{sRB}, 3
        s_lshl_b32 s{sT2}, s{sW}, 1
        s_add_u32 s{sT}, s{sT}, s{sT2}
        s_lshl_b32 s{sT}, s{sT}, 18
        s_and_b32 s{sT2}, s{sCB}, 31
        s_lshl_b32 s{sT2}, s{sT2}, 13
        s_add_u32 s{sT}, s{sT}, s{sT2}
        s_mov_b32 s{sT3}, {KX if kind == 'k' else VX}
        s_cmp_ge_u32 s{sCB}, 64
        s_cselect_b32 s{sT2}, {QX}, s{sT3}
        s_add_u32 s{sT}, s{sT}, s{sT2}
        ''')
        segstride = 0x40000
    else:
        a(f'''
        s_lshl_b32 s{sT}, s{sRB}, 3
        s_lshl_b32 s{sT2}, s{sW}, 1
        s_add_u32 s{sT}, s{sT}, s{sT2}
        s_mul_i32 s{sT}, s{sT}, {ZS}
        s_sub_u32 s{sT2}, s{sCB}, 64
        s_lshl_b32 s{sT2}, s{sT2}, 13
        s_add_u32 s{sT}, s{sT}, s{sT2}
        s_add_u32 s{sT}, s{sT}, {ZX}
        ''')
        segstride = ZS
    k = 0
    for sg in range(2):
        for wp in range(4):
            for t in range(2):
                if kind == 'v':
                    srcs = [ACC(2 * sg, 2 * wp + t), ACC(2 * sg + 1, 2 * wp + t)]
                else:
                    srcs = [ACC(2 * sg + t, 2 * wp), ACC(2 * sg + t, 2 * wp + 1)]
                if kind == 'h':
                    for sreg in srcs:
                        for r in range(4):
                            x = sreg + r
                            t0 = vTMP + 10 + (r & 1)
                            a(cvt(x, x, x))
                            a(f'v_lshlrev_b32 v{x}, 16, v{x}')
                            a(f'v_mul_f32 v{t0}, 0x{f32bits(-math.log2(math.e)):x}, v{x}')
                            a(f'v_exp_f32 v{t0}, v{t0}')
                            a(f'v_add_f32 v{t0}, 1.0, v{t0}')
                            a(f'v_rcp_f32 v{t0}, v{t0}')
                            a(f'v_mul_f32 v{x}, v{x}, v{t0}')
                p = P + 4 * (k & 1)
                a(cvt(p, srcs[0], srcs[0] + 1))
                a(cvt(p + 1, srcs[0] + 2, srcs[0] + 3))
                a(cvt(p + 2, srcs[1], srcs[1] + 1))
                a(cvt(p + 3, srcs[1] + 2, srcs[1] + 3))
                off = wp * 2048 + t * 1024
                if off >= 4096:
                    a(f's_add_u32 s{sT2}, s{sT}, 4096')
                    a(f'buffer_store_dwordx4 {v(p,4)}, v{vL16}, {WSr}, s{sT2} offen offset:{off-4096} sc1')
                else:
                    a(f'buffer_store_dwordx4 {v(p,4)}, v{vL16}, {WSr}, s{sT} offen offset:{off} sc1')
                k += 1
        if sg == 0:
            a(f's_add_u32 s{sT}, s{sT}, {segstride}')


def emit_gemm1(a, opts):
    WSr = srd(S_WS)
    y, z, f3 = vTMP, vTMP + 1, vTMP + 2
    a(f'''
    s_lshr_b32 s{sT}, s{sW}, 1
    s_lshl_b32 s{sT}, s{sT}, 2
    v_or_b32 v{y}, s{sT}, v{vG}
    v_lshlrev_b32 v{y}, 1, v{y}
    v_xor_b32 v{y}, v{y}, v{vC}
    v_lshlrev_b32 v{y}, 4, v{y}
    s_lshl_b32 s{sT}, s{sW}, 2
    v_add_u32 v{z}, s{sT}, v{vG}
    v_lshl_add_u32 v{vDA}, v{z}, 13, v{y}
    v_mul_u32_u24 v{z}, 3584, v{z}
    v_add_u32 v{vDB}, v{z}, v{y}
    s_lshl_b32 s{sOB}, s{sW}, 10
    v_lshrrev_b32 v{y}, 2, v{vC}
    v_and_b32 v{z}, 1, v{vG}
    v_lshl_add_u32 v{f3}, v{z}, 2, v{y}
    v_lshl_add_u32 v{y}, v{vG}, 3, v{y}
    v_lshlrev_b32 v{y}, 8, v{y}
    v_and_b32 v{z}, 3, v{vC}
    v_lshl_add_u32 v{y}, v{z}, 3, v{y}
    ''')
    for ct in range(8):
        a(f'v_xor_b32 v{z}, {ct}, v{f3}')
        a(f'v_lshl_add_u32 v{TRB(ct,0)}, v{z}, 5, v{y}')
        a(f'v_add_u32 v{TRB(ct,1)}, 0x10000, v{TRB(ct,0)}')
    a(f's_mov_b32 s{sCB}, s{sJ}')
    a(f's_mov_b32 s{sNB}, s{sJ}')
    set_next_block(a)
    a(f's_mov_b32 s{sPB}, 0xffff')
    for c in range(8):
        for grp in dma_chunk(c):
            for s_ in grp:
                a(s_)
    a(f'''
    s_lshr_b32 s{sT}, s{sRB}, 2
    s_lshl_b32 s{sT}, s{sT}, 2
    s_add_u32 s{sT}, s{sT}, {D_LN*4}
    ''')

    def cond():
        a(f'''
        s_and_b32 s{sT3}, s{sRB}, 3
        s_lshl_b32 s{sT3}, s{sT3}, 3
        s_lshr_b32 s{sT2}, s{sT2}, s{sT3}
        s_and_b32 s{sT2}, s{sT2}, 0xff
        s_cmp_ge_u32 s{sT2}, 16
        ''')
    poll_dbg(a, sT, cond, vTMP)
    a(f'''
    s_lshl_b32 s{sT}, s{sRB}, 18
    s_lshl_b32 s{sT2}, s{sW}, 16
    s_add_u32 s{sT}, s{sT}, s{sT2}
    s_add_u32 s{sT}, s{sT}, {XN}
    v_lshlrev_b32 v{y}, 10, v{vC}
    v_lshl_add_u32 v{y}, v{vG}, 4, v{y}
    ''')
    for tt in range(4):
        for ks in range(16):
            a(f'buffer_load_dwordx4 {XF(tt,ks)}, v{y}, {WSr}, s{sT} offen offset:{ks*64} sc1')
            if (tt * 16 + ks) % 32 == 31:
                a('s_waitcnt vmcnt(16)')
        a(f's_add_u32 s{sT}, s{sT}, 16384')
    a('s_waitcnt vmcnt(0)')
    a('s_barrier')
    for _, r in w_reads(0, 0):
        a(r)
    a('s_waitcnt lgkmcnt(0)')
    a.label('W_blk')
    a(f's_add_u32 s{sNB}, s{sCB}, 28')
    set_next_block(a)
    a(f'''
    s_cmp_ge_u32 s{sCB}, 96
    s_cbranch_scc1 W_blk_h
    s_sub_u32 s{sT}, s{sCB}, 32
    s_cmp_lt_u32 s{sT}, 32
    s_cbranch_scc1 W_blk_v
    ''')
    emit_block(a, 'k')
    a('s_branch W_blk_end')
    a.label('W_blk_v')
    emit_block(a, 'v')
    a('s_branch W_blk_end')
    a.label('W_blk_h')
    emit_block(a, 'h')
    a.label('W_blk_end')
    a(f'''
    s_mov_b32 s{sPB}, s{sCB}
    s_add_u32 s{sCB}, s{sCB}, 28
    s_cmp_lt_u32 s{sCB}, 110
    s_cbranch_scc1 W_blk
    s_waitcnt vmcnt(0) lgkmcnt(0)
    s_barrier
    ''')
    emit_signal(a)


def emit_w_role(a, opts):
    a('; ================= worker role =================')
    a(f'''
    s_sub_u32 s{sX}, s90, 1
    s_mov_b32 s{sR}, s91
    s_mov_b32 s{sSPIN}, 0
    v_lshrrev_b32 v{vTMP}, 6, v0
    s_nop 0
    v_readfirstlane_b32 s{sW}, v{vTMP}
    v_and_b32 v{vC}, 15, v0
    v_bfe_u32 v{vG}, v0, 4, 2
    v_and_b32 v{vTMP}, 63, v0
    v_lshlrev_b32 v{vL16}, 4, v{vTMP}
    v_mov_b32 v{vZ}, 0
    s_and_b32 s{sRB}, s{sR}, 7
    s_lshr_b32 s{sJ}, s{sR}, 3
    s_lshl_b32 s{sT}, s{sX}, 2
    s_add_u32 s{sJ}, s{sJ}, s{sT}
    ''')
    emit_ln(a)
    emit_gemm1(a, opts)
    if not opts.get('no_p3'):
        import wphase3
        wphase3.emit_phase3(a, opts)
    a('s_endpgm')
    a.label('W_fail')
    a(f'''
    v_mov_b32 v{vTMP}, 0x100
    s_mov_b32 s{sT}, {D_ERR*4}
    s_mov_b64 exec, 1
    buffer_atomic_add v{vTMP}, v{vZ}, {srd(S_DBG)}, s{sT} offen
    s_waitcnt vmcnt(0)
    s_endpgm
    ''')
```

```python
import sys
sys.path.insert(0, 'gen')
from asm import Asm
from common import *
import rrole4 as rrole

NAME = 'parallel_sum__memory_aug_recurrent_mem_tr__dense_activation_silu__prompt'
HEADER = open('cdna_kernels/%s.s.ref' % NAME).read().split('; Override launch')[0]


def prologue(a):
    a('''
    s_load_dwordx16 s[64:79], s[0:1], 0
    s_load_dwordx8 s[80:87], s[0:1], 64
    s_load_dwordx2 s[88:89], s[0:1], 96
    s_getreg_b32 s90, hwreg(HW_REG_XCC_ID)
    s_and_b32 s90, s90, 7
    s_waitcnt lgkmcnt(0)
    ''')
    tab = [(S_X, 64, 2097152), (S_M0, 66, 8192), (S_WQ, 68, 4194304), (S_WK, 70, 4194304), (S_WV, 72, 4194304),
           (S_WO, 74, 4194304), (S_W1, 80, 1835008), (S_W2, 82, 1835008), (S_OUT, 84, 2097152), (S_DBG, 86, 256),
           (S_WS, 88, WS_BYTES)]
    for d, p, n in tab:
        a(f's_mov_b32 s{d}, s{p}')
        a(f's_and_b32 s{d+1}, s{p+1}, 0xffff')
        a(f's_mov_b32 s{d+2}, {n}')
        a(f's_mov_b32 s{d+3}, 0x20000')
    a(f'''
    s_mov_b32 s{rrole.sXCC}, s90
    v_cmp_eq_u32 vcc, 0, v0
    s_and_saveexec_b64 s[92:93], vcc
    s_cbranch_execz L_role_skip
    s_lshl_b32 s91, s90, 2
    v_mov_b32 v1, 1
    v_mov_b32 v2, s91
    buffer_atomic_add v1, v2, {srd(S_DBG)}, 0 offen sc0
    s_waitcnt vmcnt(0)
    v_mov_b32 v2, 0
    ds_write_b32 v2, v1
    s_waitcnt lgkmcnt(0)
    L_role_skip:
    s_mov_b64 exec, s[92:93]
    s_barrier
    v_mov_b32 v2, 0
    ds_read_b32 v1, v2
    s_waitcnt lgkmcnt(0)
    v_readfirstlane_b32 s91, v1
    s_barrier
    ''')


def add_trace(a, opts):
    from asm import Ins
    start, step, n = opts['trace']
    items = a.items
    i0 = items.index(start + ':')
    out = items[:i0 + 1]
    cnt = 0
    m = 0
    names = []
    for it in items[i0 + 1:]:
        if m < n and not isinstance(it, str):
            if cnt % step == 0:
                out.append(Ins(f's_memtime s[{16+2*m}:{17+2*m}]'))
                names.append(it.text[:60])
                m += 1
            cnt += 1
        out.append(it)
        if it == 'R_done_f:':
            out.append(Ins('s_waitcnt lgkmcnt(0)'))
            out.append(Ins(f's_lshl_b32 s63, s52, 9'))
            out.append(Ins(f's_lshl_b32 s64, s53, 7'))
            out.append(Ins(f's_add_u32 s63, s63, s64'))
            out.append(Ins(f's_add_u32 s63, s63, {STAMP + 0x4000}'))
            for j in range(n):
                out.append(Ins(f'v_mov_b32 v13, s{16+2*j}'))
                out.append(Ins(f'buffer_store_dword v13, v17, s[8:11], s63 offen offset:{4*j}'))
    a.items = out
    import json
    json.dump(names, open(sys.argv[1].replace('.s', '.json'), 'w'))


def build(opts):
    a = Asm()
    prologue(a)
    a(f'''
    s_cmp_ge_u32 s91, 32
    s_cbranch_scc1 L_exit
    s_cmp_lg_u32 s90, 0
    s_cbranch_scc1 L_worker
    s_mov_b32 s{rrole.sH}, s91
    ''')
    if opts.get('no_r'):
        a('s_endpgm')
    else:
        rrole.emit_r_role(a, opts)
    a.label('L_worker')
    if opts.get('workers'):
        import wrole
        wrole.emit_w_role(a, opts)
    a.label('L_exit')
    a('s_endpgm')
    if opts.get('trace'):
        add_trace(a, opts)
    body = a.render()
    txt = HEADER + '; @launch grid=(256,1,1) block=(256,1,1) lds=163840\n'
    txt += f'''.amdgcn_target "amdgcn-amd-amdhsa--gfx950"
.text
.globl {NAME}_kernel
.p2align 8
.type {NAME}_kernel,@function
{NAME}_kernel:
'''
    txt += body
    txt += f'''.section .rodata,"a"
.p2align 6
.amdhsa_kernel {NAME}_kernel
  .amdhsa_next_free_vgpr 512
  .amdhsa_next_free_sgpr 102
  .amdhsa_accum_offset 256
  .amdhsa_group_segment_fixed_size 0
  .amdhsa_kernarg_size 104
  .amdhsa_user_sgpr_count 2
  .amdhsa_user_sgpr_kernarg_segment_ptr 1
  .amdhsa_system_sgpr_workgroup_id_x 1
.end_amdhsa_kernel
'''
    return txt, a


if __name__ == '__main__':
    import json
    opts = json.loads(sys.argv[2]) if len(sys.argv) > 2 else {}
    txt, a = build(opts)
    open(sys.argv[1], 'w').write(txt)
    print('written', sys.argv[1], 'lines', txt.count('\n'), 'auto nops', a.auto_nops)
```

```python
import math

WS_BYTES = 268435456
PART = 0x0000000
MEM = 0x0080000
PROG = 0x0090000
STAMP = 0x00A0000
KVM_KT = 0x0100000
KVM_VP = 0x0900000
KX = 0x1000000
VX = 0x2000000
QX = 0x3000000
OX = 0x4000000
HX = 0x5000000

S_WS, S_DBG, S_WQ, S_WK, S_WV, S_WO, S_M0, S_X, S_W1, S_W2, S_OUT = 8, 12, 16, 20, 24, 28, 32, 36, 40, 44, 48


def srd(b):
    return 's[%d:%d]' % (b, b + 3)


D_XCD = 0
D_RINIT = 8
D_ERR = 9
D_KV = 16

SCALE_LOG2E = (128 ** -0.5) * math.log2(math.e)


def f32bits(x):
    import struct
    return struct.unpack('<I', struct.pack('<f', x))[0]

XN = 0x0A00000
ZX = 0x4000000
ZS = 184 * 2048
D_LN = 10
D_QH = 32
D_OC = 40


def tl(a, opts, slot, zero_v, tmp_v, role_expr):
    if not opts.get('tl'):
        return
    a('s_memrealtime s[96:97]')
    a('s_waitcnt lgkmcnt(0)')
    a(f'v_mov_b32 v{tmp_v}, s96')
    a(f's_lshl_b32 s99, s95, 6')
    a(f's_add_u32 s99, s99, {STAMP + 0x8000 + slot*4}')
    a(f'buffer_store_dword v{tmp_v}, v{zero_v}, s[8:11], s99 offen')
```

```python
from common import *
from asm import Q

L_MEM0, L_EX, L_WO = 0, 16384, 32768
L_ZERO = L_EX + 1024
L_KVB = L_WO
SENT = 0xFFBFFFBF

sH, sW, sS, sSPIN = 52, 53, 54, 55
sPLD, sMCW, sMNX, sMCU, sMTH = 57, 58, 59, 60, 61
sKX, sT, sT2, sKVM = 62, 63, 64, 65
sXCC = 66
sM0 = 67
sMB = 68
sCOL = 70
sC = 78
sST = 80
sFLG = 84
sSENT, sBIG, sPRG, sPPO = 86, 87, 88, 89
sPS = 2
PST_S = [2, 3, 4, 5, 6, 7, 56, 100]
sMPO = 101
sKVV = 6
sKVL = 1

vL16, vIDX, vMRD, vEXW, vOR, vPST, vPLD, vMST, vWOB, vRV = range(10)
vRL = 10
vWOH, vX = 12, 13
vPM = 14
vSEL = 16
vONE = 20
vP = 24
vL = 28
vAW = 32
vKV = 48
vT = 52
vQ, vK, vV = 64, 72, 80
vKX, vVX = 88, 96
vWS = 104
vWV = 128

SPIN_MAX = 0x200000


def v(i, n=1):
    return 'v%d' % i if n == 1 else 'v[%d:%d]' % (i, i + n - 1)


def AW(k):
    return vAW + 4 * (k % 4)


def WQ(u, k):
    b = (u * 8 + k) * 8
    return 'a[%d:%d]' % (b, b + 7)


def WK(u, k):
    b = 128 + (u * 8 + k) * 8
    return 'a[%d:%d]' % (b, b + 7)


def WV(u, k):
    return v(vWV + (u * 8 + k) * 8, 8)


def mpos(k):
    return k


def smf(d, a, b):
    return 'v_smfmac_f32_16x16x64_bf16 %s, %s, %s, v%d' % (v(d, 4), v(a, 4), b, vIDX)


def m16(d, a, b, c=None):
    return 'v_mfma_f32_16x16x16_bf16 %s, %s, %s, %s' % (v(d, 4), v(a, 2), v(b, 2), '0' if c is None else v(c, 4))


def m32(d, a, b, c=None):
    return 'v_mfma_f32_16x16x32_bf16 %s, %s, %s, %s' % (v(d, 4), v(a, 4), v(b, 4), '0' if c is None else v(c, 4))


def cvt(d, x, y):
    return f'v_cvt_pk_bf16_f32 v{d}, v{x}, v{y}'


def pka(d, x, y):
    return f'v_pk_add_f32 {v(d,2)}, {v(x,2)}, {v(y,2)}'


def spin(a, fail):
    a('s_add_u32 s%d, s%d, 1' % (sSPIN, sSPIN))
    a('s_cmp_gt_u32 s%d, 0x%x' % (sSPIN, SPIN_MAX))
    a('s_cbranch_scc1 %s' % fail)


def stamp(a, opts, i):
    if opts.get('abs'):
        lb = a.newlabel('R_ab')
        a(f's_cmp_lg_u32 s{sS}, {41 if i == 5 else 40}')
        a(f's_cbranch_scc1 {lb}')
        a(f's_memrealtime s[{16+2*i}:{17+2*i}]')
        a.label(lb)
        return
    if not opts.get('fine'):
        return
    a(f'''
    s_memtime s[{sST+2}:{sST+3}]
    s_waitcnt lgkmcnt(0)
    s_sub_u32 s{sFLG}, s{sST+2}, s{sFLG+1}
    s_add_u32 s{90+i}, s{90+i}, s{sFLG}
    s_mov_b32 s{sFLG+1}, s{sST+2}
    ''')


def emit_r_init(a, opts):
    a('; ================= R role init =================')
    t = 104
    a(f'''
    v_lshrrev_b32 v{t}, 6, v0
    s_nop 0
    v_readfirstlane_b32 s{sW}, v{t}
    v_and_b32 v{t+1}, 63, v0
    v_and_b32 v{t+2}, 15, v0
    v_bfe_u32 v{t+3}, v0, 4, 2
    v_lshlrev_b32 v{vL16}, 4, v{t+1}
    ''')
    c, g = t + 2, t + 3
    x, y, z = t + 4, t + 5, t + 6
    a(f'''
    v_bfe_u32 v{x}, v{c}, 1, 1          ; b
    v_mul_u32_u24 v{y}, 0xAAAA, v{x}
    v_add_u32 v{vIDX}, 0x4444, v{y}
    ; MRD = g*256 + b*128 + m*16 , m = 2*(c>>2) + (c&1)
    v_lshlrev_b32 v{y}, 8, v{g}
    v_lshl_add_u32 v{y}, v{x}, 7, v{y}
    v_lshrrev_b32 v{z}, 2, v{c}
    v_lshl_add_u32 v{y}, v{z}, 5, v{y}
    v_and_b32 v{z}, 1, v{c}
    v_lshl_add_u32 v{vMRD}, v{z}, 4, v{y}
    s_lshl_b32 s{sT}, s{sW}, 12
    s_add_u32 s{sT}, s{sT}, {L_EX}
    v_add_u32 v{vEXW}, s{sT}, v{vL16}
    v_xor_b32 v{vOR}, 0x1000, v{vEXW}
    s_lshl_b32 s{sT}, s{sW}, 15
    s_add_u32 s{sT}, s{sT}, {L_WO}
    v_add_u32 v{vWOB}, s{sT}, v{vL16}
    ; PST = (8w + 2g + (c>>3))*2048 + h*64 + (c&7)*8
    s_lshl_b32 s{sT}, s{sH}, 6
    s_lshl_b32 s{sT2}, s{sW}, 14
    s_add_u32 s{sT}, s{sT}, s{sT2}
    v_lshrrev_b32 v{y}, 3, v{c}
    v_lshl_add_u32 v{y}, v{g}, 1, v{y}
    v_lshlrev_b32 v{y}, 11, v{y}
    v_and_b32 v{z}, 7, v{c}
    v_lshl_add_u32 v{y}, v{z}, 3, v{y}
    v_add_u32 v{vPST}, s{sT}, v{y}
    s_lshl_b32 s{sT}, s{sH}, 11
    s_lshl_b32 s{sT2}, s{sW}, 16
    s_add_u32 s{sT}, s{sT}, s{sT2}
    v_add_u32 v{vPLD}, s{sT}, v{vL16}
    ''')
    m0o = t + 7
    a(f'''
    s_lshl_b32 s{sT}, s{sW}, 11
    s_lshr_b32 s{sT2}, s{sH}, 3
    s_lshl_b32 s{sT2}, s{sT2}, 8
    s_add_u32 s{sT}, s{sT}, s{sT2}
    s_and_b32 s{sT2}, s{sH}, 1
    s_lshl_b32 s{sT2}, s{sT2}, 7
    s_add_u32 s{sT}, s{sT}, s{sT2}
    s_and_b32 s{sT2}, s{sH}, 6
    v_bfe_u32 v{z}, v{c}, 2, 1
    v_add_u32 v{m0o}, s{sT2}, v{z}             ; m
    v_lshlrev_b32 v{y}, 4, v{m0o}
    v_lshl_add_u32 v{y}, v{x}, 10, v{y}        ; + t*1024   (x = (c>>1)&1)
    v_lshl_add_u32 v{y}, v{g}, 2, v{y}
    v_add_u32 v{y}, s{sT}, v{y}
    v_and_b32 v{z}, 9, v{c}
    v_cmp_eq_u32 vcc, 0, v{z}
    v_mov_b32 v{z}, 0x40000000
    v_cndmask_b32 v{vMST}, v{z}, v{y}, vcc
    ; mem0 source: m*1024 + (64*kappa + 16*(h>>3) + 8*(h&1) + 2q)*2
    s_lshl_b32 s{sT}, s{sW}, 8
    s_lshr_b32 s{sT2}, s{sH}, 3
    s_lshl_b32 s{sT2}, s{sT2}, 5
    s_add_u32 s{sT}, s{sT}, s{sT2}
    s_and_b32 s{sT2}, s{sH}, 1
    s_lshl_b32 s{sT2}, s{sT2}, 4
    s_add_u32 s{sT}, s{sT}, s{sT2}
    v_lshlrev_b32 v{m0o}, 10, v{m0o}
    v_lshl_add_u32 v{m0o}, v{x}, 7, v{m0o}
    v_lshl_add_u32 v{m0o}, v{g}, 2, v{m0o}
    v_add_u32 v{m0o}, s{sT}, v{m0o}
    buffer_load_dword v{t+8}, v{m0o}, {srd(S_M0)}, 0 offen
    ''')
    a(f'''
    v_bfe_u32 v{y}, v{c}, 2, 1
    v_lshlrev_b32 v{y}, 4, v{y}
    v_mov_b32 v{z}, 0x3F80
    v_lshlrev_b32 v{vRV}, v{y}, v{z}
    ; SEL: S = (g == c>>2) ? ((c&1) ? 0x3F800000 : 0x3F80) : 0
    v_and_b32 v{y}, 1, v{c}
    v_lshlrev_b32 v{y}, 4, v{y}
    v_lshlrev_b32 v{y}, v{y}, v{z}
    v_lshrrev_b32 v{z}, 2, v{c}
    v_cmp_eq_u32 vcc, v{z}, v{g}
    v_mov_b32 v{vSEL+1}, 0
    v_mov_b32 v{vSEL+2}, 0
    v_cndmask_b32 v{vSEL}, 0, v{y}, vcc
    v_mov_b32 v{vSEL+3}, v{vSEL}
    v_mov_b32 v{vONE}, 0x3F803F80
    v_mov_b32 v{vONE+1}, 0x3F803F80
    v_mov_b32 v{vONE+2}, 0x3F803F80
    v_mov_b32 v{vONE+3}, 0x3F803F80
    v_mov_b32 v{vPM}, 0
    v_mov_b32 v{vPM+1}, 0
    v_mov_b32 v{vKV}, 0
    v_mov_b32 v{vKV+1}, 0
    v_mov_b32 v{vKV+2}, 0
    v_mov_b32 v{vKV+3}, 0
    s_mov_b32 s{sMB}, 0xCCCCCCCC
    s_mov_b32 s{sMB+1}, 0xCCCCCCCC
    s_mov_b32 s{sC}, 0x{f32bits(SCALE_LOG2E):x}
    s_mov_b32 s{sC+1}, 0x{f32bits(SCALE_LOG2E):x}
    s_mov_b32 s{sSENT}, 0x{SENT:x}
    s_mov_b32 s{sBIG}, 0x{f32bits(2.0**opts.get('biglog', 60)):x}
    ''')
    for k in range(4):
        m = 0x11111111 << [0, 2, 1, 3][k]
        a(f's_mov_b32 s{sCOL+2*k}, 0x{m:x}')
        a(f's_mov_b32 s{sCOL+2*k+1}, 0x{m:x}')
    r0, r1, f3, rowb = t + 9, t + 10, t + 11, t + 12
    wv = vT
    wo = vT + 4
    a(f'''
    v_bfe_u32 v{r0}, v{c}, 2, 1
    v_bfe_u32 v{r1}, v{c}, 3, 1
    v_lshrrev_b32 v{y}, 1, v{g}
    v_lshlrev_b32 v{rowb}, 4, v{y}
    v_and_b32 v{y}, 1, v{g}
    v_lshl_add_u32 v{rowb}, v{y}, 2, v{rowb}
    v_add_u32 v{rowb}, v{rowb}, v{r0}
    v_lshl_add_u32 v{rowb}, v{r1}, 3, v{rowb}
    v_lshl_add_u32 v{f3}, v{y}, 1, v{r0}
    v_lshl_add_u32 v{f3}, v{r1}, 2, v{f3}
    s_lshl_b32 s{sT}, s{sW}, 1
    v_xor_b32 v{y}, s{sT}, v{f3}
    v_lshlrev_b32 v{y}, 5, v{y}
    v_lshl_add_u32 v{y}, v{rowb}, 8, v{y}
    v_and_b32 v{z}, 3, v{c}
    v_lshl_add_u32 v{y}, v{z}, 3, v{y}
    v_add_u32 v{wv}, {L_WO}, v{y}
    v_xor_b32 v{wv+1}, 32, v{wv}
    v_add_u32 v{wv+2}, 0x10000, v{wv}
    v_add_u32 v{wv+3}, 0x10000, v{wv+1}
    v_and_b32 v{y}, 1, v{g}
    v_lshlrev_b32 v{rowb}, 4, v{y}
    v_lshrrev_b32 v{y}, 1, v{g}
    v_lshl_add_u32 v{rowb}, v{y}, 2, v{rowb}
    v_add_u32 v{rowb}, v{rowb}, v{r0}
    v_xor_b32 v{y}, s{sW}, v{f3}
    v_lshlrev_b32 v{y}, 5, v{y}
    v_lshl_add_u32 v{y}, v{rowb}, 8, v{y}
    v_lshl_add_u32 v{y}, v{z}, 3, v{y}
    v_add_u32 v{wo}, {L_WO}, v{y}
    v_xor_b32 v{wo+1}, 128, v{wo}         ; odd w'
    v_add_u32 v{wo+2}, 0x10000, v{wo}
    v_add_u32 v{wo+3}, 0x10000, v{wo+1}
    ''')
    woj = 96
    for j in range(4):
        a(f'''
        s_xor_b32 s{sT}, s{sW}, {j}
        s_and_b32 s{sT2}, s{sT}, 1
        s_lshl_b32 s{sT2}, s{sT2}, 7
        v_xor_b32 v{woj+j}, s{sT2}, v{wo}
        s_lshl_b32 s{sT}, s{sT}, 13
        v_add_u32 v{woj+j}, s{sT}, v{woj+j}
        v_add_u32 v{woj+4+j}, 0x10000, v{woj+j}
        ''')
    dq, dw = vT + 8, vT + 9
    a(f'''
    v_and_b32 v{y}, 1, v{g}
    s_lshl_b32 s{sT}, s{sW}, 1
    v_or_b32 v{y}, s{sT}, v{y}
    v_lshlrev_b32 v{y}, 1, v{y}
    v_xor_b32 v{y}, v{y}, v{c}
    v_lshlrev_b32 v{y}, 4, v{y}
    s_lshl_b32 s{sT}, s{sW}, 15
    s_lshl_b32 s{sT2}, s{sH}, 8
    s_add_u32 s{sT}, s{sT}, s{sT2}
    v_lshl_add_u32 v{dq}, v{g}, 13, v{y}
    v_add_u32 v{dq}, s{sT}, v{dq}
    s_lshl_b32 s{sT}, s{sW}, 14
    s_lshl_b32 s{sT2}, s{sH}, 17
    s_add_u32 s{sT}, s{sT}, s{sT2}
    v_lshl_add_u32 v{dw}, v{g}, 10, v{y}
    v_add_u32 v{dw}, s{sT}, v{dw}
    s_lshl_b32 s{sT}, s{sW}, 11
    s_add_u32 s{sT}, s{sT}, {L_WO}
    v_add_u32 v{vWOB}, s{sT}, v{vL16}
    v_add_u32 v{vWOH}, 0x10000, v{vWOB}
    ''')
    nt = ' nt' if opts.get('nt') else ''

    def issue(cn):
        slot = cn & 3
        kind = (0, 1, 3, 2)[cn >> 2]
        for j in range(8):
            if kind != 3:
                so = ((cn & 3) * 128 + 16 * j) * 8192
                a(f's_lshl_b32 s{sT}, s{sW}, 10')
                a(f's_add_u32 m0, s{sT}, {L_WO + slot * 32768 + j * 4096}')
                a(f's_mov_b32 s{sT2}, {so}')
                sr = (S_WQ, S_WK, S_WV)[kind]
                a(f'buffer_load_dwordx4 v{dq}, {srd(sr)}, s{sT2} offen{nt} lds')
            else:
                jh, jl = j >> 2, j & 3
                so = (64 * jh + 4 * jl) * 1024 + (cn & 3) * 256
                a(f's_lshl_b32 s{sT}, s{sW}, 12')
                a(f's_add_u32 m0, s{sT}, {L_WO + slot * 32768 + (64 * jh + 4 * jl) * 256}')
                a(f's_mov_b32 s{sT2}, {so}')
                a(f'buffer_load_dwordx4 v{dw}, {srd(S_WO)}, s{sT2} offen{nt} lds')

    def consume(cn):
        slot = cn & 3
        kind = (0, 1, 3, 2)[cn >> 2]
        if kind < 3:
            for kk in range(2):
                k = 2 * (cn & 3) + kk
                for u in range(2):
                    for q in range(4):
                        off = (64 * (k & 3) + 32 * (q >> 1) + 2 * (q & 1)) * 256
                        if kind < 2:
                            b = kind * 128 + (u * 8 + k) * 8 + 2 * q
                            d = 'a[%d:%d]' % (b, b + 1)
                        else:
                            d = v(64 + (kk * 2 + u) * 8 + 2 * q, 2)
                        a(f'ds_read_b64_tr_b16 {d}, v{wv + (k >> 2) * 2 + u} offset:{off}')
        else:
            for j in range(4):
                for q in range(4):
                    off = (slot & 1) * 32768 + (8 * (q >> 1) + 2 * (q & 1)) * 256
                    a(f'ds_read_b64_tr_b16 {v(vWV+(slot*4+j)*8+2*q,2)}, v{woj + (slot>>1)*4 + j} offset:{off}')

    for cn in range(4):
        issue(cn)
    se = vAW
    a(f'''
    v_mov_b32 v{se}, s{sSENT}
    v_mov_b32 v{se+1}, s{sSENT}
    v_mov_b32 v{se+2}, s{sSENT}
    v_mov_b32 v{se+3}, s{sSENT}
    s_mov_b32 s{sT}, {PART}
    s_mov_b32 s{sT2}, {PART + 0x40000}
    buffer_store_dwordx4 {v(se,4)}, v{vPLD}, {srd(S_WS)}, s{sT} offen sc1
    buffer_store_dwordx4 {v(se,4)}, v{vPLD}, {srd(S_WS)}, s{sT} offen offset:1024 sc1
    buffer_store_dwordx4 {v(se,4)}, v{vPLD}, {srd(S_WS)}, s{sT2} offen sc1
    buffer_store_dwordx4 {v(se,4)}, v{vPLD}, {srd(S_WS)}, s{sT2} offen offset:1024 sc1
    s_mov_b32 s{sT}, {MEM + 8192}
    s_mov_b32 s{sT2}, {MEM + 16384}
    buffer_store_dword v{se}, v{vMST}, {srd(S_WS)}, s{sT} offen sc1
    buffer_store_dword v{se}, v{vMST}, {srd(S_WS)}, s{sT2} offen sc1
    s_lshl_b32 s{sT}, s{sW}, 11
    v_add_u32 v{y}, s{sT}, v{vL16}
    ds_write_b128 v{y}, {v(se,4)} offset:{L_MEM0}
    ds_write_b128 v{y}, {v(se,4)} offset:{L_MEM0+1024}
    ds_write_b128 v{y}, {v(se,4)} offset:{L_MEM0+8192}
    ds_write_b128 v{y}, {v(se,4)} offset:{L_MEM0+8192+1024}
    v_pk_mov_b32 {v(se+4,2)}, 0, 0
    v_pk_mov_b32 {v(se+6,2)}, 0, 0
    ds_write_b128 v{vEXW}, {v(se+4,4)} offset:1024
    s_waitcnt vmcnt(38)
    v_cmp_eq_u32 vcc, s{sSENT}, v{t+8}
    v_xor_b32 v{y}, 0x00400040, v{t+8}
    v_cndmask_b32 v{t+8}, v{t+8}, v{y}, vcc
    s_mov_b32 s{sT}, {MEM}
    buffer_store_dword v{t+8}, v{vMST}, {srd(S_WS)}, s{sT} offen sc1
    s_lshl_b32 s{sT}, s{sH}, 7
    s_lshl_b32 s{sT2}, s{sW}, 2
    s_add_u32 s{sT}, s{sT}, s{sT2}
    s_add_u32 s{sPRG}, s{sT}, {PROG}
    buffer_store_dword v{vSEL+1}, v{vSEL+1}, {srd(S_WS)}, s{sPRG} offen sc1
    ''')
    for cn in range(16):
        if cn <= 3:
            n = 32
        elif cn <= 12:
            n = 24
        else:
            n = 8 * (15 - cn)
        a(f's_waitcnt vmcnt({n})')
        a('s_barrier')
        if cn == 4:
            lab = a.newlabel('R_noarr')
            a(f'''
            s_cmp_lg_u32 s{sW}, 0
            s_cbranch_scc1 {lab}
            s_cmp_eq_u32 s{sXCC}, 0
            s_cselect_b32 s{sT}, 0x10001, 1
            v_mov_b32 v{y}, s{sT}
            v_mov_b32 v{z}, {D_RINIT*4}
            s_mov_b64 exec, 1
            buffer_atomic_add v{y}, v{z}, {srd(S_DBG)}, 0 offen
            s_mov_b64 exec, -1
            {lab}:
            ''')
        consume(cn)
        a('s_waitcnt lgkmcnt(0)')
        a('s_barrier')
        if cn < 12:
            issue(cn + 4)
        else:
            slot = cn & 3
            if slot >= 2:
                a(f'v_add_u32 v{y}, 0x10000, v{vWOB}')
            else:
                a(f'v_mov_b32 v{y}, v{vWOB}')
            for f in range(4):
                if slot == 3 and f > 0:
                    continue
                for hf in range(2):
                    a(f'ds_write_b128 v{y}, {v(64+f*8+hf*4,4)} offset:{(slot&1)*32768 + f*8192 + hf*1024}')
            a('s_waitcnt lgkmcnt(0)')
    for r in range(24):
        a(f'v_mov_b32 v{vWS+r}, v{72+r}')
    a(f'''
    s_mov_b32 s{sS}, 0
    s_mov_b32 s{sSPIN}, 0
    s_mov_b32 s{sPLD}, {PART}
    s_mov_b32 s{sPPO}, {PART + 0x40000}
    s_mov_b32 s{sMCU}, {MEM}
    s_mov_b32 s{sMNX}, {MEM+8192}
    s_mov_b32 s{sMTH}, {MEM+16384}
    s_lshl_b32 s{sM0}, s{sW}, 11
    s_lshl_b32 s{sT}, s{sH}, 13
    s_lshl_b32 s{sT2}, s{sW}, 11
    s_add_u32 s{sKX}, s{sT}, s{sT2}
    s_lshr_b32 s{sKVM}, s{sKX}, 1
    s_sub_u32 s{sKVM}, s{sKVM}, 0x20000
    ''')
    for i in range(4):
        a(f's_mov_b32 s{PST_S[i]}, {PART + i*0x10000}')
    a('s_barrier')


def wo_addr(i, k2, hf):
    slot = i >> 1
    off = slot * 32768 + ((i & 1) * 2 + k2) * 8192 + hf * 1024
    return off


def emit_kv_poll(a, fail, tmp):
    lab = a.newlabel('R_kvw')
    ok = a.newlabel('R_kvok')
    a(f'''
    s_lshl_b32 s{sT}, s{sT}, 2
    s_add_u32 s{sT}, s{sT}, {D_QH*4}
    s_cmp_lg_u32 s{sW}, 0
    s_cbranch_scc1 {ok}
    {lab}:
    buffer_load_dword v{tmp}, v{vSEL+1}, {srd(S_DBG)}, s{sT} offen sc1
    s_waitcnt vmcnt(0)
    v_readfirstlane_b32 s{sT2}, v{tmp}
    s_lshr_b32 s{sT2}, s{sT2}, 16
    s_cmp_ge_u32 s{sT2}, 128
    s_cbranch_scc1 {ok}
    s_sleep 8
    ''')
    spin(a, fail)
    a(f'''
    s_branch {lab}
    {ok}:
    s_barrier
    ''')


def emit_r_loop(a, opts, fast, tag):
    sc = '' if fast else ' sc1'
    WSr = srd(S_WS)
    FAIL = 'R_fail'
    LOOP, DONE = f'R_loop_{tag}', f'R_done_{tag}'
    SLOW, SLOWRET = f'R_slow_{tag}', f'R_slowret_{tag}'
    RP, RPOK = f'R_rp_{tag}', f'R_rpok_{tag}'
    lq = Q(a, 'lgkmcnt', 15)
    vq = Q(a, 'vmcnt', 63)
    T = vT
    c0 = vX
    ZR = vSEL + 1
    nocomm = opts.get('nocomm', 0)
    if nocomm:
        a_real = a
        class Filt:
            def __call__(self, text):
                for line in text.strip().split('\n'):
                    l = line.strip()
                    if l.startswith('s_cbranch_vccnz R_rt'):
                        continue
                    if l.startswith('s_cbranch_vccz R_rpok') or l.startswith('s_cbranch_vccz R_mok'):
                        l = l.replace('s_cbranch_vccz', 's_branch')
                    if l.startswith('s_cbranch_vccnz R_slow'):
                        continue
                    if nocomm >= 2 and l.startswith('buffer_') and self.on:
                        continue
                    a_real(l)
            def label(self, n):
                if n == LOOP:
                    self.on = True
                if n == DONE:
                    self.on = False
                a_real.label(n)
            def newlabel(self, b='L'):
                return a_real.newlabel(b)
            def fence(self):
                a_real.fence()
        a = Filt()
        a.on = False
        lq.a = a
        vq.a = a

    def dma(second):
        return f'buffer_load_dwordx4 v{vL16}, {WSr}, s{sMCW} offen' + (' offset:1024' if second else '') + ' sc1 lds'

    def rdA(k, dst=None):
        return f'ds_read_b128 {v(AW(k) if dst is None else dst,4)}, v{vMRD} offset:{mpos(k)*1024}'

    def chk(k):
        r = AW(k)
        return [f'v_max3_u32 v{c0}, v{r}, v{r+1}, v{r+2}',
                f'v_max_u32 v{c0}, v{c0}, v{r+3}',
                f'v_cmp_eq_u32 vcc, s{sSENT}, v{c0}']

    STG = [vT, vKX, vVX]

    def wo_ij(p):
        return (p, 0) if p < 4 else ((p - 4) // 3, (p - 4) % 3 + 1)

    def wo_reg(p):
        ip, j = wo_ij(p)
        return vWV + (ip * 4 + j) * 8

    def wv_reg(g):
        return STG[g % 3] if g < 13 else vWS + 8 * (g - 13)

    def wv_rd(g):
        out = []
        for hf in range(2):
            off = (g >> 2) * 32768 + (g & 3) * 8192 + hf * 1024
            base = vWOB if off < 65536 else vWOH
            out.append(f'ds_read_b128 {v(wv_reg(g)+4*hf,4)}, v{base} offset:{off & 0xffff}')
        return out

    def zero4(d):
        return f'ds_read_b128 {v(d,4)}, v{ZR} offset:{L_ZERO}'

    def Qs(k, u):
        return smf(vQ + 4 * u, AW(k), WQ(u, k))

    def Ks(k, u):
        return smf(vK + 4 * u, AW(k), WK(u, k))

    def add2(d, x, y):
        return [f'v_add_f32 v{d}, v{x}, v{y}', f'v_add_f32 v{d+1}, v{x+1}, v{y+1}']

    dp = 'row_mask:0xf bank_mask:0xf'
    SE = vL
    PZ = vRL
    sKB = sT2

    def kv_dma():
        return [f's_add_u32 s{sT}, s{sKX}, {KX}',
                f's_mov_b32 m0, s{sKVL}',
                f'buffer_load_dwordx4 v{vL16}, {WSr}, s{sT} offen sc1 lds',
                f'buffer_load_dwordx4 v{vL16}, {WSr}, s{sT} offen offset:1024 sc1 lds',
                f's_add_u32 s{sT}, s{sKX}, {VX}',
                f's_mov_b32 m0, s{sKVV}',
                f'buffer_load_dwordx4 v{vL16}, {WSr}, s{sT} offen sc1 lds',
                f'buffer_load_dwordx4 v{vL16}, {WSr}, s{sT} offen offset:1024 sc1 lds',
                f's_add_u32 s{sKX}, s{sKX}, {0 if opts.get("samekv") else 0x40000}']

    KRA, VRA = vP, vP + 1

    def kv_rd():
        return [f'ds_read_b128 {v(vKX+4*j,4)}, v{(KRA, VRA)[j >> 1]} offset:{(j & 1) * 1024}' for j in range(4)]

    C3 = L_WO + 3 * 32768
    KXOR = (C3 + 8192) ^ (C3 + 24576)
    VXOR = (C3 + 16384) ^ 8192

    def kv_flip():
        return [f'v_add_u32 v{KRA}, s{sKVL}, v{vL16}',
                f'v_add_u32 v{VRA}, s{sKVV}, v{vL16}',
                f's_xor_b32 s{sKVL}, s{sKVL}, {KXOR}',
                f's_xor_b32 s{sKVV}, s{sKVV}, {VXOR}']

    if not opts.get('no_kv_flags'):
        a(f's_mov_b32 s{sT}, 0')
        emit_kv_poll(a, FAIL, vT)
    a(f's_lshl_b32 s{sKVL}, s{sW}, 11')
    a(f's_add_u32 s{sKVV}, s{sKVL}, {L_WO + 3*32768 + 16384}')
    a(f's_add_u32 s{sKVL}, s{sKVL}, {L_WO + 3*32768 + 8192}')
    for s_ in kv_dma():
        a(s_)
    a('s_waitcnt vmcnt(0)')
    for s_ in kv_flip():
        a(s_)
    for g_ in range(3):
        for s_ in wv_rd(g_):
            a(s_)
    a(f'''
    s_lshl_b32 s{sT}, s{sW}, 11
    s_add_u32 s{sMCW}, s{sMCU}, s{sT}
    s_mov_b32 m0, s{sM0}
    s_mov_b32 s{sMPO}, s{sMTH}
    v_add_u32 v{PZ}, s{sM0}, v{vL16}
    v_mov_b32 v{PZ+1}, 0
    ''')
    for i in range(12):
        a(f'v_pk_mov_b32 {v(vQ+2*i,2)}, 0, 0')
    for r in range(4):
        a(f'v_mov_b32 v{SE+r}, s{sSENT}')
    a('s_waitcnt vmcnt(0) lgkmcnt(0)')
    if opts.get('stamps'):
        a(f's_memtime s[{sST}:{sST+1}]')
        a('s_waitcnt lgkmcnt(0)')
        a(f's_mov_b32 s{sFLG+1}, s{sST}')
        for i in range(10):
            a(f's_mov_b32 s{90+i}, 0')
    tl(a, opts, 2, vSEL + 1, vX, None)
    a('.p2align 6')
    a.label(LOOP)

    def retry_label(k):
        return f'R_rt{k}_{tag}'

    def go_label(k):
        return f'R_go{k}_{tag}'

    MS = [AW(0), AW(2), vQ]

    def mpoll(rs):
        a(f'buffer_load_dwordx4 {v(rs,4)}, v{vL16}, {WSr}, s{sMCW} offen sc1')
        a(f'buffer_load_dwordx4 {v(rs+4,4)}, v{vL16}, {WSr}, s{sMCW} offen offset:1024 sc1')

    def mchk(rs):
        a(f'ds_write_b128 v{PZ}, {v(rs,4)}')
        a(f'v_max3_u32 v{vX}, v{rs}, v{rs+1}, v{rs+2}')
        a(f'v_max3_u32 v{vX}, v{vX}, v{rs+3}, v{rs+4}')
        a(f'v_max3_u32 v{vX}, v{vX}, v{rs+5}, v{rs+6}')
        a(f'v_max_u32 v{vX}, v{vX}, v{rs+7}')
        a(f'v_cmp_eq_u32 vcc, s{sSENT}, v{vX}')
        a(f'ds_write_b128 v{PZ}, {v(rs+4,4)} offset:1024')
    MP, MOK = f'R_mp_{tag}', f'R_mok_{tag}'
    mg = opts.get('mgap', 16)
    mpoll(MS[0])
    if mg:
        a(f's_nop {mg-1}')
    a.label(MP)
    for i in range(2):
        mpoll(MS[1 - i])
        a('s_waitcnt vmcnt(2)')
        mchk(MS[i])
        a(f's_cbranch_vccz {MOK}')
    spin(a, FAIL)
    a(f's_branch {MP}')
    a.label(MOK)
    a('s_waitcnt lgkmcnt(0)')
    stamp(a, opts, 0)
    if opts.get('abs'):
        lb = a.newlabel('R_ab')
        a(f's_cmp_lg_u32 s{sS}, 41')
        a(f's_cbranch_scc1 {lb}')
        a(f's_memrealtime s[{16+14}:{17+14}]')
        a.label(lb)
    a('s_barrier')
    lq.reset()
    AB = [vL + 0]
    kr = kv_rd()
    kd = kv_dma()
    hk = [[f's_add_u32 s{sT2}, s{sKVM}, {KVM_KT}',
           f'buffer_store_dwordx4 {v(vKV,4)}, v{vL16}, {WSr}, s{sT2} offen sc1',
           f's_add_u32 s{sKVM}, s{sKVM}, 0x20000']]
    a('s_waitcnt vmcnt(0)')
    for k in range(3):
        lq.issue(rdA(k), f'A{k}')
    if not opts.get('no_kv_flags'):
        lab = a.newlabel('R_nokv')
        a(f'''
        s_add_u32 s{sT}, s{sS}, 1
        s_and_b32 s{sT2}, s{sT}, 7
        s_cmp_lg_u32 s{sT2}, 0
        s_cbranch_scc1 {lab}
        s_cmp_eq_u32 s{sT}, 64
        s_cbranch_scc1 {lab}
        s_lshr_b32 s{sT}, s{sT}, 3
        ''')
        emit_kv_poll(a, FAIL, vX)
        a.label(lab)
    a(kd[0]); a(kd[1]); a(kd[2])

    def Vs(k, u):
        return smf(vV + 4 * u, AW(k), v(wv_reg(2 * k + u), 8))

    def Vst(k, u):
        g = 2 * k + u
        if 3 <= g < 13:
            lq.wait(f'g{g}')
        a(Vs(k, u))
        if g + 3 < 13:
            for s_ in wv_rd(g + 3):
                lq.issue(s_, f'g{g+3}')
    side = [[kd[3]], [kd[4], kd[5], kd[6]], [kd[7], kd[8]], [], hk[0], [],
            [f's_mov_b64 exec, 1', f'buffer_store_dword v{PZ+1}, v{ZR}, {WSr}, s{sPRG} offen sc1', f's_mov_b64 exec, -1']]
    late = [f'buffer_store_dwordx4 {v(SE,4)}, v{vPLD}, {WSr}, s{sPPO} offen{sc}',
            f'buffer_store_dword v{SE}, v{vMST}, {WSr}, s{sMPO} offen{sc}',
            f'buffer_store_dwordx4 {v(SE,4)}, v{vPLD}, {WSr}, s{sPPO} offen offset:1024{sc}']
    for k in range(8):
        lq.wait(f'A{k}')
        a(Qs(k, 0))
        if k + 3 < 8:
            lq.issue(rdA(k + 3), f'A{k+3}')
        elif k >= 5:
            lq.issue(rdA(k - 5), f'B{k-5}')
        Vst(k, 0)
        a(Qs(k, 1))
        if side:
            for s_ in side.pop(0):
                a(s_)
        Vst(k, 1)
        if k == 5:
            for s_ in kr:
                lq.issue(s_, 'kv')
    stamp(a, opts, 1)
    if opts.get('abs'):
        lb = a.newlabel('R_ab')
        a(f's_cmp_lg_u32 s{sS}, 41')
        a(f's_cbranch_scc1 {lb}')
        a(f's_memrealtime s[{16+16}:{17+16}]')
        a.label(lb)
    a.label(go_label(7))
    QP, QT, KT, SM = vQ + 2, vQ + 4, vK, vQ
    O0, O1 = T + 4, T + 8
    korder = [(k, u) for k in range(8) for u in range(2)]

    def K(n=1):
        for _ in range(n):
            if not korder:
                return
            k, u = korder.pop(0)
            if u == 0:
                lq.wait(f'B{k}')
            a(Ks(k, u))
            if u == 0 and k + 3 < 8:
                lq.issue(rdA(k + 3), f'B{k+3}')
    WDl = [AW(0), AW(1), AW(2), AW(3)]

    def WD(i):
        return WDl[i]
    K()
    a(f'v_add_f32 v{vQ}, v{vQ}, v{vQ+2}')
    a(f'v_add_f32 v{vQ+1}, v{vQ+1}, v{vQ+3}')
    K()
    a(late[0])
    a(f'v_add_f32 v{vQ+4}, v{vQ+4}, v{vQ+6}')
    a(f'v_add_f32 v{vQ+5}, v{vQ+5}, v{vQ+7}')
    K()
    a(cvt(QP, vQ, vQ + 1))
    a(cvt(QP + 1, vQ + 4, vQ + 5))
    K()
    a(m16(T, QP, vSEL))
    a(m16(T + 4, QP, vSEL + 2))
    K()
    a(f'v_add_f32 v{vV}, v{vV}, v{vV+2}')
    K()
    a(late[1])
    a(cvt(QT, T, T + 1))
    a(cvt(QT + 1, T + 2, T + 3))
    K()
    a(cvt(QT + 2, T + 4, T + 5))
    a(cvt(QT + 3, T + 6, T + 7))
    K()
    lq.wait('kv')
    a(m32(T, vKX, QT))
    a(f'v_add_f32 v{vV+1}, v{vV+1}, v{vV+3}')
    a(m32(T + 4, vKX + 4, QT))
    a(f'v_add_f32 v{vV+4}, v{vV+4}, v{vV+6}')
    K()
    a(f'v_add_f32 v{vV+5}, v{vV+5}, v{vV+7}')
    K()
    a(late[2])
    for r in range(4):
        a(f'v_cndmask_b32 v{T+r}, v{T+r}, v{T+4+r}, s[{sMB}:{sMB+1}]')
    K()
    lq.issue(f'ds_write_b128 v{vEXW}, {v(T,4)}', 'wx')
    a(cvt(vKV + 2, vV, vV + 1))
    K()
    a(cvt(vV + 2, vV + 4, vV + 5))
    K()
    a(cvt(vV + 3, vV + 4, vV + 5))
    K()
    a(cvt(vKV + 3, vV + 4, vV + 5))
    K()
    lq.wait('wx')
    a('s_barrier')
    X = [T, T + 4, vKX, vKX + 4]
    K()
    assert not korder
    for j in range(4):
        lq.issue(f'ds_read_b128 {v(X[j],4)}, v{vL16} offset:{L_EX + j*4096}', f'x{j}')
    a(f'v_add_f32 v{vK}, v{vK}, v{vK+2}')
    a(f'v_add_f32 v{vK+1}, v{vK+1}, v{vK+3}')
    a(cvt(vKV, vK, vK + 1))
    a(f'v_add_f32 v{vK+4}, v{vK+4}, v{vK+6}')
    a(f'v_add_f32 v{vK+5}, v{vK+5}, v{vK+7}')
    a(m16(T + 8, vKV, vSEL))
    a(cvt(vKV + 1, vK + 4, vK + 5))
    lq.issue(zero4(WD(0)), 'z0')
    lq.issue(zero4(WD(1)), 'z1')
    a(m16(vK + 4, vKV, vSEL + 2))
    lq.wait('x3')
    for s_ in add2(T, T, T + 4) + add2(T + 2, T + 2, T + 6):
        a(s_)
    a(cvt(KT, T + 8, T + 9))
    a(cvt(KT + 1, T + 10, T + 11))
    for s_ in add2(vKX, vKX, vKX + 4):
        a(s_)
    a(cvt(KT + 2, vK + 4, vK + 5))
    a(cvt(KT + 3, vK + 6, vK + 7))
    for s_ in add2(vKX + 2, vKX + 2, vKX + 6):
        a(s_)
    a(m32(SM, KT, QT))
    lq.issue(zero4(WD(2)), 'z2')
    lq.issue(zero4(WD(3)), 'z3')
    for r in range(4):
        a(f'v_add_f32 v{T+r}, v{T+r}, v{vKX+r}')
    for r in range(2):
        a(f'v_mul_f32 v{T+r}, s{sC}, v{T+r}')
    lq.issue(f'ds_write_b64 v{vEXW}, {v(SM,2)} offset:3072', 'wm')
    for r in range(2, 4):
        a(f'v_mul_f32 v{T+r}, s{sC}, v{T+r}')
    for r in range(4):
        a(f'v_exp_f32 v{T+r}, v{T+r}')
    lq.wait('wm')
    a('s_barrier')
    M = [vQ, vQ + 2, vK + 4, vK + 6]
    for j in range(4):
        lq.issue(f'ds_read_b64 {v(M[j],2)}, v{vL16} offset:{L_EX + j*4096 + 3072}', f'm{j}')
    a(cvt(T + 4, T, T + 1))
    a(cvt(T + 5, T + 2, T + 3))
    a(f's_cmp_eq_u32 s{sS}, 63')
    a(f's_cbranch_scc1 {DONE}')
    a(f'v_mov_b32_dpp v{vP}, v{T+4} quad_perm:[0,1,0,1] {dp}')
    a(f'v_mov_b32_dpp v{vP+2}, v{T+4} quad_perm:[2,3,2,3] {dp}')
    a(f'v_mov_b32_dpp v{vP+1}, v{T+5} quad_perm:[0,1,0,1] {dp}')
    a(f'v_mov_b32_dpp v{vP+3}, v{T+5} quad_perm:[2,3,2,3] {dp}')
    lq.wait('m3')
    a(pka(vQ, vQ, vQ + 2))
    a(pka(vK + 4, vK + 4, vK + 6))
    a(pka(vQ, vQ, vK + 4))
    a(f'v_pk_mul_f32 {v(vQ,2)}, {v(vQ,2)}, s[{sC}:{sC+1}]')
    a(m32(O0, vVX, vP))
    a(f'v_exp_f32 v{vQ}, v{vQ}')
    a(m32(O1, vVX + 4, vP))
    a(f'v_exp_f32 v{vQ+1}, v{vQ+1}')
    a(m32(vL, vP, vONE))
    a(cvt(vPM, vQ, vQ + 1))
    a(m16(O0, vKV + 2, vPM, O0))
    a(m16(O1, vV + 2, vPM, O1))
    a(m16(vL, vPM, vONE, vL))
    OP = vV + 4
    a(cvt(OP, O0, O0 + 1))
    a(cvt(OP + 1, O0 + 2, O0 + 3))
    a(cvt(OP + 2, O1, O1 + 1))
    a(cvt(OP + 3, O1 + 2, O1 + 3))
    lq.issue(f'ds_write_b128 v{vEXW}, {v(OP,4)} offset:2048', 'wo')
    a(f'v_rcp_f32 v{vRL}, v{vL}')
    a(f'v_rcp_f32 v{vRL+1}, v{vL+1}')
    a(f'v_max_f32 v{vX}, v{vL}, v{vL+1}')
    a(f'v_max3_f32 v{vX}, v{vX}, v{vRL}, v{vRL+1}')
    a(f'v_cmp_ngt_f32 vcc, s{sBIG}, v{vX}')
    XA = [None, vOR, vQ, vQ + 1]
    for j in (2, 3):
        a(f'v_xor_b32 v{XA[j]}, {j << 12}, v{vEXW}')
    lq.wait('z3')
    a(f's_cbranch_vccnz {SLOW}')
    a(f'R_noslow_{tag}:')
    stamp(a, opts, 2)
    WAl = [OP, T, T + 4, T + 8]

    def fin(i):
        d = WD(i)
        return [f'v_mul_f32 v{d}, v{d}, v{vRL}',
                f'v_mul_f32 v{d+1}, v{d+1}, v{vRL+1}',
                f'v_mul_f32 v{d+2}, v{d+2}, v{vRL}',
                f'v_mul_f32 v{d+3}, v{d+3}, v{vRL+1}',
                cvt(d, d, d + 1),
                cvt(d + 1, d + 2, d + 3),
                f'buffer_store_dwordx2 {v(d,2)}, v{vPST}, {WSr}, s{PST_S[i]} offen{sc}']

    def pl(rs):
        a(f'buffer_load_dwordx4 {v(rs,4)}, v{vPLD}, {WSr}, s{sPLD} offen sc1')
        a(f'buffer_load_dwordx4 {v(rs+4,4)}, v{vPLD}, {WSr}, s{sPLD} offen offset:1024 sc1')

    RS = [AW(0), vKX, AW(2)]
    paw = opts.get('paw', 2)
    a(smf(WD(0), OP, v(wo_reg(0), 8)))
    lq.wait('wo')
    a('s_barrier')
    a(smf(WD(1), OP, v(wo_reg(1), 8)))
    for j in (1, 2, 3):
        lq.issue(f'ds_read_b128 {v(WAl[j],4)}, v{XA[j]} offset:2048', f'wa{j}')
    a(smf(WD(2), OP, v(wo_reg(2), 8)))
    a(smf(WD(3), OP, v(wo_reg(3), 8)))
    a(f'''
    s_add_u32 s{sMCW}, s{sMNX}, s{sM0}
    s_mov_b32 m0, s{sM0}
    ''')
    for k in range(4):
        a(f'v_cndmask_b32 v{vP+k}, 0, v{vRV}, s[{sCOL+2*k}:{sCOL+2*k+1}]')
    pend = []
    for p in range(4, 16):
        ip, j = wo_ij(p)
        lq.wait(f'wa{j}')
        a(smf(WD(ip), WAl[j], v(wo_reg(p), 8)))
        if j == 2 and ip > 0:
            pend = fin(ip - 1)
        n = 7 if opts.get('bunch') else (4 if j == 2 else 3)
        for x_ in pend[:n]:
            a(x_)
        pend = pend[n:]
        if ip == 1 and j == 3:
            stamp(a, opts if opts.get('abs') else {}, 6)
        if p == opts.get('pa', 15):
            a(f's_cmp_ge_u32 s{sW}, {paw}')
            a(f's_cbranch_scc1 R_nop_{tag}')
            pl(RS[0])
            a.label(f'R_nop_{tag}')
    assert not pend
    for x_ in fin(3):
        a(x_)
    stamp(a, opts, 3)
    D = vL

    def pchk(rs, ok):
        a(m32(D, rs, vP))
        a(f'v_max3_u32 v{vX}, v{rs}, v{rs+1}, v{rs+2}')
        a(f'v_max3_u32 v{vX}, v{vX}, v{rs+3}, v{rs+4}')
        a(m32(D, rs + 4, vP, D))
        a(f'v_max3_u32 v{vX}, v{vX}, v{rs+5}, v{rs+6}')
        a(f'v_max_u32 v{vX}, v{vX}, v{rs+7}')
        a(f'v_cmp_eq_u32 vcc, s{sSENT}, v{vX}')
        a(f'v_permlane32_swap_b32 v{D}, v{D+2}')
        a(f'v_permlane32_swap_b32 v{D+1}, v{D+3}')
        a(f's_cbranch_vccz {ok}')

    def prep():
        for i in range(12):
            a(f'v_pk_mov_b32 {v(vQ+2*i,2)}, 0, 0')
        a(f'''
        v_add_u32 v{PZ}, s{sM0}, v{vL16}
        v_mov_b32 v{PZ+1}, s{sS}
        s_mov_b32 s{sPPO}, s{sPLD}
        s_mov_b32 s{sMPO}, s{sMCU}
        ''')
        for i in range(4):
            a(f's_xor_b32 s{PST_S[i]}, s{PST_S[i]}, 0x40000')

    gap = opts.get('rgap', 8)
    RPOK2 = f'R_rpok2_{tag}'
    a(f's_cmp_ge_u32 s{sW}, {paw}')
    a(f's_cbranch_scc1 R_rlate_{tag}')
    pl(RS[1])
    a('s_waitcnt vmcnt(3)')
    pchk(RS[0], RPOK2)
    pl(RS[2])
    a('s_waitcnt vmcnt(2)')
    pchk(RS[1], RPOK2)
    a('s_waitcnt vmcnt(0)')
    pchk(RS[2], RPOK2)
    a.label(f'R_rlate_{tag}')
    prep()
    rd = opts.get('rdelay', [0, 0, 0, 0])
    for wv in (2, 3):
        n = rd[wv] - rd[wv - 1]
        if n > 0:
            a(f's_cmp_lt_u32 s{sW}, {wv}')
            a(f's_cbranch_scc1 R_rgo_{tag}')
            for _ in range(n):
                a('s_nop 15')
    a.label(f'R_rgo_{tag}')
    pl(RS[0])
    a(f's_nop 15')
    pl(RS[1])
    a(f's_nop 15')
    a.label(RP)
    for i in range(3):
        pl(RS[(i + 2) % 3])
        a('s_waitcnt vmcnt(4)')
        pchk(RS[i], RPOK)
        if gap:
            a(f's_nop {gap-1}')
    spin(a, FAIL)
    a(f's_branch {RP}')

    def publish():
        a(f'v_add_f32 v{D}, v{D}, v{D+2}')
        a(f'v_add_f32 v{D+1}, v{D+1}, v{D+3}')
        a(f'v_permlane16_swap_b32 v{D}, v{D+1}')
        a(f'v_add_f32 v{D}, v{D}, v{D+1}')
        a(f'v_mov_b32_dpp v{D+1}, v{D} quad_perm:[1,1,3,3] {dp}')
        a(cvt(vX, D, D + 1))
        a(f'buffer_store_dword v{vX}, v{vMST}, {WSr}, s{sMNX} offen{sc}')
        stamp(a, opts, 4)
    a.label(RPOK2)
    publish()
    prep()
    a(f's_branch R_post_{tag}')
    a.label(RPOK)
    publish()
    a.label(f'R_post_{tag}')
    for s_ in kv_flip():
        a(s_)
    for g_ in (0, 2):
        for s_ in wv_rd(g_):
            a(s_)
    for r in range(4):
        a(f'v_mov_b32 v{SE+r}, s{sSENT}')
    a(f'''
    s_add_u32 s{sS}, s{sS}, 1
    s_xor_b32 s{sPLD}, s{sPLD}, 0x40000
    s_mov_b32 s{sMCU}, s{sMNX}
    s_mov_b32 s{sMNX}, s{sMTH}
    s_mov_b32 s{sMTH}, s{sMPO}
    ''')
    for _ in range(opts.get('mdelay', 0)):
        a('s_nop 15')
    a('s_waitcnt vmcnt(1)')
    for s_ in wv_rd(1):
        a(s_)
    stamp(a, opts, 5)
    a(f's_branch {LOOP}')

    a.label(SLOW)
    a('s_waitcnt lgkmcnt(0)')
    Xs = [AW(0), AW(1), AW(2), AW(3)]
    Ms = [vQ, vQ + 2, vQ + 4, vQ + 6]
    for j in range(4):
        a(f'ds_read_b128 {v(Xs[j],4)}, v{vL16} offset:{L_EX + j*4096}')
        a(f'ds_read_b64 {v(Ms[j],2)}, v{vL16} offset:{L_EX + j*4096 + 3072}')
    a('s_waitcnt lgkmcnt(0)')
    x0, m0_ = Xs[0], Ms[0]
    a(pka(x0, x0, Xs[1]))
    a(pka(x0 + 2, x0 + 2, Xs[1] + 2))
    a(pka(Xs[2], Xs[2], Xs[3]))
    a(pka(Xs[2] + 2, Xs[2] + 2, Xs[3] + 2))
    a(pka(x0, x0, Xs[2]))
    a(pka(x0 + 2, x0 + 2, Xs[2] + 2))
    a(pka(m0_, m0_, Ms[1]))
    a(pka(Ms[2], Ms[2], Ms[3]))
    a(pka(m0_, m0_, Ms[2]))
    mx, my = Xs[1], Xs[1] + 1
    a(f'''
    v_max3_f32 v{mx}, v{x0}, v{x0+1}, v{x0+2}
    v_max3_f32 v{mx}, v{mx}, v{x0+3}, v{m0_}
    v_max_f32 v{mx}, v{mx}, v{m0_+1}
    v_max_f32_dpp v{mx}, v{mx}, v{mx} quad_perm:[2,3,0,1] {dp}
    v_mov_b32 v{my}, v{mx}
    v_permlane32_swap_b32 v{mx}, v{my}
    v_max_f32 v{mx}, v{mx}, v{my}
    v_mov_b32 v{my}, v{mx}
    v_permlane16_swap_b32 v{mx}, v{my}
    v_max_f32 v{mx}, v{mx}, v{my}
    ''')
    for r in [x0, x0 + 1, x0 + 2, x0 + 3, m0_, m0_ + 1]:
        a(f'v_sub_f32 v{r}, v{r}, v{mx}')
        a(f'v_mul_f32 v{r}, s{sC}, v{r}')
        a(f'v_exp_f32 v{r}, v{r}')
    a(cvt(Xs[2], x0, x0 + 1))
    a(cvt(Xs[2] + 1, x0 + 2, x0 + 3))
    a(cvt(vPM, m0_, m0_ + 1))
    a(f'v_mov_b32_dpp v{vP}, v{Xs[2]} quad_perm:[0,1,0,1] {dp}')
    a(f'v_mov_b32_dpp v{vP+1}, v{Xs[2]+1} quad_perm:[0,1,0,1] {dp}')
    a(f'v_mov_b32_dpp v{vP+2}, v{Xs[2]} quad_perm:[2,3,2,3] {dp}')
    a(f'v_mov_b32_dpp v{vP+3}, v{Xs[2]+1} quad_perm:[2,3,2,3] {dp}')
    a(m32(O0, vVX, vP))
    a(m32(O1, vVX + 4, vP))
    a(m32(vL, vP, vONE))
    a(m16(O0, vKV + 2, vPM, O0))
    a(m16(O1, vV + 2, vPM, O1))
    a(m16(vL, vPM, vONE, vL))
    for i in range(4):
        a(zero4(WD(i)))
    a.fence()
    for j in (2, 3):
        a(f'v_xor_b32 v{XA[j]}, {j << 12}, v{vEXW}')
    a(cvt(OP, O0, O0 + 1))
    a(cvt(OP + 1, O0 + 2, O0 + 3))
    a(cvt(OP + 2, O1, O1 + 1))
    a(cvt(OP + 3, O1 + 2, O1 + 3))
    a(f'ds_write_b128 v{vEXW}, {v(OP,4)} offset:2048')
    a(f'v_rcp_f32 v{vRL}, v{vL}')
    a(f'v_rcp_f32 v{vRL+1}, v{vL+1}')
    a('s_waitcnt lgkmcnt(0)')
    a.fence()
    a(f's_branch R_noslow_{tag}')

    a.label(DONE)
    a(f'''
    s_add_u32 s{sT}, s{sKVM}, {KVM_KT}
    buffer_store_dwordx4 {v(vKV,4)}, v{vL16}, {WSr}, s{sT} offen sc1
    v_mov_b32 v{vRL}, 64
    s_waitcnt vmcnt(0)
    buffer_store_dword v{vRL}, v{ZR}, {WSr}, s{sPRG} offen sc1
    ''')
    tl(a, opts, 3, vSEL + 1, vX, None)
    if opts.get('stamps'):
        a(f'''
        s_memtime s[{sST+2}:{sST+3}]
        s_waitcnt lgkmcnt(0)
        s_sub_u32 s{sT}, s{sST+2}, s{sST}
        v_mov_b32 v{vX}, s{sT}
        s_lshl_b32 s{sT}, s{sH}, 4
        s_lshl_b32 s{sT2}, s{sW}, 2
        s_add_u32 s{sT}, s{sT}, s{sT2}
        s_add_u32 s{sT}, s{sT}, {STAMP}
        buffer_store_dword v{vX}, v{ZR}, {WSr}, s{sT} offen
        v_mov_b32 v{vRL}, s{sSPIN}
        buffer_store_dword v{vRL}, v{ZR}, {WSr}, s{sT} offen offset:512
        ''')
        for i in range(10):
            a(f'v_mov_b32 v{vT+i}, s{16+2*i if opts.get("abs") else 90+i}')
            a(f's_add_u32 s{sT2}, s{sT}, {1024+512*i}')
            a(f'buffer_store_dword v{vT+i}, v{ZR}, {WSr}, s{sT2} offen')
    a('s_endpgm')


def emit_r_role(a, opts):
    emit_r_init(a, opts)
    tl(a, opts, 1, vSEL + 1, vX, None)
    lab = a.newlabel('R_iw')
    a(f'''
    v_mov_b32 v{vX}, {D_RINIT*4}
    {lab}:
    buffer_load_dword v{vRL}, v{vX}, {srd(S_DBG)}, 0 offen sc1
    s_waitcnt vmcnt(0)
    v_readfirstlane_b32 s{sT}, v{vRL}
    ''')
    spin(a, 'R_fail')
    a(f'''
    s_and_b32 s{sT2}, s{sT}, 0xffff
    s_cmp_ge_u32 s{sT2}, 32
    s_cbranch_scc1 R_iw_ok
    s_sleep 8
    s_branch {lab}
    R_iw_ok:
    s_lshr_b32 s{sT}, s{sT}, 16
    s_cmp_eq_u32 s{sT}, 32
    s_cbranch_scc0 R_safe_entry
    ''')
    if opts.get('force_safe'):
        a('s_branch R_safe_entry')
    emit_r_loop(a, opts, True, 'f')
    a.label('R_safe_entry')
    emit_r_loop(a, opts, False, 's')
    a.label('R_fail')
    a(f'''
    v_mov_b32 v{vX}, {D_ERR*4}
    v_mov_b32 v{vRL}, 1
    s_mov_b64 exec, 1
    buffer_atomic_add v{vRL}, v{vX}, {srd(S_DBG)}, 0 offen
    s_waitcnt vmcnt(0)
    s_endpgm
    ''')
```

```python
from common import *
from asm import Q
from wrole2 import *

vL8 = 4
vSEL = 156
vQI = 5
vOO = 6
vRW = 7
T = 12
vQ = 32
vK = 48
vV = 80
vM = 96
vKT = 112
vS = 128
vP = 140
vPM = 144
vO = 148
vA = 160
vB = 176
vB2 = 32


def m32(d, a_, b_, c_=None):
    return f'v_mfma_f32_16x16x32_bf16 {v(d,4)}, {a_}, {b_}, ' + ('0' if c_ is None else v(c_, 4))


def m16(d, a_, b_, c_=None):
    return f'v_mfma_f32_16x16x16_bf16 {v(d,4)}, {v(a_,2)}, {v(b_,2)}, ' + ('0' if c_ is None else v(c_, 4))


def emit_phase3(a, opts):
    WSr = srd(S_WS)
    dp = 'row_mask:0xf bank_mask:0xf'
    y, z = T, T + 1
    a('; ---------------- phase 3 ----------------')
    a(f'''
    v_lshrrev_b32 v{vL8}, 1, v{vL16}
    v_lshrrev_b32 v{y}, 5, v{vL16}
    v_lshlrev_b32 v{y}, 10, v{y}
    v_and_b32 v{z}, 16, v{vL16}
    v_add_u32 v{y}, v{y}, v{z}
    s_lshl_b32 s{sT}, s{sR}, 5
    v_add_u32 v{y}, s{sT}, v{y}
    s_mul_i32 s{sOB}, s{sW}, 40960
    v_add_u32 v{z}, s{sOB}, v{vL8}
    s_lshl_b32 s{sT}, s{sW}, 20
    ''')
    for ks in range(32):
        a(f's_add_u32 m0, s{sOB}, {ks*1024}')
        a(f's_add_u32 s{sT2}, s{sT}, {ks*32768}')
        a(f'buffer_load_dwordx4 v{y}, {srd(S_WO)}, s{sT2} offen lds')
    a('s_waitcnt vmcnt(0)')
    for ks in range(32):
        for hf in range(2):
            a(f'ds_read_b64_tr_b16 {ar(ks*4+2*hf,2)}, v{z} offset:{ks*1024+hf*512}')
    a('s_waitcnt lgkmcnt(0)')
    a(f's_mul_i32 s{sT}, s{sW}, {448*1024}')
    for ks in range(14):
        a(f's_add_u32 m0, s{sOB}, {ks*1024}')
        a(f's_add_u32 s{sT2}, s{sT}, {ks*32768}')
        a(f'buffer_load_dwordx4 v{y}, {srd(S_W2)}, s{sT2} offen lds')
    a('s_waitcnt vmcnt(0)')
    for ks in range(14):
        for hf in range(2):
            a(f'ds_read_b64_tr_b16 {ar((32+ks)*4+2*hf,2)}, v{z} offset:{ks*1024+hf*512}')
    a(f'''
    v_and_b32 v{y}, 1, v{vC}
    v_lshlrev_b32 v{y}, 4, v{y}
    v_mov_b32 v{z}, 0x3F80
    v_lshlrev_b32 v{y}, v{y}, v{z}
    v_lshrrev_b32 v{z}, 2, v{vC}
    v_cmp_eq_u32 vcc, v{z}, v{vG}
    v_mov_b32 v{vSEL+1}, 0
    v_mov_b32 v{vSEL+2}, 0
    v_cndmask_b32 v{vSEL}, 0, v{y}, vcc
    v_mov_b32 v{vSEL+3}, v{vSEL}
    v_mov_b32 v{vPM+1}, 0
    v_mov_b32 v{vPM+2}, 0
    s_and_b32 s{sT}, s{sW}, 1
    s_lshl_b32 s{sT}, s{sT}, 4
    v_add_u32 v{vQI}, s{sT}, v{vC}
    v_lshlrev_b32 v{y}, 2, v{vG}
    v_sub_u32 v{vQI}, v{vQI}, v{y}
    v_add_u32 v{y}, s{sT}, v{vC}
    v_lshlrev_b32 v{y}, 10, v{y}
    v_lshl_add_u32 v{y}, v{vG}, 3, v{y}
    s_lshl_b32 s{sT}, s{sR}, 5
    v_add_u32 v{vOO}, s{sT}, v{y}
    s_lshl_b32 s{sT}, s{sW}, 12
    v_add_u32 v{vRW}, s{sT}, v{vL16}
    s_mov_b32 s{sC}, 0x{f32bits(SCALE_LOG2E):x}
    s_mov_b32 s{sSEG}, s{sX}
    s_waitcnt lgkmcnt(0)
    s_barrier
    ''')
    a(f's_mov_b32 s{sT}, {D_RINIT*4}')

    def c0():
        a(f's_and_b32 s{sT2}, s{sT2}, 0xffff')
        a(f's_cmp_ge_u32 s{sT2}, 32')
    poll_dbg(a, sT, c0, T)
    tl(a, opts, 9, vZ, T, None)
    a.label('W3_seg')
    a(f'''
    s_lshr_b32 s{sT}, s{sSEG}, 3
    s_lshl_b32 s{sT}, s{sT}, 2
    s_add_u32 s{sT}, s{sT}, {D_QH*4}
    ''')

    def c1():
        a(f's_and_b32 s{sT2}, s{sT2}, 0xffff')
        a(f's_cmp_ge_u32 s{sT2}, 220')
    poll_dbg(a, sT, c1, T)
    vq = Q(a, 'vmcnt', 63)
    a(f'''
    s_lshl_b32 s{sT}, s{sSEG}, 18
    s_lshl_b32 s{sT2}, s{sR}, 13
    s_add_u32 s{sNO}, s{sT}, s{sT2}          ; (s*32+h)*8192
    s_mul_i32 s{sNS}, s{sSEG}, {ZS}
    s_add_u32 s{sNS}, s{sNS}, {ZX}
    s_mul_i32 s{sT}, s{sW}, {14*2048}
    s_add_u32 s{sT}, s{sT}, s{sNS}
    s_add_u32 s{sT}, s{sT}, {128*2048}
    ''')
    def zload(buf, sreg, off, tag):
        vq.issue(f'buffer_load_dwordx4 {v(buf,4)}, v{vL16}, {WSr}, s{sreg} offen offset:{off} sc1', tag)
    nh = 28
    issued = 0

    def hissue(i):
        if i % 4 == 0 and i > 0:
            a(f's_add_u32 s{sT}, s{sT}, 4096')
        zload(vB + 4 * (i % 20), sT, (i % 4) * 1024, f'h{i}')
    for i in range(20):
        hissue(i)
    a(f'''
    s_and_b32 s{sT2}, s{sW}, 1
    s_lshl_b32 s{sT2}, s{sT2}, 10
    s_add_u32 s{sT2}, s{sT2}, s{sNO}
    s_add_u32 s{sT2}, s{sT2}, {QX}
    ''')
    for wp in range(4):
        if wp == 2:
            a(f's_add_u32 s{sT2}, s{sT2}, 4096')
        zload(vQ + 4 * wp, sT2, (wp & 1) * 2048, 'q')
    a(f's_add_u32 s{sT2}, s{sNO}, {KX}')
    for i in range(8):
        if i == 4:
            a(f's_add_u32 s{sT2}, s{sT2}, 4096')
        zload(vK + 4 * i, sT2, (i & 3) * 1024, 'k')
    a(f'''
    s_lshr_b32 s{sT2}, s{sW}, 1
    s_lshl_b32 s{sT2}, s{sT2}, 12
    s_add_u32 s{sT2}, s{sT2}, s{sNO}
    s_add_u32 s{sT2}, s{sT2}, {VX}
    ''')
    for i in range(4):
        zload(vV + 4 * i, sT2, i * 1024, 'v')
    for i in range(nh):
        ks, t = i >> 1, i & 1
        vq.wait(f'h{i}')
        a(m32(vA + 4 * t, ar((32 + ks) * 4, 4), v(vB + 4 * (i % 20), 4), None if ks == 0 else vA + 4 * t))
        if i + 20 < nh:
            hissue(i + 20)
    vq.wait('v')
    for t in range(2):
        for wp in range(4):
            a(m32(vS + 4 * t, v(vK + 4 * (2 * wp + t), 4), v(vQ + 4 * wp, 4), None if wp == 0 else vS + 4 * t))
    lab, ok = a.newlabel('W3_pp'), a.newlabel('W3_pk')
    a(f'''
    s_lshl_b32 s{sT}, s{sR}, 7
    s_add_u32 s{sT}, s{sT}, {PROG}
    s_cmp_lg_u32 s{sW}, 0
    s_cbranch_scc1 {ok}
    {lab}:
    buffer_load_dwordx4 {v(T,4)}, v{vZ}, {WSr}, s{sT} offen sc1
    s_waitcnt vmcnt(0)
    v_min_u32 v{T}, v{T}, v{T+1}
    v_min_u32 v{T+2}, v{T+2}, v{T+3}
    v_min_u32 v{T}, v{T}, v{T+2}
    s_nop 0
    v_readfirstlane_b32 s{sT2}, v{T}
    s_cmp_gt_u32 s{sT2}, s{sSEG}
    s_cbranch_scc1 {ok}
    ''')
    spin(a)
    a(f's_sleep 4')
    a(f's_branch {lab}')
    a.label(ok)
    a('s_barrier')
    a(f's_lshr_b32 s{sT}, s{sNO}, 1')
    a(f's_add_u32 s{sT}, s{sT}, {KVM_KT}')
    for wp in range(4):
        a(f'buffer_load_dwordx4 {v(vM+4*wp,4)}, v{vL16}, {WSr}, s{sT} offen offset:{wp*1024} sc1')
    a('s_waitcnt vmcnt(0)')
    for wp in range(4):
        d = T + 8 * (wp & 1)
        a(m16(d, vM + 4 * wp, vSEL))
        a(m16(d + 4, vM + 4 * wp, vSEL + 2))
        for r in range(4):
            a(cvt(vKT + 4 * wp + r, d + 2 * r, d + 2 * r + 1))
    for wp in range(4):
        a(m32(vS + 8, v(vKT + 4 * wp, 4), v(vQ + 4 * wp, 4), None if wp == 0 else vS + 8))
    NEG = 0xff800000
    a(f'v_mov_b32 v{T}, 0x{NEG:x}')
    for t in range(2):
        for r in range(4):
            a(f'v_cmp_le_i32 vcc, {16*t+r}, v{vQI}')
            a(f'v_cndmask_b32 v{vS+4*t+r}, v{T}, v{vS+4*t+r}, vcc')
    mx, my = T + 1, T + 2
    a(f'''
    v_max3_f32 v{mx}, v{vS}, v{vS+1}, v{vS+2}
    v_max3_f32 v{mx}, v{mx}, v{vS+3}, v{vS+4}
    v_max3_f32 v{mx}, v{mx}, v{vS+5}, v{vS+6}
    v_max3_f32 v{mx}, v{mx}, v{vS+7}, v{vS+8}
    v_max_f32 v{mx}, v{mx}, v{vS+9}
    v_mov_b32 v{my}, v{mx}
    v_permlane32_swap_b32 v{mx}, v{my}
    v_max_f32 v{mx}, v{mx}, v{my}
    v_mov_b32 v{my}, v{mx}
    v_permlane16_swap_b32 v{mx}, v{my}
    v_max_f32 v{mx}, v{mx}, v{my}
    ''')
    for r in range(10):
        a(f'v_sub_f32 v{vS+r}, v{vS+r}, v{mx}')
        a(f'v_mul_f32 v{vS+r}, s{sC}, v{vS+r}')
        a(f'v_exp_f32 v{vS+r}, v{vS+r}')
    a(f'v_add_f32 v{mx}, v{vS}, v{vS+1}')
    for r in range(2, 10):
        a(f'v_add_f32 v{mx}, v{mx}, v{vS+r}')
    a(f'''
    v_mov_b32 v{my}, v{mx}
    v_permlane32_swap_b32 v{mx}, v{my}
    v_add_f32 v{mx}, v{mx}, v{my}
    v_mov_b32 v{my}, v{mx}
    v_permlane16_swap_b32 v{mx}, v{my}
    v_add_f32 v{mx}, v{mx}, v{my}
    v_rcp_f32 v{mx}, v{mx}
    ''')
    for r in range(10):
        a(f'v_mul_f32 v{vS+r}, v{vS+r}, v{mx}')
    for r in range(4):
        a(cvt(vP + r, vS + 2 * r, vS + 2 * r + 1))
    a(cvt(vPM, vS + 8, vS + 9))
    a(cvt(vPM + 3, vS + 8, vS + 9))
    l1, l2 = a.newlabel('W3_e'), a.newlabel('W3_e')
    a(f's_cmp_ge_u32 s{sW}, 2')
    a(f's_cbranch_scc1 {l1}')
    for i in range(2):
        a(f'v_mov_b32 v{T+4+2*i}, v{vM+4*i+2}')
        a(f'v_mov_b32 v{T+5+2*i}, v{vM+4*i+3}')
    a(f's_branch {l2}')
    a.label(l1)
    for i in range(2):
        a(f'v_mov_b32 v{T+4+2*i}, v{vM+8+4*i+2}')
        a(f'v_mov_b32 v{T+5+2*i}, v{vM+8+4*i+3}')
    a.label(l2)
    a('s_nop 1')
    a(f'''
    s_lshl_b32 s{sT}, s{sR}, 13
    s_add_u32 s{sT}, s{sT}, s{sNS}
    s_lshr_b32 s{sT2}, s{sW}, 1
    s_lshl_b32 s{sT2}, s{sT2}, 12
    s_add_u32 s{sT}, s{sT}, s{sT2}
    s_and_b32 s{sT2}, s{sW}, 1
    s_lshl_b32 s{sT2}, s{sT2}, 10
    s_add_u32 s{sT}, s{sT}, s{sT2}
    ''')
    for i in range(2):
        for u in range(2):
            a(m32(vO + 4 * u, v(vV + 4 * (2 * i + u), 4), v(vP, 4)))
        for u in range(2):
            a(m16(vO + 4 * u, T + 4 + 2 * i, vPM + 2 * u, vO + 4 * u))
        p = T + 8 + 4 * i
        for r in range(4):
            a(cvt(p + r, vO + 2 * r, vO + 2 * r + 1))
        a(f'buffer_store_dwordx4 {v(p,4)}, v{vL16}, {WSr}, s{sT} offen offset:{i*2048} sc1')
    a(f'''
    s_lshr_b32 s{sT}, s{sSEG}, 2
    s_lshl_b32 s{sT}, s{sT}, 2
    s_add_u32 s{sT}, s{sT}, {D_OC*4}
    s_and_b32 s{sT3}, s{sSEG}, 3
    s_lshl_b32 s{sT3}, s{sT3}, 3
    s_lshl_b32 s{sT2}, 1, s{sT3}
    ''')
    signal_add(a, sT, sT2)
    a(f's_lshl_b32 s{sNO}, s{sSEG}, 15')
    a(f'buffer_load_dwordx2 {v(T+16,2)}, v{vOO}, {srd(S_X)}, s{sNO} offen')

    def c2():
        a(f's_lshr_b32 s{sT2}, s{sT2}, s{sT3}')
        a(f's_and_b32 s{sT2}, s{sT2}, 0xff')
        a(f's_cmp_ge_u32 s{sT2}, 32')
    poll_dbg(a, sT, c2, T)
    vq.reset()
    a(f's_lshl_b32 s{sT}, s{sW}, 16')
    a(f's_add_u32 s{sT}, s{sT}, s{sNS}')
    bufs = [vB + 4 * i for i in range(20)] + [vB2 + 4 * i for i in range(24)]
    nb = len(bufs)

    def oissue(i):
        if i % 4 == 0 and i > 0:
            a(f's_add_u32 s{sT}, s{sT}, 4096')
        zload(bufs[i % nb], sT, (i % 4) * 1024, f'o{i}')
    for i in range(nb):
        oissue(i)
    for i in range(64):
        ks, t = i >> 1, i & 1
        vq.wait(f'o{i}')
        a(m32(vA + 8 + 4 * t, ar(ks * 4, 4), v(bufs[i % nb], 4), None if ks == 0 else vA + 8 + 4 * t))
        if i + nb < 64:
            oissue(i + nb)
    for i in range(4):
        a(f'ds_write_b128 v{vRW}, {v(vA+4*i,4)} offset:{i*1024}')
    a('s_waitcnt lgkmcnt(0)')
    a('s_barrier')
    skip = a.newlabel('W3_nofin')
    a(f's_cmp_ge_u32 s{sW}, 2')
    a(f's_cbranch_scc1 {skip}')
    a(f's_lshl_b32 s{sT}, s{sW}, 10')
    a(f'v_add_u32 v{T}, s{sT}, v{vL16}')
    R = vB
    for wv in range(4):
        a(f'ds_read_b128 {v(R+8*wv,4)}, v{T} offset:{wv*4096}')
        a(f'ds_read_b128 {v(R+8*wv+4,4)}, v{T} offset:{wv*4096+2048}')
    a('s_waitcnt lgkmcnt(0)')
    for r in range(8):
        a(f'v_add_f32 v{R+r}, v{R+r}, v{R+8+r}')
        a(f'v_add_f32 v{R+16+r}, v{R+16+r}, v{R+24+r}')
        a(f'v_add_f32 v{R+r}, v{R+r}, v{R+16+r}')
    X = T + 16
    for pr in range(2):
        a(cvt(T + 2, R + 2 * pr, R + 2 * pr + 1))
        a(cvt(T + 3, R + 4 + 2 * pr, R + 4 + 2 * pr + 1))
        a(f'v_lshlrev_b32 v{T+4}, 16, v{T+3}')
        a(f'v_and_b32 v{T+5}, 0xffff0000, v{T+3}')
        a(f'v_lshlrev_b32 v{T+6}, 16, v{X+pr}')
        a(f'v_and_b32 v{T+7}, 0xffff0000, v{X+pr}')
        a(f'v_add_f32 v{T+4}, v{T+4}, v{T+6}')
        a(f'v_add_f32 v{T+5}, v{T+5}, v{T+7}')
        a(cvt(T + 3, T + 4, T + 5))
        a(f'v_lshlrev_b32 v{T+4}, 16, v{T+3}')
        a(f'v_and_b32 v{T+5}, 0xffff0000, v{T+3}')
        a(f'v_lshlrev_b32 v{T+6}, 16, v{T+2}')
        a(f'v_and_b32 v{T+7}, 0xffff0000, v{T+2}')
        a(f'v_add_f32 v{T+4}, v{T+4}, v{T+6}')
        a(f'v_add_f32 v{T+5}, v{T+5}, v{T+7}')
        a(cvt(T + 8 + pr, T + 4, T + 5))
    a(f'buffer_store_dwordx2 {v(T+8,2)}, v{vOO}, {srd(S_OUT)}, s{sNO} offen')
    a.label(skip)
    a(f'''
    s_barrier
    s_add_u32 s{sSEG}, s{sSEG}, 7
    s_cmp_lt_u32 s{sSEG}, 64
    s_cbranch_scc1 W3_seg
    ''')
```

```python
from common import *
from asm import Q

sX, sR, sW = 52, 53, 54
sCB, sPAR, sI = 55, 56, 57
sT, sT2, sT3 = 58, 59, 60
sSPIN = 61
sXO = 62
S_NX = 64
sNO, sNS = 68, 69
sSEG, sC, sOB = 70, 71, 72
sDST, sDSS = 73, 74
sKIND = 75
sDN = 76
SPIN_MAX = 0x400000
import os
XSC = os.environ.get('XSC', ' sc1')
SSC = os.environ.get('SSC', ' sc1')


def v(i, n=1):
    return 'v%d' % i if n == 1 else 'v[%d:%d]' % (i, i + n - 1)


def ar(i, n=1):
    return 'a%d' % i if n == 1 else 'a[%d:%d]' % (i, i + n - 1)


def cvt(d, x, y):
    return f'v_cvt_pk_bf16_f32 v{d}, v{x}, v{y}'


def spin(a):
    a(f's_add_u32 s{sSPIN}, s{sSPIN}, 1')
    a(f's_cmp_gt_u32 s{sSPIN}, 0x{SPIN_MAX:x}')
    a('s_cbranch_scc1 W_fail')


vL16, vZ, vC, vG = 0, 1, 2, 3
vLH = 4
vTMP = 10
vXF = 32
vACC = 64
vPK = 96
vWF = 128


def poll_dbg(a, word_s, cond, tmpv, sleep=8, x2=False, srdb=None):
    lab = a.newlabel('W_poll')
    ok = a.newlabel('W_pok')
    a(f's_cmp_lg_u32 s{sW}, 0')
    a(f's_cbranch_scc1 {ok}')
    a.label(lab)
    if x2:
        a(f'buffer_load_dwordx2 {v(tmpv,2)}, v{vZ}, {srd(S_DBG)}, s{word_s} offen sc1')
    else:
        a(f'buffer_load_dword v{tmpv}, v{vZ}, {srd(S_DBG)}, s{word_s} offen sc1')
    a('s_waitcnt vmcnt(0)')
    a(f'v_readfirstlane_b32 s{sT2}, v{tmpv}')
    if x2:
        a(f'v_readfirstlane_b32 s{sT3}, v{tmpv+1}')
    cond()
    a(f's_cbranch_scc1 {ok}')
    spin(a)
    a(f's_sleep {sleep}')
    a(f's_branch {lab}')
    a.label(ok)
    a('s_barrier')


def signal_add(a, off_s, val_s, op='add'):
    lab = a.newlabel('W_sig')
    a('s_waitcnt vmcnt(0)')
    a('s_barrier')
    a(f'''
    s_cmp_lg_u32 s{sW}, 0
    s_cbranch_scc1 {lab}
    v_mov_b32 v{vTMP}, s{val_s}
    s_mov_b64 exec, 1
    buffer_atomic_{op} v{vTMP}, v{vZ}, {srd(S_DBG)}, s{off_s} offen
    s_mov_b64 exec, -1
    {lab}:
    ''')


def emit_ln(a):
    WSr = srd(S_WS)
    dp = 'row_mask:0xf bank_mask:0xf'
    a(f'''
    s_lshl_b32 s{sT}, s{sX}, 5
    s_add_u32 s{sT}, s{sT}, s{sR}
    s_cmp_ge_u32 s{sT}, 128
    s_cbranch_scc1 W_noln
    s_lshl_b32 s{sT2}, s{sT}, 14
    s_lshl_b32 s{sT3}, s{sW}, 12
    s_add_u32 s{sT3}, s{sT2}, s{sT3}
    v_lshlrev_b32 v{vTMP}, 10, v{vG}
    v_lshl_add_u32 v{vTMP}, v{vC}, 4, v{vTMP}
    ''')
    X = vXF
    F = vACC
    for i in range(4):
        a(f'buffer_load_dwordx4 {v(X+4*i,4)}, v{vTMP}, {srd(S_X)}, s{sT3} offen offset:{256*i}')
    so = vTMP + 5
    a(f'''
    v_lshrrev_b32 v{so}, 2, v{vC}
    v_lshlrev_b32 v{so}, 10, v{so}
    v_and_b32 v{vTMP+6}, 3, v{vC}
    v_lshl_add_u32 v{so}, v{vTMP+6}, 8, v{so}
    v_lshl_add_u32 v{so}, v{vG}, 4, v{so}
    s_lshl_b32 s{sT3}, s{sW}, 6
    s_add_u32 s{sT2}, s{sT2}, s{sT3}
    s_add_u32 s{sT2}, s{sT2}, {XN}
    s_waitcnt vmcnt(0)
    ''')
    for i in range(16):
        a(f'v_lshlrev_b32 v{F+2*i}, 16, v{X+i}')
        a(f'v_and_b32 v{F+2*i+1}, 0xffff0000, v{X+i}')
    s_, q_, t_ = vTMP + 1, vTMP + 2, vTMP + 3
    a(f'v_add_f32 v{s_}, v{F}, v{F+1}')
    for i in range(2, 32):
        a(f'v_add_f32 v{s_}, v{s_}, v{F+i}')

    def rowsum(r):
        for sh in (1, 2, 4, 8):
            a(f'v_add_f32_dpp v{r}, v{r}, v{r} row_ror:{sh} {dp}')
    rowsum(s_)
    a(f'v_mul_f32 v{s_}, 0x{f32bits(1.0/512):x}, v{s_}')
    a(f'v_sub_f32 v{t_}, v{F}, v{s_}')
    a(f'v_mul_f32 v{q_}, v{t_}, v{t_}')
    for i in range(1, 32):
        a(f'v_sub_f32 v{t_}, v{F+i}, v{s_}')
        a(f'v_fmac_f32 v{q_}, v{t_}, v{t_}')
    rowsum(q_)
    a(f'v_mul_f32 v{q_}, 0x{f32bits(1.0/512):x}, v{q_}')

    def rnd(r):
        a(cvt(r, r, r))
        a(f'v_lshlrev_b32 v{r}, 16, v{r}')
    rnd(s_)
    rnd(q_)
    a(f'v_add_f32 v{q_}, 0x{f32bits(1e-5):x}, v{q_}')
    rnd(q_)
    a(f'v_sqrt_f32 v{q_}, v{q_}')
    rnd(q_)
    a(f'v_rcp_f32 v{t_}, v{q_}')
    a(f'v_fma_f32 v{vTMP+4}, -v{q_}, v{t_}, 1.0')
    a(f'v_fma_f32 v{t_}, v{vTMP+4}, v{t_}, v{t_}')
    for i in range(16):
        a(f'v_sub_f32 v{F+2*i}, v{F+2*i}, v{s_}')
        a(f'v_sub_f32 v{F+2*i+1}, v{F+2*i+1}, v{s_}')
        a(cvt(X + i, F + 2 * i, F + 2 * i + 1))
        a(f'v_lshlrev_b32 v{F+2*i}, 16, v{X+i}')
        a(f'v_and_b32 v{F+2*i+1}, 0xffff0000, v{X+i}')
        a(f'v_mul_f32 v{F+2*i}, v{F+2*i}, v{t_}')
        a(f'v_mul_f32 v{F+2*i+1}, v{F+2*i+1}, v{t_}')
        a(cvt(X + i, F + 2 * i, F + 2 * i + 1))
    for i in range(4):
        a(f'buffer_store_dwordx4 {v(X+4*i,4)}, v{so}, {WSr}, s{sT2} offen sc1')
        if i < 3:
            a(f's_add_u32 s{sT2}, s{sT2}, 4096')
    a.label('W_noln')


def emit_ln_signal(a):
    lab = a.newlabel('W_sig')
    a(f'''
    s_lshl_b32 s{sT}, s{sX}, 5
    s_add_u32 s{sT}, s{sT}, s{sR}
    s_cmp_ge_u32 s{sT}, 128
    s_cbranch_scc1 {lab}
    s_lshr_b32 s{sT}, s{sT}, 4
    s_lshr_b32 s{sT2}, s{sT}, 2
    s_lshl_b32 s{sT2}, s{sT2}, 2
    s_add_u32 s{sT2}, s{sT2}, {D_LN*4}
    s_and_b32 s{sT}, s{sT}, 3
    s_lshl_b32 s{sT}, s{sT}, 3
    s_lshl_b32 s{sT}, 1, s{sT}
    s_waitcnt vmcnt(0)
    s_barrier
    s_cmp_lg_u32 s{sW}, 0
    s_cbranch_scc1 {lab}
    v_mov_b32 v{vTMP}, s{sT}
    s_mov_b64 exec, 1
    buffer_atomic_add v{vTMP}, v{vZ}, {srd(S_DBG)}, s{sT2} offen
    s_mov_b64 exec, -1
    {lab}:
    ''')


def emit_wload_issue(a):
    y, z, dn = vTMP, vTMP + 1, vTMP + 8
    l1, l2, l3, dnl = (a.newlabel('W_nb') for _ in range(4))

    def cp(src):
        for i in range(4):
            a(f's_mov_b32 s{S_NX+i}, s{src+i}')
    a(f'''
    s_lshr_b32 s{sT}, s{sW}, 1
    s_lshl_b32 s{sT}, s{sT}, 2
    v_or_b32 v{y}, s{sT}, v{vG}
    v_lshlrev_b32 v{y}, 1, v{y}
    v_xor_b32 v{y}, v{y}, v{vC}
    v_lshlrev_b32 v{y}, 4, v{y}
    s_lshl_b32 s{sT}, s{sW}, 2
    v_add_u32 v{z}, s{sT}, v{vG}
    s_lshl_b32 s{sOB}, s{sW}, 10
    s_lshl_b32 s{sT3}, s{sW}, 11
    s_cmp_ge_u32 s{sCB}, 96
    s_cbranch_scc1 {l3}
    s_and_b32 s{sNO}, s{sCB}, 31
    s_lshl_b32 s{sDST}, s{sNO}, 13
    s_add_u32 s{sDST}, s{sDST}, s{sT3}
    s_lshl_b32 s{sT3}, s{sPAR}, 18
    s_add_u32 s{sDST}, s{sDST}, s{sT3}
    s_mov_b32 s{sDSS}, 0x80000
    s_lshl_b32 s{sNO}, s{sNO}, 8
    s_mov_b32 s{sNS}, {16*8192}
    v_lshl_add_u32 v{dn}, v{z}, 13, v{y}
    s_cmp_ge_u32 s{sCB}, 64
    s_cbranch_scc1 {l2}
    s_cmp_ge_u32 s{sCB}, 32
    s_cbranch_scc1 {l1}
    s_add_u32 s{sDST}, s{sDST}, {KX}
    s_mov_b32 s{sKIND}, 0
    ''')
    cp(S_WK)
    a(f's_branch {dnl}')
    a.label(l1)
    a(f's_add_u32 s{sDST}, s{sDST}, {VX}')
    a(f's_mov_b32 s{sKIND}, 1')
    cp(S_WV)
    a(f's_branch {dnl}')
    a.label(l2)
    a(f's_add_u32 s{sDST}, s{sDST}, {QX}')
    a(f's_mov_b32 s{sKIND}, 0')
    cp(S_WQ)
    a(f's_branch {dnl}')
    a.label(l3)
    a(f'''
    s_sub_u32 s{sDST}, s{sCB}, 64
    s_lshl_b32 s{sDST}, s{sDST}, 13
    s_add_u32 s{sDST}, s{sDST}, s{sT3}
    s_mul_i32 s{sT3}, s{sPAR}, {ZS}
    s_add_u32 s{sDST}, s{sDST}, s{sT3}
    s_add_u32 s{sDST}, s{sDST}, {ZX}
    s_mov_b32 s{sDSS}, {2*ZS}
    s_sub_u32 s{sNO}, s{sCB}, 96
    s_lshl_b32 s{sNO}, s{sNO}, 8
    s_mov_b32 s{sNS}, {16*3584}
    v_mul_u32_u24 v{dn}, 3584, v{z}
    v_add_u32 v{dn}, v{dn}, v{y}
    s_mov_b32 s{sKIND}, 2
    ''')
    cp(S_W1)
    a.label(dnl)
    for j in range(32):
        a(f's_add_u32 m0, s{sOB}, {j*4096}')
        a(f'buffer_load_dwordx4 v{dn}, {srd(S_NX)}, s{sNO} offen lds')
        a(f's_add_u32 s{sNO}, s{sNO}, s{sNS}')


def emit_wload_consume(a):
    y, z, f3 = vTMP, vTMP + 1, vTMP + 2
    tb = vTMP + 4
    a(f'''
    v_lshrrev_b32 v{y}, 2, v{vC}
    v_and_b32 v{z}, 1, v{vG}
    v_lshl_add_u32 v{f3}, v{z}, 2, v{y}
    v_lshl_add_u32 v{y}, v{vG}, 3, v{y}
    v_lshlrev_b32 v{y}, 8, v{y}
    v_and_b32 v{z}, 3, v{vC}
    v_lshl_add_u32 v{y}, v{z}, 3, v{y}
    s_lshl_b32 s{sT}, s{sW}, 1
    v_xor_b32 v{z}, s{sT}, v{f3}
    v_lshl_add_u32 v{tb}, v{z}, 5, v{y}
    v_add_u32 v{tb+1}, 0x10000, v{tb}
    v_xor_b32 v{tb+2}, 32, v{tb}
    v_add_u32 v{tb+3}, 0x10000, v{tb+2}
    s_waitcnt vmcnt(0)
    s_barrier
    ''')
    for u in range(2):
        for ks in range(16):
            for hf in range(2):
                off = (32 * ks + 4 * hf) * 256
                a(f'ds_read_b64_tr_b16 {v(vWF+(u*16+ks)*4+2*hf,2)}, v{tb+2*u+(1 if off >= 65536 else 0)} offset:{off & 0xffff}')
    a('s_waitcnt lgkmcnt(0)')
    a('s_barrier')


def x_dma(slot):
    WSr = srd(S_WS)
    out = []
    for hb in range(2):
        out.append(f's_add_u32 m0, s{sOB}, {slot*32768 + hb*4096}')
        for j in range(4):
            out.append(f'buffer_load_dwordx4 v{vL16}, {WSr}, s{sXO} offen offset:{j*1024}{XSC} lds')
        out.append(f's_add_u32 s{sXO}, s{sXO}, {4096 if hb == 0 else 65536 - 4096}')
    return out


def ln_wait(a):
    a(f's_mov_b32 s{sT}, {D_LN*4}')

    def cond():
        a(f's_and_b32 s{sT2}, s{sT2}, s{sT3}')
        a(f's_cmp_eq_u32 s{sT2}, 0x10101010')
    poll_dbg(a, sT, cond, vTMP, sleep=16, x2=True)


def epilogue(kind, ab):
    WSr = srd(S_WS)
    A = lambda t, u: vACC + ab * 16 + (t * 2 + u) * 4
    out = []
    for i in range(2):
        srcs = [A(0, i), A(1, i)] if kind == 1 else [A(i, 0), A(i, 1)]
        if kind == 2:
            for sreg in srcs:
                for r in range(4):
                    x = sreg + r
                    t0 = vTMP + 10 + (r & 3)
                    out += [cvt(x, x, x),
                            f'v_lshlrev_b32 v{x}, 16, v{x}',
                            f'v_mul_f32 v{t0}, 0x{f32bits(-math.log2(math.e)):x}, v{x}',
                            f'v_exp_f32 v{t0}, v{t0}',
                            f'v_add_f32 v{t0}, 1.0, v{t0}',
                            f'v_rcp_f32 v{t0}, v{t0}',
                            f'v_mul_f32 v{x}, v{x}, v{t0}']
        p = vPK + 4 * i
        out += [cvt(p, srcs[0], srcs[0] + 1), cvt(p + 1, srcs[0] + 2, srcs[0] + 3),
                cvt(p + 2, srcs[1], srcs[1] + 1), cvt(p + 3, srcs[1] + 2, srcs[1] + 3),
                f'buffer_store_dwordx4 {v(p,4)}, v{vL16}, {WSr}, s{sDST} offen offset:{i*1024}{SSC}']
    out.append(f's_mov_b32 s{sDST}, s{sDN}')
    out.append(f's_add_u32 s{sDN}, s{sDN}, s{sDSS}')
    return out


def emit_stream(a, kind, opts):
    tag = 'kvh'[kind]
    LOOP = f'W_str_{tag}'

    def xrd(slot, i):
        ks, t = i >> 1, i & 1
        off = slot * 32768 + (t * 16 + ks) * 1024
        base = vL16 if off < 65536 else vLH
        return f'ds_read_b128 {v(vXF+4*(i%8),4)}, v{base} offset:{off & 0xffff}'
    a.label(LOOP)
    for q in range(4):
        ab = q & 1
        a('s_waitcnt vmcnt(%d)' % (10 if q == 2 else 18))
        a('s_barrier')
        if q == 2:
            lab = a.newlabel('W_nosig')
            a(f'''
            s_cmp_lg_u32 s{sW}, 0
            s_cbranch_scc1 {lab}
            s_cmp_eq_u32 s{sI}, 0
            s_cbranch_scc1 {lab}
            ''')
            emit_sig(a)
            a.label(lab)
        side = x_dma((q + 3) & 3)
        epi = epilogue(kind, ab ^ 1)
        lq = Q(a, 'lgkmcnt', 15)
        for i in range(6):
            lq.issue(xrd(q, i), i)
        n = 0
        per = 2 if kind == 2 else 1
        for i in range(32):
            ks, t = i >> 1, i & 1
            lq.wait(i)
            for u in range(2):
                D = v(vACC + ab * 16 + (t * 2 + u) * 4, 4)
                C = '0' if ks == 0 else D
                W = v(vWF + (u * 16 + ks) * 4, 4)
                Xr = v(vXF + 4 * (i % 8), 4)
                if kind == 1:
                    a(f'v_mfma_f32_16x16x32_bf16 {D}, {Xr}, {W}, {C}')
                else:
                    a(f'v_mfma_f32_16x16x32_bf16 {D}, {W}, {Xr}, {C}')
                n += 1
                if u == 1 and i + 6 < 32:
                    lq.issue(xrd(q, i + 6), i + 6)
                if u == 0 and side and n > 2:
                    a(side.pop(0))
                if n > 2:
                    for _ in range(per):
                        if epi:
                            a(epi.pop(0))
        for s_ in side + epi:
            a(s_)
    if opts.get('tl'):
        for sl, val in ((4, 0), (5, 1), (6, 3), (7, 5)):
            lb = a.newlabel('W_tl')
            a(f's_cmp_lg_u32 s{sI}, {val}')
            a(f's_cbranch_scc1 {lb}')
            tl(a, opts, sl, vZ, vTMP, None)
            a.label(lb)
    a(f'''
    s_add_u32 s{sI}, s{sI}, 1
    s_cmp_lt_u32 s{sI}, 8
    s_cbranch_scc1 {LOOP}
    ''')
    a.fence()
    for s_ in epilogue(kind, 1):
        a(s_)
    a('s_branch W_str_end')


def emit_sig(a):
    a(f'''
    s_mov_b64 exec, 1
    s_lshl_b32 s{sT}, s{sI}, 2
    s_add_u32 s{sT}, s{sT}, {D_QH*4 - 4}
    s_cmp_lt_u32 s{sCB}, 64
    s_cselect_b32 s{sT2}, 0x10001, 1
    v_mov_b32 v{vTMP}, s{sT2}
    buffer_atomic_add v{vTMP}, v{vZ}, {srd(S_DBG)}, s{sT} offen
    s_mov_b64 exec, -1
    s_nop 3
    ''')


def emit_w_role(a, opts):
    a('; ================= worker role =================')
    a(f'''
    s_sub_u32 s{sX}, s90, 1
    s_mov_b32 s{sR}, s91
    s_mov_b32 s{sSPIN}, 0
    v_lshrrev_b32 v{vTMP}, 6, v0
    s_nop 0
    v_readfirstlane_b32 s{sW}, v{vTMP}
    v_and_b32 v{vC}, 15, v0
    v_bfe_u32 v{vG}, v0, 4, 2
    v_and_b32 v{vTMP}, 63, v0
    v_lshlrev_b32 v{vL16}, 4, v{vTMP}
    v_add_u32 v{vLH}, 0x10000, v{vL16}
    v_mov_b32 v{vZ}, 0
    s_lshl_b32 s{sT}, s{sX}, 5
    s_add_u32 s{sT}, s{sT}, s{sR}
    s_lshr_b32 s{sCB}, s{sT}, 1
    s_and_b32 s{sPAR}, s{sT}, 1
    s_cmp_ge_u32 s{sCB}, 110
    s_cbranch_scc1 W_gemm_done
    ''')
    emit_ln(a)
    emit_ln_signal(a)
    emit_wload_issue(a)
    tl(a, opts, 1, vZ, vTMP, None)
    emit_wload_consume(a)
    tl(a, opts, 2, vZ, vTMP, None)
    a(f'''
    s_mov_b32 s{sI}, 0
    s_lshl_b32 s{sOB}, s{sW}, 13
    s_lshl_b32 s{sXO}, s{sPAR}, 15
    s_add_u32 s{sXO}, s{sXO}, s{sOB}
    s_add_u32 s{sXO}, s{sXO}, {XN}
    s_mov_b32 s{sDN}, s{sDST}
    s_mov_b32 s{sDST}, 0x7FFF0000
    ''')
    ln_wait(a)
    tl(a, opts, 3, vZ, vTMP, None)
    for q in range(3):
        for s_ in x_dma(q):
            a(s_)
    for i in range(32):
        a(f'v_mov_b32 v{vACC+i}, 0')
    a('s_waitcnt vmcnt(16)')
    a(f'''
    s_cmp_eq_u32 s{sKIND}, 1
    s_cbranch_scc1 W_str_v
    s_cmp_eq_u32 s{sKIND}, 2
    s_cbranch_scc1 W_str_h
    ''')
    for kind in range(3):
        emit_stream(a, kind, opts)
    a.label('W_str_end')
    lab = a.newlabel('W_nosig')
    a(f'''
    s_waitcnt vmcnt(0)
    s_barrier
    s_cmp_lg_u32 s{sW}, 0
    s_cbranch_scc1 {lab}
    ''')
    emit_sig(a)
    a.label(lab)
    a.label('W_gemm_done')
    tl(a, opts, 8, vZ, vTMP, None)
    if not opts.get('no_p3'):
        import wphase3
        wphase3.emit_phase3(a, opts)
        tl(a, opts, 10, vZ, vTMP, None)
    a('s_endpgm')
    a.label('W_fail')
    a(f'''
    v_mov_b32 v{vTMP}, 0x100
    s_mov_b32 s{sT}, {D_ERR*4}
    s_mov_b64 exec, 1
    buffer_atomic_add v{vTMP}, v{vZ}, {srd(S_DBG)}, s{sT} offen
    s_waitcnt vmcnt(0)
    s_endpgm
    ''')
```

```python
import sys
sys.path.insert(0, 'gen')
from asm import Asm
from common import *
import rrole10 as rrole

NAME = 'parallel_sum__memory_aug_recurrent_mem_tr__dense_activation_silu__prompt'
HEADER = open('cdna_kernels/%s.s.ref' % NAME).read().split('; Override launch')[0]


def prologue(a):
    a('''
    s_load_dwordx16 s[64:79], s[0:1], 0
    s_load_dwordx8 s[80:87], s[0:1], 64
    s_load_dwordx2 s[88:89], s[0:1], 96
    s_getreg_b32 s90, hwreg(HW_REG_XCC_ID)
    s_and_b32 s90, s90, 7
    s_waitcnt lgkmcnt(0)
    ''')
    tab = [(S_X, 64, 2097152), (S_M0, 66, 8192), (S_WQ, 68, 4194304), (S_WK, 70, 4194304), (S_WV, 72, 4194304),
           (S_WO, 74, 4194304), (S_W1, 80, 1835008), (S_W2, 82, 1835008), (S_OUT, 84, 2097152), (S_DBG, 86, 256),
           (S_WS, 88, WS_BYTES)]
    for d, p, n in tab:
        a(f's_mov_b32 s{d}, s{p}')
        a(f's_and_b32 s{d+1}, s{p+1}, 0xffff')
        a(f's_mov_b32 s{d+2}, {n}')
        a(f's_mov_b32 s{d+3}, 0x20000')
    a(f'''
    s_mov_b32 s{rrole.sXCC}, s90
    v_cmp_eq_u32 vcc, 0, v0
    s_and_saveexec_b64 s[92:93], vcc
    s_cbranch_execz L_role_skip
    s_lshl_b32 s91, s90, 2
    v_mov_b32 v1, 1
    v_mov_b32 v2, s91
    buffer_atomic_add v1, v2, {srd(S_DBG)}, 0 offen sc0
    s_waitcnt vmcnt(0)
    v_mov_b32 v2, 0
    ds_write_b32 v2, v1
    s_waitcnt lgkmcnt(0)
    L_role_skip:
    s_mov_b64 exec, s[92:93]
    s_barrier
    v_mov_b32 v2, 0
    ds_read_b32 v1, v2
    s_waitcnt lgkmcnt(0)
    v_readfirstlane_b32 s91, v1
    s_barrier
    ''')
    a('s_lshl_b32 s95, s90, 5')
    a('s_add_u32 s95, s95, s91')


def add_trace(a, opts):
    from asm import Ins
    start, step, n = opts['trace'][:3]
    skip = opts['trace'][3] if len(opts['trace']) > 3 else 0
    items = a.items
    i0 = items.index(start + ':')
    out = items[:i0 + 1]
    cnt = 0
    m = 0
    names = []
    for it in items[i0 + 1:]:
        if m < n and not isinstance(it, str):
            if cnt >= skip and (cnt - skip) % step == 0:
                out.append(Ins(f's_memtime s[{16+2*m}:{17+2*m}]'))
                names.append('%3d ' % cnt + it.text[:56])
                m += 1
            cnt += 1
        out.append(it)
        if it == 'R_done_f:':
            out.append(Ins('s_waitcnt lgkmcnt(0)'))
            out.append(Ins(f's_lshl_b32 s63, s52, 9'))
            out.append(Ins(f's_lshl_b32 s64, s53, 7'))
            out.append(Ins(f's_add_u32 s63, s63, s64'))
            out.append(Ins(f's_add_u32 s63, s63, {STAMP + 0x4000}'))
            for j in range(n):
                out.append(Ins(f'v_mov_b32 v13, s{16+2*j}'))
                out.append(Ins(f'buffer_store_dword v13, v17, s[8:11], s63 offen offset:{4*j}'))
    a.items = out
    import json
    json.dump(names, open(sys.argv[1].replace('.s', '.json'), 'w'))


def build(opts):
    a = Asm()
    prologue(a)
    a(f'''
    s_cmp_ge_u32 s91, 32
    s_cbranch_scc1 L_exit
    ''')
    a('v_mov_b32 v2, 0')
    tl(a, opts, 0, 2, 1, None)
    a(f'''
    s_cmp_lg_u32 s90, 0
    s_cbranch_scc1 L_worker
    s_mov_b32 s{rrole.sH}, s91
    ''')
    if opts.get('no_r'):
        a('s_endpgm')
    else:
        rrole.emit_r_role(a, opts)
    a.label('L_worker')
    if opts.get('workers'):
        import wrole2 as wrole
        wrole.emit_w_role(a, opts)
    a.label('L_exit')
    a('s_endpgm')
    if opts.get('trace'):
        add_trace(a, opts)
    body = a.render()
    txt = HEADER + '; @launch grid=(256,1,1) block=(256,1,1) lds=163840\n'
    txt += f'''.amdgcn_target "amdgcn-amd-amdhsa--gfx950"
.text
.globl {NAME}_kernel
.p2align 8
.type {NAME}_kernel,@function
{NAME}_kernel:
'''
    txt += body
    txt += f'''.section .rodata,"a"
.p2align 6
.amdhsa_kernel {NAME}_kernel
  .amdhsa_next_free_vgpr 512
  .amdhsa_next_free_sgpr 102
  .amdhsa_accum_offset 256
  .amdhsa_group_segment_fixed_size 0
  .amdhsa_kernarg_size 104
  .amdhsa_user_sgpr_count 2
  .amdhsa_user_sgpr_kernarg_segment_ptr 1
  .amdhsa_system_sgpr_workgroup_id_x 1
.end_amdhsa_kernel
'''
    return txt, a


if __name__ == '__main__':
    import json
    opts = json.loads(sys.argv[2]) if len(sys.argv) > 2 else {}
    txt, a = build(opts)
    open(sys.argv[1], 'w').write(txt)
    print('written', sys.argv[1], 'lines', txt.count('\n'), 'auto nops', a.auto_nops)
```

```python
from common import *
from asm import Q

L_MEM0, L_EX, L_WO = 0, 16384, 32768
L_ZERO = L_EX + 1024
L_KVB = L_WO
SENT = 0xFFBFFFBF

sH, sW, sS, sSPIN = 52, 53, 54, 55
sPLD, sMCW, sMNX, sMCU, sMTH = 57, 58, 59, 60, 61
sKX, sT, sT2, sKVM = 62, 63, 64, 65
sXCC = 66
sM0 = 67
sMB = 68
sCOL = 70
sC = 78
sST = 80
sFLG = 84
sSENT, sBIG, sPRG, sPPO = 86, 87, 88, 89
sPS = 2
PST_S = [2, 3, 4, 5, 6, 7, 56, 100]
sMPO = 101
sKVV = 6
sAO, sWO = 36, 40
sKVL = 1

vL16, vIDX, vMRD, vEXW, vOR, vPST, vPLD, vMST, vWOB, vRV = range(10)
vRL = 10
vWOH, vX = 12, 13
vPM = 14
vSEL = 16
vONE = 20
vP = 24
vL = 28
vAW = 32
vKV = 48
vT = 52
vQ, vK, vV = 64, 72, 80
vKX, vVX = 88, 96
vWS = 104
vWV = 128

SPIN_MAX = 0x200000


def v(i, n=1):
    return 'v%d' % i if n == 1 else 'v[%d:%d]' % (i, i + n - 1)


def AW(k):
    return vAW + 4 * (k % 4)


def WQ(u, k):
    b = (u * 8 + k) * 8
    return 'a[%d:%d]' % (b, b + 7)


def WK(u, k):
    b = 128 + (u * 8 + k) * 8
    return 'a[%d:%d]' % (b, b + 7)


def WV(u, k):
    return v(vWV + (u * 8 + k) * 8, 8)


def mpos(k):
    return k


def smf(d, a, b):
    return 'v_smfmac_f32_16x16x64_bf16 %s, %s, %s, v%d' % (v(d, 4), v(a, 4), b, vIDX)


def m16(d, a, b, c=None):
    return 'v_mfma_f32_16x16x16_bf16 %s, %s, %s, %s' % (v(d, 4), v(a, 2), v(b, 2), '0' if c is None else v(c, 4))


def m32(d, a, b, c=None):
    return 'v_mfma_f32_16x16x32_bf16 %s, %s, %s, %s' % (v(d, 4), v(a, 4), v(b, 4), '0' if c is None else v(c, 4))


def cvt(d, x, y):
    return f'v_cvt_pk_bf16_f32 v{d}, v{x}, v{y}'


def pka(d, x, y):
    return f'v_pk_add_f32 {v(d,2)}, {v(x,2)}, {v(y,2)}'


def spin(a, fail):
    a('s_add_u32 s%d, s%d, 1' % (sSPIN, sSPIN))
    a('s_cmp_gt_u32 s%d, 0x%x' % (sSPIN, SPIN_MAX))
    a('s_cbranch_scc1 %s' % fail)


def stamp(a, opts, i):
    if opts.get('abs'):
        lb = a.newlabel('R_ab')
        a(f's_cmp_lg_u32 s{sS}, {41 if i == 5 else 40}')
        a(f's_cbranch_scc1 {lb}')
        a(f's_memrealtime s[{16+2*i}:{17+2*i}]')
        a.label(lb)
        return
    if not opts.get('fine'):
        return
    a(f'''
    s_memtime s[{sST+2}:{sST+3}]
    s_waitcnt lgkmcnt(0)
    s_sub_u32 s{sFLG}, s{sST+2}, s{sFLG+1}
    s_add_u32 s{90+i}, s{90+i}, s{sFLG}
    s_mov_b32 s{sFLG+1}, s{sST+2}
    ''')


def emit_r_init(a, opts):
    a('; ================= R role init =================')
    t = 104
    a(f'''
    v_lshrrev_b32 v{t}, 6, v0
    s_nop 0
    v_readfirstlane_b32 s{sW}, v{t}
    v_and_b32 v{t+1}, 63, v0
    v_and_b32 v{t+2}, 15, v0
    v_bfe_u32 v{t+3}, v0, 4, 2
    v_lshlrev_b32 v{vL16}, 4, v{t+1}
    ''')
    c, g = t + 2, t + 3
    x, y, z = t + 4, t + 5, t + 6
    a(f'''
    v_bfe_u32 v{x}, v{c}, 1, 1          ; b
    v_mul_u32_u24 v{y}, 0xAAAA, v{x}
    v_add_u32 v{vIDX}, 0x4444, v{y}
    ; MRD = g*256 + b*128 + m*16 , m = 2*(c>>2) + (c&1)
    v_lshlrev_b32 v{y}, 8, v{g}
    v_lshl_add_u32 v{y}, v{x}, 7, v{y}
    v_lshrrev_b32 v{z}, 2, v{c}
    v_lshl_add_u32 v{y}, v{z}, 5, v{y}
    v_and_b32 v{z}, 1, v{c}
    v_lshl_add_u32 v{vMRD}, v{z}, 4, v{y}
    s_lshl_b32 s{sT}, s{sW}, 12
    s_add_u32 s{sT}, s{sT}, {L_EX}
    v_add_u32 v{vEXW}, s{sT}, v{vL16}
    v_xor_b32 v{vOR}, 0x1000, v{vEXW}
    s_lshl_b32 s{sT}, s{sW}, 15
    s_add_u32 s{sT}, s{sT}, {L_WO}
    v_add_u32 v{vWOB}, s{sT}, v{vL16}
    ; PST = (8w + 2g + (c>>3))*2048 + h*64 + (c&7)*8
    s_lshl_b32 s{sT}, s{sH}, 6
    s_lshl_b32 s{sT2}, s{sW}, 14
    s_add_u32 s{sT}, s{sT}, s{sT2}
    v_lshrrev_b32 v{y}, 3, v{c}
    v_lshl_add_u32 v{y}, v{g}, 1, v{y}
    v_lshlrev_b32 v{y}, 11, v{y}
    v_and_b32 v{z}, 7, v{c}
    v_lshl_add_u32 v{y}, v{z}, 3, v{y}
    v_add_u32 v{vPST}, s{sT}, v{y}
    s_lshl_b32 s{sT}, s{sH}, 11
    s_lshl_b32 s{sT2}, s{sW}, 16
    s_add_u32 s{sT}, s{sT}, s{sT2}
    v_add_u32 v{vPLD}, s{sT}, v{vL16}
    ''')
    m0o = t + 7
    a(f'''
    s_lshl_b32 s{sT}, s{sW}, 11
    s_lshl_b32 s{sT2}, s{sH}, 5                ; (gA*16 + 4*((h>>1)&3) + 2*(h&1))*16 = h*32
    s_add_u32 s{sT}, s{sT}, s{sT2}
    s_and_b32 s{sT2}, s{sH}, 6
    v_bfe_u32 v{z}, v{c}, 2, 1
    v_add_u32 v{m0o}, s{sT2}, v{z}             ; m
    v_lshlrev_b32 v{y}, 4, v{z}
    v_lshl_add_u32 v{y}, v{x}, 10, v{y}        ; + t*1024   (x = (c>>1)&1)
    v_lshl_add_u32 v{y}, v{g}, 2, v{y}
    v_add_u32 v{y}, s{sT}, v{y}
    v_and_b32 v{z}, 9, v{c}
    v_cmp_eq_u32 vcc, 0, v{z}
    v_mov_b32 v{z}, 0x40000000
    v_cndmask_b32 v{vMST}, v{z}, v{y}, vcc
    s_lshl_b32 s{sT}, s{sW}, 8
    s_lshr_b32 s{sT2}, s{sH}, 3
    s_lshl_b32 s{sT2}, s{sT2}, 5
    s_add_u32 s{sT}, s{sT}, s{sT2}
    s_and_b32 s{sT2}, s{sH}, 1
    s_lshl_b32 s{sT2}, s{sT2}, 4
    s_add_u32 s{sT}, s{sT}, s{sT2}
    v_lshlrev_b32 v{m0o}, 10, v{m0o}
    v_lshl_add_u32 v{m0o}, v{x}, 7, v{m0o}
    v_lshl_add_u32 v{m0o}, v{g}, 2, v{m0o}
    v_add_u32 v{m0o}, s{sT}, v{m0o}
    buffer_load_dword v{t+8}, v{m0o}, {srd(S_M0)}, 0 offen
    ''')
    a(f'''
    v_bfe_u32 v{y}, v{c}, 2, 1
    v_lshlrev_b32 v{y}, 4, v{y}
    v_mov_b32 v{z}, 0x3F80
    v_lshlrev_b32 v{vRV}, v{y}, v{z}
    ; SEL: S = (g == c>>2) ? ((c&1) ? 0x3F800000 : 0x3F80) : 0
    v_and_b32 v{y}, 1, v{c}
    v_lshlrev_b32 v{y}, 4, v{y}
    v_lshlrev_b32 v{y}, v{y}, v{z}
    v_lshrrev_b32 v{z}, 2, v{c}
    v_cmp_eq_u32 vcc, v{z}, v{g}
    v_mov_b32 v{vSEL+1}, 0
    v_mov_b32 v{vSEL+2}, 0
    v_cndmask_b32 v{vSEL}, 0, v{y}, vcc
    v_mov_b32 v{vSEL+3}, v{vSEL}
    v_mov_b32 v{vONE}, 0x3F803F80
    v_mov_b32 v{vONE+1}, 0x3F803F80
    v_mov_b32 v{vONE+2}, 0x3F803F80
    v_mov_b32 v{vONE+3}, 0x3F803F80
    v_mov_b32 v{vPM}, 0
    v_mov_b32 v{vPM+1}, 0
    v_mov_b32 v{vKV}, 0
    v_mov_b32 v{vKV+1}, 0
    v_mov_b32 v{vKV+2}, 0
    v_mov_b32 v{vKV+3}, 0
    s_mov_b32 s{sMB}, 0xCCCCCCCC
    s_mov_b32 s{sMB+1}, 0xCCCCCCCC
    s_mov_b32 s{sC}, 0x{f32bits(SCALE_LOG2E):x}
    s_mov_b32 s{sC+1}, 0x{f32bits(SCALE_LOG2E):x}
    s_mov_b32 s{sSENT}, 0x{SENT:x}
    s_mov_b32 s{sBIG}, 0x{f32bits(2.0**opts.get('biglog', 60)):x}
    ''')
    for k in range(4):
        m = 0x11111111 << [0, 2, 1, 3][k]
        a(f's_mov_b32 s{sCOL+2*k}, 0x{m:x}')
        a(f's_mov_b32 s{sCOL+2*k+1}, 0x{m:x}')
    r0, r1, f3, rowb = t + 9, t + 10, t + 11, t + 12
    wv = vT
    wo = vT + 4
    a(f'''
    v_bfe_u32 v{r0}, v{c}, 2, 1
    v_bfe_u32 v{r1}, v{c}, 3, 1
    v_lshrrev_b32 v{y}, 1, v{g}
    v_lshlrev_b32 v{rowb}, 4, v{y}
    v_and_b32 v{y}, 1, v{g}
    v_lshl_add_u32 v{rowb}, v{y}, 2, v{rowb}
    v_add_u32 v{rowb}, v{rowb}, v{r0}
    v_lshl_add_u32 v{rowb}, v{r1}, 3, v{rowb}
    v_lshl_add_u32 v{f3}, v{y}, 1, v{r0}
    v_lshl_add_u32 v{f3}, v{r1}, 2, v{f3}
    s_lshl_b32 s{sT}, s{sW}, 1
    v_xor_b32 v{y}, s{sT}, v{f3}
    v_lshlrev_b32 v{y}, 5, v{y}
    v_lshl_add_u32 v{y}, v{rowb}, 8, v{y}
    v_and_b32 v{z}, 3, v{c}
    v_lshl_add_u32 v{y}, v{z}, 3, v{y}
    v_add_u32 v{wv}, {L_WO}, v{y}
    v_xor_b32 v{wv+1}, 32, v{wv}
    v_add_u32 v{wv+2}, 0x10000, v{wv}
    v_add_u32 v{wv+3}, 0x10000, v{wv+1}
    v_and_b32 v{y}, 1, v{g}
    v_lshlrev_b32 v{rowb}, 4, v{y}
    v_lshrrev_b32 v{y}, 1, v{g}
    v_lshl_add_u32 v{rowb}, v{y}, 2, v{rowb}
    v_add_u32 v{rowb}, v{rowb}, v{r0}
    v_xor_b32 v{y}, s{sW}, v{f3}
    v_lshlrev_b32 v{y}, 5, v{y}
    v_lshl_add_u32 v{y}, v{rowb}, 8, v{y}
    v_lshl_add_u32 v{y}, v{z}, 3, v{y}
    v_add_u32 v{wo}, {L_WO}, v{y}
    v_xor_b32 v{wo+1}, 128, v{wo}         ; odd w'
    v_add_u32 v{wo+2}, 0x10000, v{wo}
    v_add_u32 v{wo+3}, 0x10000, v{wo+1}
    ''')
    woj = 96
    for j in range(4):
        a(f'''
        s_xor_b32 s{sT}, s{sW}, {j}
        s_and_b32 s{sT2}, s{sT}, 1
        s_lshl_b32 s{sT2}, s{sT2}, 7
        v_xor_b32 v{woj+j}, s{sT2}, v{wo}
        s_lshl_b32 s{sT}, s{sT}, 13
        v_add_u32 v{woj+j}, s{sT}, v{woj+j}
        v_add_u32 v{woj+4+j}, 0x10000, v{woj+j}
        ''')
    dq, dw = vT + 8, vT + 9
    a(f'''
    v_and_b32 v{y}, 1, v{g}
    s_lshl_b32 s{sT}, s{sW}, 1
    v_or_b32 v{y}, s{sT}, v{y}
    v_lshlrev_b32 v{y}, 1, v{y}
    v_xor_b32 v{y}, v{y}, v{c}
    v_lshlrev_b32 v{y}, 4, v{y}
    s_lshl_b32 s{sT}, s{sW}, 15
    s_lshl_b32 s{sT2}, s{sH}, 8
    s_add_u32 s{sT}, s{sT}, s{sT2}
    v_lshl_add_u32 v{dq}, v{g}, 13, v{y}
    v_add_u32 v{dq}, s{sT}, v{dq}
    s_lshl_b32 s{sT}, s{sW}, 14
    s_lshl_b32 s{sT2}, s{sH}, 17
    s_add_u32 s{sT}, s{sT}, s{sT2}
    v_lshl_add_u32 v{dw}, v{g}, 10, v{y}
    v_add_u32 v{dw}, s{sT}, v{dw}
    s_lshl_b32 s{sT}, s{sW}, 11
    s_add_u32 s{sT}, s{sT}, {L_WO}
    v_add_u32 v{vWOB}, s{sT}, v{vL16}
    v_add_u32 v{vWOH}, 0x10000, v{vWOB}
    ''')
    nt = ' nt' if opts.get('nt') else ''

    def issue(cn):
        slot = cn & 3
        kind = (0, 1, 3, 2)[cn >> 2]
        for j in range(8):
            if kind != 3:
                so = ((cn & 3) * 128 + 16 * j) * 8192
                a(f's_lshl_b32 s{sT}, s{sW}, 10')
                a(f's_add_u32 m0, s{sT}, {L_WO + slot * 32768 + j * 4096}')
                a(f's_mov_b32 s{sT2}, {so}')
                sr = (S_WQ, S_WK, S_WV)[kind]
                a(f'buffer_load_dwordx4 v{dq}, {srd(sr)}, s{sT2} offen{nt} lds')
            else:
                jh, jl = j >> 2, j & 3
                so = (64 * jh + 4 * jl) * 1024 + (cn & 3) * 256
                a(f's_lshl_b32 s{sT}, s{sW}, 12')
                a(f's_add_u32 m0, s{sT}, {L_WO + slot * 32768 + (64 * jh + 4 * jl) * 256}')
                a(f's_mov_b32 s{sT2}, {so}')
                a(f'buffer_load_dwordx4 v{dw}, {srd(S_WO)}, s{sT2} offen{nt} lds')

    def consume(cn):
        slot = cn & 3
        kind = (0, 1, 3, 2)[cn >> 2]
        if kind < 2:
            end = a.newlabel('R_cend')
            for wv_ in range(4):
                nxt = a.newlabel('R_cw')
                if wv_ < 3:
                    a(f's_cmp_lg_u32 s{sW}, {wv_}')
                    a(f's_cbranch_scc1 {nxt}')
                for kk in range(2):
                    k = 2 * (cn & 3) + kk
                    j = k ^ (2 * wv_)
                    for u in range(2):
                        for q in range(4):
                            off = (64 * (k & 3) + 32 * (q >> 1) + 2 * (q & 1)) * 256
                            b = kind * 128 + (u * 8 + j) * 8 + 2 * q
                            a(f'ds_read_b64_tr_b16 a[{b}:{b+1}], v{wv + (k >> 2) * 2 + u} offset:{off}')
                if wv_ < 3:
                    a(f's_branch {end}')
                    a.label(nxt)
            a.label(end)
        elif kind == 2:
            for kk in range(2):
                k = 2 * (cn & 3) + kk
                for u in range(2):
                    for q in range(4):
                        off = (64 * (k & 3) + 32 * (q >> 1) + 2 * (q & 1)) * 256
                        a(f'ds_read_b64_tr_b16 {v(64 + (kk * 2 + u) * 8 + 2 * q, 2)}, v{wv + (k >> 2) * 2 + u} offset:{off}')
        else:
            for j in range(4):
                for q in range(4):
                    off = (slot & 1) * 32768 + (8 * (q >> 1) + 2 * (q & 1)) * 256
                    a(f'ds_read_b64_tr_b16 {v(vWV+(slot*4+j)*8+2*q,2)}, v{woj + (slot>>1)*4 + j} offset:{off}')

    for cn in range(4):
        issue(cn)
    se = vAW
    a(f'''
    v_mov_b32 v{se}, s{sSENT}
    v_mov_b32 v{se+1}, s{sSENT}
    v_mov_b32 v{se+2}, s{sSENT}
    v_mov_b32 v{se+3}, s{sSENT}
    s_mov_b32 s{sT}, {PART}
    s_mov_b32 s{sT2}, {PART + 0x40000}
    buffer_store_dwordx4 {v(se,4)}, v{vPLD}, {srd(S_WS)}, s{sT} offen sc1
    buffer_store_dwordx4 {v(se,4)}, v{vPLD}, {srd(S_WS)}, s{sT} offen offset:1024 sc1
    buffer_store_dwordx4 {v(se,4)}, v{vPLD}, {srd(S_WS)}, s{sT2} offen sc1
    buffer_store_dwordx4 {v(se,4)}, v{vPLD}, {srd(S_WS)}, s{sT2} offen offset:1024 sc1
    s_mov_b32 s{sT}, {MEM + 8192}
    s_mov_b32 s{sT2}, {MEM + 16384}
    buffer_store_dword v{se}, v{vMST}, {srd(S_WS)}, s{sT} offen sc1
    buffer_store_dword v{se}, v{vMST}, {srd(S_WS)}, s{sT2} offen sc1
    s_lshl_b32 s{sT}, s{sW}, 11
    v_add_u32 v{y}, s{sT}, v{vL16}
    ds_write_b128 v{y}, {v(se,4)} offset:{L_MEM0}
    ds_write_b128 v{y}, {v(se,4)} offset:{L_MEM0+1024}
    ds_write_b128 v{y}, {v(se,4)} offset:{L_MEM0+8192}
    ds_write_b128 v{y}, {v(se,4)} offset:{L_MEM0+8192+1024}
    v_pk_mov_b32 {v(se+4,2)}, 0, 0
    v_pk_mov_b32 {v(se+6,2)}, 0, 0
    ds_write_b128 v{vEXW}, {v(se+4,4)} offset:1024
    s_waitcnt vmcnt(38)
    v_cmp_eq_u32 vcc, s{sSENT}, v{t+8}
    v_xor_b32 v{y}, 0x00400040, v{t+8}
    v_cndmask_b32 v{t+8}, v{t+8}, v{y}, vcc
    s_mov_b32 s{sT}, {MEM}
    buffer_store_dword v{t+8}, v{vMST}, {srd(S_WS)}, s{sT} offen sc1
    s_lshl_b32 s{sT}, s{sH}, 7
    s_lshl_b32 s{sT2}, s{sW}, 2
    s_add_u32 s{sT}, s{sT}, s{sT2}
    s_add_u32 s{sPRG}, s{sT}, {PROG}
    buffer_store_dword v{vSEL+1}, v{vSEL+1}, {srd(S_WS)}, s{sPRG} offen sc1
    ''')
    for cn in range(16):
        if cn <= 3:
            n = 32
        elif cn <= 12:
            n = 24
        else:
            n = 8 * (15 - cn)
        a(f's_waitcnt vmcnt({n})')
        a('s_barrier')
        if cn == 4:
            lab = a.newlabel('R_noarr')
            a(f'''
            s_cmp_lg_u32 s{sW}, 0
            s_cbranch_scc1 {lab}
            s_cmp_eq_u32 s{sXCC}, 0
            s_cselect_b32 s{sT}, 0x10001, 1
            v_mov_b32 v{y}, s{sT}
            v_mov_b32 v{z}, {D_RINIT*4}
            s_mov_b64 exec, 1
            buffer_atomic_add v{y}, v{z}, {srd(S_DBG)}, 0 offen
            s_mov_b64 exec, -1
            {lab}:
            ''')
        consume(cn)
        a('s_waitcnt lgkmcnt(0)')
        a('s_barrier')
        if cn < 12:
            issue(cn + 4)
        else:
            slot = cn & 3
            if slot >= 2:
                a(f'v_add_u32 v{y}, 0x10000, v{vWOB}')
            else:
                a(f'v_mov_b32 v{y}, v{vWOB}')
            for hf in range(2):
                a(f'ds_write_b128 v{y}, {v(64+hf*4,4)} offset:{(slot&1)*32768 + hf*1024}')
            lres, lend = a.newlabel('R_res'), a.newlabel('R_rese')
            a(f's_cmp_eq_u32 s{sW}, {3 ^ slot}')
            a(f's_cbranch_scc1 {lres}')
            for f in range(1, 4):
                for hf in range(2):
                    a(f'ds_write_b128 v{y}, {v(64+f*8+hf*4,4)} offset:{(slot&1)*32768 + f*8192 + hf*1024}')
            a(f's_branch {lend}')
            a.label(lres)
            for r in range(24):
                a(f'v_mov_b32 v{24+r}, v{72+r}')
            a.label(lend)
            a('s_waitcnt lgkmcnt(0)')
    for r in range(24):
        a(f'v_mov_b32 v{vWS+r}, v{24+r}')
    for jp in range(4):
        a(f's_xor_b32 s{sT}, s{sW}, {jp}')
        a(f's_lshl_b32 s{sAO+jp}, s{sT}, 11')
        a(f's_lshl_b32 s{sT}, s{sT}, 15')
        a(f's_lshl_b32 s{sT2}, s{sW}, 11')
        a(f's_add_u32 s{sT}, s{sT}, s{sT2}')
        a(f's_add_u32 s{sWO+jp}, s{sT}, {L_WO}')
    a(f'''
    s_mov_b32 s{sS}, 0
    s_mov_b32 s{sSPIN}, 0
    s_mov_b32 s{sPLD}, {PART}
    s_mov_b32 s{sPPO}, {PART + 0x40000}
    s_mov_b32 s{sMCU}, {MEM}
    s_mov_b32 s{sMNX}, {MEM+8192}
    s_mov_b32 s{sMTH}, {MEM+16384}
    s_lshl_b32 s{sM0}, s{sW}, 11
    s_lshl_b32 s{sT}, s{sH}, 13
    s_lshl_b32 s{sT2}, s{sW}, 11
    s_add_u32 s{sKX}, s{sT}, s{sT2}
    s_lshr_b32 s{sKVM}, s{sKX}, 1
    s_sub_u32 s{sKVM}, s{sKVM}, 0x20000
    ''')
    for i in range(4):
        a(f's_mov_b32 s{PST_S[i]}, {PART + i*0x10000}')
    a('s_barrier')


def wo_addr(i, k2, hf):
    slot = i >> 1
    off = slot * 32768 + ((i & 1) * 2 + k2) * 8192 + hf * 1024
    return off


def emit_kv_poll(a, fail, tmp):
    lab = a.newlabel('R_kvw')
    ok = a.newlabel('R_kvok')
    a(f'''
    s_lshl_b32 s{sT}, s{sT}, 2
    s_add_u32 s{sT}, s{sT}, {D_QH*4}
    s_cmp_lg_u32 s{sW}, 0
    s_cbranch_scc1 {ok}
    {lab}:
    buffer_load_dword v{tmp}, v{vSEL+1}, {srd(S_DBG)}, s{sT} offen sc1
    s_waitcnt vmcnt(0)
    v_readfirstlane_b32 s{sT2}, v{tmp}
    s_lshr_b32 s{sT2}, s{sT2}, 16
    s_cmp_ge_u32 s{sT2}, 128
    s_cbranch_scc1 {ok}
    s_sleep 8
    ''')
    spin(a, fail)
    a(f'''
    s_branch {lab}
    {ok}:
    s_barrier
    ''')


def emit_r_loop(a, opts, fast, tag):
    sc = '' if fast else ' sc1'
    WSr = srd(S_WS)
    FAIL = 'R_fail'
    LOOP, DONE = f'R_loop_{tag}', f'R_done_{tag}'
    SLOW, SLOWRET = f'R_slow_{tag}', f'R_slowret_{tag}'
    RP, RPOK = f'R_rp_{tag}', f'R_rpok_{tag}'
    lq = Q(a, 'lgkmcnt', 15)
    vq = Q(a, 'vmcnt', 63)
    T = vT
    c0 = vX
    ZR = vSEL + 1
    nocomm = opts.get('nocomm', 0)
    if nocomm:
        a_real = a
        class Filt:
            def __call__(self, text):
                for line in text.strip().split('\n'):
                    l = line.strip()
                    if l.startswith('s_cbranch_vccnz R_rt'):
                        continue
                    if l.startswith('s_cbranch_vccz R_rpok') or l.startswith('s_cbranch_vccz R_mok'):
                        l = l.replace('s_cbranch_vccz', 's_branch')
                    if l.startswith('s_cbranch_vccnz R_slow'):
                        continue
                    if nocomm >= 2 and l.startswith('buffer_') and self.on:
                        continue
                    a_real(l)
            def label(self, n):
                if n == LOOP:
                    self.on = True
                if n == DONE:
                    self.on = False
                a_real.label(n)
            def newlabel(self, b='L'):
                return a_real.newlabel(b)
            def fence(self):
                a_real.fence()
        a = Filt()
        a.on = False
        lq.a = a
        vq.a = a

    def dma(second):
        return f'buffer_load_dwordx4 v{vL16}, {WSr}, s{sMCW} offen' + (' offset:1024' if second else '') + ' sc1 lds'

    ABASE = [vMRD, vX]
    WBASE = [vWOB, vWOH]

    def rdA(k, dst=None):
        return f'ds_read_b128 {v(AW(k) if dst is None else dst,4)}, v{ABASE[(k >> 1) & 1]} offset:{(k & 1)*1024}'

    def setA(jp):
        return f'v_add_u32 v{ABASE[jp & 1]}, s{sAO+jp}, v{vL16}'

    def setW(jp):
        return f'v_add_u32 v{WBASE[jp & 1]}, s{sWO+jp}, v{vL16}'

    def chk(k):
        r = AW(k)
        return [f'v_max3_u32 v{c0}, v{r}, v{r+1}, v{r+2}',
                f'v_max_u32 v{c0}, v{c0}, v{r+3}',
                f'v_cmp_eq_u32 vcc, s{sSENT}, v{c0}']

    STG = [vT, vKX, vVX]

    def wo_ij(p):
        return (p, 0) if p < 4 else ((p - 4) // 3, (p - 4) % 3 + 1)

    def wo_reg(p):
        ip, j = wo_ij(p)
        return vWV + (ip * 4 + j) * 8

    def wv_reg(g):
        return STG[g % 3] if g < 13 else vWS + 8 * (g - 13)

    def wv_rd(g):
        return [f'ds_read_b128 {v(wv_reg(g)+4*hf,4)}, v{WBASE[(g >> 2) & 1]} offset:{(g & 3) * 8192 + hf * 1024}' for hf in range(2)]

    def zero4(d):
        return f'ds_read_b128 {v(d,4)}, v{ZR} offset:{L_ZERO}'

    def Qs(k, u):
        return smf(vQ + 4 * u, AW(k), WQ(u, k))

    def Ks(k, u):
        return smf(vK + 4 * u, AW(k), WK(u, k))

    def add2(d, x, y):
        return [f'v_add_f32 v{d}, v{x}, v{y}', f'v_add_f32 v{d+1}, v{x+1}, v{y+1}']

    dp = 'row_mask:0xf bank_mask:0xf'
    SE = vL
    PZ = vRL
    sKB = sT2

    def kv_dma():
        return [f's_add_u32 s{sT}, s{sKX}, {KX}',
                f's_mov_b32 m0, s{sKVL}',
                f'buffer_load_dwordx4 v{vL16}, {WSr}, s{sT} offen sc1 lds',
                f'buffer_load_dwordx4 v{vL16}, {WSr}, s{sT} offen offset:1024 sc1 lds',
                f's_add_u32 s{sT}, s{sKX}, {VX}',
                f's_mov_b32 m0, s{sKVV}',
                f'buffer_load_dwordx4 v{vL16}, {WSr}, s{sT} offen sc1 lds',
                f'buffer_load_dwordx4 v{vL16}, {WSr}, s{sT} offen offset:1024 sc1 lds',
                f's_add_u32 s{sKX}, s{sKX}, {0 if opts.get("samekv") else 0x40000}']

    KRA, VRA = vP, vP + 1

    def kv_rd():
        return [f'ds_read_b128 {v(vKX+4*j,4)}, v{(KRA, VRA)[j >> 1]} offset:{(j & 1) * 1024}' for j in range(4)]

    sKV2, sVV2 = 44, 45

    def kv_flip():
        return [f'v_add_u32 v{KRA}, s{sKVL}, v{vL16}',
                f'v_add_u32 v{VRA}, s{sKVV}, v{vL16}',
                f's_mov_b32 s{sT}, s{sKVL}', f's_mov_b32 s{sKVL}, s{sKV2}', f's_mov_b32 s{sKV2}, s{sT}',
                f's_mov_b32 s{sT}, s{sKVV}', f's_mov_b32 s{sKVV}, s{sVV2}', f's_mov_b32 s{sVV2}, s{sT}']

    if not opts.get('no_kv_flags'):
        a(f's_mov_b32 s{sT}, 0')
        emit_kv_poll(a, FAIL, vT)
    a(f's_add_u32 s{sKVL}, s{sWO+3}, 8192')
    a(f's_add_u32 s{sKVV}, s{sWO+3}, 16384')
    a(f's_add_u32 s{sKV2}, s{sWO+3}, 24576')
    a(f's_add_u32 s{sVV2}, s{sM0}, 8192')
    a(setW(0))
    for s_ in kv_dma():
        a(s_)
    a('s_waitcnt vmcnt(0)')
    for s_ in kv_flip():
        a(s_)
    for g_ in range(3):
        for s_ in wv_rd(g_):
            a(s_)
    a(f'''
    s_lshl_b32 s{sT}, s{sW}, 11
    s_add_u32 s{sMCW}, s{sMCU}, s{sT}
    s_mov_b32 m0, s{sM0}
    s_mov_b32 s{sMPO}, s{sMTH}
    v_add_u32 v{PZ}, s{sM0}, v{vL16}
    v_mov_b32 v{PZ+1}, 0
    ''')
    for i in range(12):
        a(f'v_pk_mov_b32 {v(vQ+2*i,2)}, 0, 0')
    for r in range(4):
        a(f'v_mov_b32 v{SE+r}, s{sSENT}')
    a('s_waitcnt vmcnt(0) lgkmcnt(0)')
    if opts.get('stamps'):
        a(f's_memtime s[{sST}:{sST+1}]')
        a('s_waitcnt lgkmcnt(0)')
        a(f's_mov_b32 s{sFLG+1}, s{sST}')
        for i in range(10):
            a(f's_mov_b32 s{90+i}, 0')
    tl(a, opts, 2, vSEL + 1, vX, None)
    a('.p2align 6')
    a.label(LOOP)

    def retry_label(k):
        return f'R_rt{k}_{tag}'

    def go_label(k):
        return f'R_go{k}_{tag}'

    MS = [AW(0), AW(2), vQ]

    def mpoll(rs):
        a(f'buffer_load_dwordx4 {v(rs,4)}, v{vL16}, {WSr}, s{sMCW} offen sc1')
        a(f'buffer_load_dwordx4 {v(rs+4,4)}, v{vL16}, {WSr}, s{sMCW} offen offset:1024 sc1')

    def mchk(rs):
        a(f'ds_write_b128 v{PZ}, {v(rs,4)}')
        a(f'v_max3_u32 v{vX}, v{rs}, v{rs+1}, v{rs+2}')
        a(f'v_max3_u32 v{vX}, v{vX}, v{rs+3}, v{rs+4}')
        a(f'v_max3_u32 v{vX}, v{vX}, v{rs+5}, v{rs+6}')
        a(f'v_max_u32 v{vX}, v{vX}, v{rs+7}')
        a(f'v_cmp_eq_u32 vcc, s{sSENT}, v{vX}')
        a(f'ds_write_b128 v{PZ}, {v(rs+4,4)} offset:1024')
    MP, MOK = f'R_mp_{tag}', f'R_mok_{tag}'
    mg = opts.get('mgap', 16)
    mpoll(MS[0])
    if mg:
        a(f's_nop {mg-1}')
    a.label(MP)
    MOKs = [f'R_mok0_{tag}', f'R_mok1_{tag}']
    for i in range(2):
        mpoll(MS[1 - i])
        a('s_waitcnt vmcnt(2)')
        mchk(MS[i])
        a(f's_cbranch_vccz {MOKs[i]}')
    spin(a, FAIL)
    a(f's_branch {MP}')

    def Vs(k, u, areg=None):
        return smf(vV + 4 * u, AW(k) if areg is None else areg, v(wv_reg(2 * k + u), 8))
    kr = kv_rd()
    kd = kv_dma()
    hk = [[f's_add_u32 s{sT2}, s{sKVM}, {KVM_KT}',
           f'buffer_store_dwordx4 {v(vKV,4)}, v{vL16}, {WSr}, s{sT2} offen sc1',
           f's_add_u32 s{sKVM}, s{sKVM}, 0x20000']]
    if opts.get('nopub'):
        hk = [[]]
    for i in (1, 0):
        a.label(MOKs[i])
        r0_ = MS[i]
        a(smf(vQ, r0_, WQ(0, 0)))
        a(setA(1))
        a(smf(vQ + 4, r0_, WQ(1, 0)))
        a(smf(vK, r0_, WK(0, 0)))
        a(smf(vK + 4, r0_, WK(1, 0)))
        a('s_waitcnt lgkmcnt(0)')
        a('s_barrier')
        a(smf(vQ, r0_ + 4, WQ(0, 1)))
        a('s_waitcnt vmcnt(0)')
        o_ = MS[1 - i]
        a(f'ds_read_b128 {v(vL if False else o_,4)}, v{ABASE[1]}')
        a(f'ds_read_b128 {v(o_+4,4)}, v{ABASE[1]} offset:1024')
        a(smf(vQ + 4, r0_ + 4, WQ(1, 1)))
        a(kd[0]); a(kd[1])
        a(setA(2))
        a(smf(vK, r0_ + 4, WK(0, 1)))
        a(smf(vK + 4, r0_ + 4, WK(1, 1)))
        a(Vs(0, 0, r0_))
        for s_ in wv_rd(3):
            a(s_)
        a(setW(1))
        a(Vs(0, 1, r0_))
        for s_ in wv_rd(4):
            a(s_)
        a(Vs(1, 0, r0_ + 4))
        for s_ in wv_rd(5):
            a(s_)
        a('s_waitcnt lgkmcnt(4)')
        a(Vs(1, 1, r0_ + 4))
        for s_ in wv_rd(6):
            a(s_)
        if i == 1:
            for r in range(8):
                a(f'v_mov_b32 v{AW(2)+r}, v{AW(0)+r}')
            a(f's_branch {MOK}')
    a.label(MOK)
    stamp(a, opts, 0)
    if opts.get('abs'):
        lb = a.newlabel('R_ab')
        a(f's_cmp_lg_u32 s{sS}, 41')
        a(f's_cbranch_scc1 {lb}')
        a(f's_memrealtime s[{16+14}:{17+14}]')
        a.label(lb)
    lq.reset()
    lq.ops = ['g4', 'g4', 'g5', 'g5', 'g6', 'g6']
    if not opts.get('no_kv_flags'):
        lab = a.newlabel('R_nokv')
        a(f'''
        s_add_u32 s{sT2}, s{sS}, 1
        s_and_b32 s{sT2}, s{sT2}, 7
        s_cmp_lg_u32 s{sT2}, 0
        s_cbranch_scc1 {lab}
        s_cmp_eq_u32 s{sS}, 63
        s_cbranch_scc1 {lab}
        s_add_u32 s{sT}, s{sS}, 1
        s_lshr_b32 s{sT}, s{sT}, 3
        ''')
        emit_kv_poll(a, FAIL, vP + 2)
        a(kd[0])
        a.label(lab)

    def Vst(k, u):
        if opts.get('skipv'):
            return
        g = 2 * k + u
        if g < 13:
            lq.wait(f'g{g}')
        a(Vs(k, u))
        if g + 3 < 13:
            for s_ in wv_rd(g + 3):
                lq.issue(s_, f'g{g+3}')
    side = [[kd[2]], [kd[3]], [kd[4], kd[5], kd[6]], [kd[7], kd[8]], hk[0],
            [f's_mov_b64 exec, 1', f'buffer_store_dword v{PZ+1}, v{ZR}, {WSr}, s{sPRG} offen sc1', f's_mov_b64 exec, -1']]
    if opts.get('nopub'):
        side = side[:4]
    if opts.get('nokv'):
        side = side[4:]
    late = [f'buffer_store_dwordx4 {v(SE,4)}, v{vPLD}, {WSr}, s{sPPO} offen{sc}',
            f'buffer_store_dword v{SE}, v{vMST}, {WSr}, s{sMPO} offen{sc}',
            f'buffer_store_dwordx4 {v(SE,4)}, v{vPLD}, {WSr}, s{sPPO} offen offset:1024{sc}']
    for k in range(2, 8):
        lq.wait(f'A{k}')
        a(Qs(k, 0))
        if k + 2 < 8:
            lq.issue(rdA(k + 2), f'A{k+2}')
        else:
            lq.issue(rdA(k - 4, AW(k + 2)), f'B{k-4}')
        if k == 2:
            a(setW(2))
        if k == 3:
            a(setA(3))
        if k == 4:
            a(setW(3))
        if k == 5:
            a(setA(1))
        Vst(k, 0)
        a(Qs(k, 1))
        if side:
            for s_ in side.pop(0):
                a(s_)
        Vst(k, 1)
        if k == 5:
            for s_ in kr:
                lq.issue(s_, 'kv')
    stamp(a, opts, 1)
    if opts.get('abs'):
        lb = a.newlabel('R_ab')
        a(f's_cmp_lg_u32 s{sS}, 41')
        a(f's_cbranch_scc1 {lb}')
        a(f's_memrealtime s[{16+16}:{17+16}]')
        a.label(lb)
    a.label(go_label(7))
    for _ in range(opts.get('xdelay', 0)):
        a('s_nop 15')
    QP, QT, KT, SM = vQ + 2, vQ + 4, vK, vQ
    O0, O1 = T + 4, T + 8
    korder = [(k, u) for k in (6, 7, 2, 3, 4, 5) for u in range(2)]
    kbuf = {6: AW(2), 7: AW(3), 2: AW(0), 3: AW(1), 4: AW(2), 5: AW(3)}

    def K(n=1):
        for _ in range(n):
            if not korder:
                return
            k, u = korder.pop(0)
            if u == 0 and k < 6:
                lq.wait(f'B{k}')
            a(smf(vK + 4 * u, kbuf[k], WK(u, k)))
            if u == 1 and k >= 6:
                lq.issue(rdA(k - 2, kbuf[k - 2]), f'B{k-2}')
    WDl = [AW(0), AW(1), AW(2), AW(3)]

    def WD(i):
        return WDl[i]
    K()
    a(f'v_add_f32 v{vQ}, v{vQ}, v{vQ+2}')
    a(f'v_add_f32 v{vQ+1}, v{vQ+1}, v{vQ+3}')
    K()
    a(late[0])
    a(f'v_add_f32 v{vQ+4}, v{vQ+4}, v{vQ+6}')
    a(f'v_add_f32 v{vQ+5}, v{vQ+5}, v{vQ+7}')
    K()
    a(cvt(QP, vQ, vQ + 1))
    a(cvt(QP + 1, vQ + 4, vQ + 5))
    K()
    a(m16(T, QP, vSEL))
    a(m16(T + 4, QP, vSEL + 2))
    K()
    a(f'v_add_f32 v{vV}, v{vV}, v{vV+2}')
    K()
    a(late[1])
    a(cvt(QT, T, T + 1))
    a(cvt(QT + 1, T + 2, T + 3))
    K()
    a(cvt(QT + 2, T + 4, T + 5))
    a(cvt(QT + 3, T + 6, T + 7))
    K()
    lq.wait('kv')
    a(m32(T, vKX, QT))
    a(f'v_add_f32 v{vV+1}, v{vV+1}, v{vV+3}')
    a(m32(T + 4, vKX + 4, QT))
    a(f'v_add_f32 v{vV+4}, v{vV+4}, v{vV+6}')
    K()
    a(f'v_add_f32 v{vV+5}, v{vV+5}, v{vV+7}')
    K()
    a(late[2])
    for r in range(4):
        a(f'v_cndmask_b32 v{T+r}, v{T+r}, v{T+4+r}, s[{sMB}:{sMB+1}]')
    K()
    lq.issue(f'ds_write_b128 v{vEXW}, {v(T,4)}', 'wx')
    a(cvt(vKV + 2, vV, vV + 1))
    K()
    a(cvt(vV + 2, vV + 4, vV + 5))
    a(cvt(vV + 3, vV + 4, vV + 5))
    a(cvt(vKV + 3, vV + 4, vV + 5))
    lq.wait('wx')
    a('s_barrier')
    X = [T, T + 4, vKX, vKX + 4]
    assert not korder
    for j in range(4):
        lq.issue(f'ds_read_b128 {v(X[j],4)}, v{vL16} offset:{L_EX + j*4096}', f'x{j}')
    a(f'v_add_f32 v{vK}, v{vK}, v{vK+2}')
    a(f'v_add_f32 v{vK+1}, v{vK+1}, v{vK+3}')
    a(cvt(vKV, vK, vK + 1))
    a(f'v_add_f32 v{vK+4}, v{vK+4}, v{vK+6}')
    a(f'v_add_f32 v{vK+5}, v{vK+5}, v{vK+7}')
    a(m16(T + 8, vKV, vSEL))
    a(cvt(vKV + 1, vK + 4, vK + 5))
    lq.issue(zero4(WD(0)), 'z0')
    lq.issue(zero4(WD(1)), 'z1')
    a(m16(vK + 4, vKV, vSEL + 2))
    lq.wait('x3')
    for s_ in add2(T, T, T + 4) + add2(T + 2, T + 2, T + 6):
        a(s_)
    a(cvt(KT, T + 8, T + 9))
    a(cvt(KT + 1, T + 10, T + 11))
    for s_ in add2(vKX, vKX, vKX + 4):
        a(s_)
    a(cvt(KT + 2, vK + 4, vK + 5))
    a(cvt(KT + 3, vK + 6, vK + 7))
    for s_ in add2(vKX + 2, vKX + 2, vKX + 6):
        a(s_)
    a(m32(SM, KT, QT))
    lq.issue(zero4(WD(2)), 'z2')
    lq.issue(zero4(WD(3)), 'z3')
    for r in range(4):
        a(f'v_add_f32 v{T+r}, v{T+r}, v{vKX+r}')
    for r in range(2):
        a(f'v_mul_f32 v{T+r}, s{sC}, v{T+r}')
    lq.issue(f'ds_write_b64 v{vEXW}, {v(SM,2)} offset:3072', 'wm')
    for r in range(2, 4):
        a(f'v_mul_f32 v{T+r}, s{sC}, v{T+r}')
    for r in range(4):
        a(f'v_exp_f32 v{T+r}, v{T+r}')
    lq.wait('wm')
    a('s_barrier')
    M = [vQ, vQ + 2, vK + 4, vK + 6]
    for j in range(4):
        lq.issue(f'ds_read_b64 {v(M[j],2)}, v{vL16} offset:{L_EX + j*4096 + 3072}', f'm{j}')
    XA = [None, vOR, vK, vK + 1]
    a(cvt(T + 4, T, T + 1))
    a(cvt(T + 5, T + 2, T + 3))
    for j in (2, 3):
        a(f'v_xor_b32 v{XA[j]}, {j << 12}, v{vEXW}')
    a(f's_cmp_eq_u32 s{sS}, 63')
    a(f's_cbranch_scc1 {DONE}')
    a(f'v_mov_b32_dpp v{vP}, v{T+4} quad_perm:[0,1,0,1] {dp}')
    a(f'v_mov_b32_dpp v{vP+2}, v{T+4} quad_perm:[2,3,2,3] {dp}')
    a(f'v_mov_b32_dpp v{vP+1}, v{T+5} quad_perm:[0,1,0,1] {dp}')
    a(f'v_mov_b32_dpp v{vP+3}, v{T+5} quad_perm:[2,3,2,3] {dp}')
    lq.wait('m3')
    a(pka(vQ, vQ, vQ + 2))
    a(pka(vK + 4, vK + 4, vK + 6))
    a(pka(vQ, vQ, vK + 4))
    a(f'v_pk_mul_f32 {v(vQ,2)}, {v(vQ,2)}, s[{sC}:{sC+1}]')
    a(m32(O0, vVX, vP))
    a(f'v_exp_f32 v{vQ}, v{vQ}')
    a(m32(O1, vVX + 4, vP))
    a(f'v_exp_f32 v{vQ+1}, v{vQ+1}')
    a(m32(vL, vP, vONE))
    a(cvt(vPM, vQ, vQ + 1))
    a(m16(O0, vKV + 2, vPM, O0))
    a(m16(O1, vV + 2, vPM, O1))
    a(m16(vL, vPM, vONE, vL))
    OP = vV + 4
    a(cvt(OP, O0, O0 + 1))
    a(cvt(OP + 1, O0 + 2, O0 + 3))
    a(cvt(OP + 2, O1, O1 + 1))
    a(cvt(OP + 3, O1 + 2, O1 + 3))
    lq.issue(f'ds_write_b128 v{vEXW}, {v(OP,4)} offset:2048', 'wo')
    lq.wait('z3')
    a(smf(WD(0), OP, v(wo_reg(0), 8)))
    a(f'v_rcp_f32 v{vRL}, v{vL}')
    a(f'v_rcp_f32 v{vRL+1}, v{vL+1}')
    a(smf(WD(1), OP, v(wo_reg(1), 8)))
    a(f'v_max_f32 v{vX}, v{vL}, v{vL+1}')
    a(f'v_max3_f32 v{vX}, v{vX}, v{vRL}, v{vRL+1}')
    a(f'v_cmp_ngt_f32 vcc, s{sBIG}, v{vX}')
    a(smf(WD(2), OP, v(wo_reg(2), 8)))
    a(f's_cbranch_vccnz {SLOW}')
    a(f'R_noslow_{tag}:')
    stamp(a, opts, 2)
    WAl = [OP, T, T + 4, T + 8]

    def fin(i):
        d = WD(i)
        return [f'v_mul_f32 v{d}, v{d}, v{vRL}',
                f'v_mul_f32 v{d+1}, v{d+1}, v{vRL+1}',
                f'v_mul_f32 v{d+2}, v{d+2}, v{vRL}',
                f'v_mul_f32 v{d+3}, v{d+3}, v{vRL+1}',
                cvt(d, d, d + 1),
                cvt(d + 1, d + 2, d + 3),
                f'buffer_store_dwordx2 {v(d,2)}, v{vPST}, {WSr}, s{PST_S[i]} offen{sc}']

    def pl(rs):
        a(f'buffer_load_dwordx4 {v(rs,4)}, v{vPLD}, {WSr}, s{sPLD} offen sc1')
        a(f'buffer_load_dwordx4 {v(rs+4,4)}, v{vPLD}, {WSr}, s{sPLD} offen offset:1024 sc1')

    RS = [AW(0), vKX, AW(2)]
    paw = opts.get('paw', 2)
    lq.wait('wo')
    a('s_barrier')
    a(smf(WD(3), OP, v(wo_reg(3), 8)))
    for j in (1, 2, 3):
        lq.issue(f'ds_read_b128 {v(WAl[j],4)}, v{XA[j]} offset:2048', f'wa{j}')
    a(f's_add_u32 s{sMCW}, s{sMNX}, s{sM0}')
    for k in range(4):
        a(f'v_cndmask_b32 v{vP+k}, 0, v{vRV}, s[{sCOL+2*k}:{sCOL+2*k+1}]')
    pend = []
    for p in range(4, 16):
        ip, j = wo_ij(p)
        lq.wait(f'wa{j}')
        a(smf(WD(ip), WAl[j], v(wo_reg(p), 8)))
        if j == 2 and ip > 0:
            pend += fin(ip - 1)
        n = {2: 3, 3: 2, 1: 2}[j] if ip > 1 or j != 3 else 4
        for x_ in pend[:n]:
            a(x_)
        pend = pend[n:]
    for x_ in pend + fin(3):
        a(x_)
    stamp(a, opts, 3)
    D = vL

    def pchk(rs, ok):
        a(m32(D, rs, vP))
        a(f'v_max3_u32 v{vX}, v{rs}, v{rs+1}, v{rs+2}')
        a(f'v_max3_u32 v{vX}, v{vX}, v{rs+3}, v{rs+4}')
        a(m32(D, rs + 4, vP, D))
        a(f'v_max3_u32 v{vX}, v{vX}, v{rs+5}, v{rs+6}')
        a(f'v_max_u32 v{vX}, v{vX}, v{rs+7}')
        a(f'v_cmp_eq_u32 vcc, s{sSENT}, v{vX}')
        a(f'v_permlane32_swap_b32 v{D}, v{D+2}')
        a(f'v_permlane32_swap_b32 v{D+1}, v{D+3}')
        a(f's_cbranch_vccz {ok}')

    def prep():
        for i in range(12):
            a(f'v_pk_mov_b32 {v(vQ+2*i,2)}, 0, 0')
        a(f'''
        v_add_u32 v{PZ}, s{sM0}, v{vL16}
        v_mov_b32 v{PZ+1}, s{sS}
        s_mov_b32 s{sPPO}, s{sPLD}
        s_mov_b32 s{sMPO}, s{sMCU}
        ''')
        for i in range(4):
            a(f's_xor_b32 s{PST_S[i]}, s{PST_S[i]}, 0x40000')

    gap = opts.get('rgap', 8)
    prep()
    for _ in range(opts.get('rdel', 0)):
        a('s_nop 15')
    pl(RS[0])
    a(f's_nop 15')
    pl(RS[1])
    a(f's_nop 15')
    a.label(RP)
    for i in range(3):
        pl(RS[(i + 2) % 3])
        a('s_waitcnt vmcnt(4)')
        pchk(RS[i], RPOK)
        if gap:
            a(f's_nop {gap-1}')
    spin(a, FAIL)
    a(f's_branch {RP}')

    def publish():
        a(f'v_add_f32 v{D}, v{D}, v{D+2}')
        a(f'v_add_f32 v{D+1}, v{D+1}, v{D+3}')
        a(f'v_permlane16_swap_b32 v{D}, v{D+1}')
        a(f'v_add_f32 v{D}, v{D}, v{D+1}')
        a(f'v_mov_b32_dpp v{D+1}, v{D} quad_perm:[1,1,3,3] {dp}')
        a(cvt(vX, D, D + 1))
        a(f'buffer_store_dword v{vX}, v{vMST}, {WSr}, s{sMNX} offen{sc}')
        stamp(a, opts, 4)
    a.label(RPOK)
    publish()
    a.label(f'R_post_{tag}')
    for s_ in kv_flip():
        a(s_)
    a(setW(0))
    for g_ in (0, 2):
        for s_ in wv_rd(g_):
            a(s_)
    for r in range(4):
        a(f'v_mov_b32 v{SE+r}, s{sSENT}')
    a(f'''
    s_add_u32 s{sS}, s{sS}, 1
    s_xor_b32 s{sPLD}, s{sPLD}, 0x40000
    s_mov_b32 s{sMCU}, s{sMNX}
    s_mov_b32 s{sMNX}, s{sMTH}
    s_mov_b32 s{sMTH}, s{sMPO}
    ''')
    for _ in range(opts.get('mdelay', 0)):
        a('s_nop 15')
    a('s_waitcnt vmcnt(1)')
    for s_ in wv_rd(1):
        a(s_)
    stamp(a, opts, 5)
    a(f's_branch {LOOP}')

    a.label(SLOW)
    a('s_waitcnt lgkmcnt(0)')
    a.fence()
    Xs = [AW(0), AW(1), AW(2), AW(3)]
    Ms = [vQ, vQ + 2, vQ + 4, vQ + 6]
    for j in range(4):
        a(f'ds_read_b128 {v(Xs[j],4)}, v{vL16} offset:{L_EX + j*4096}')
        a(f'ds_read_b64 {v(Ms[j],2)}, v{vL16} offset:{L_EX + j*4096 + 3072}')
    a('s_waitcnt lgkmcnt(0)')
    x0, m0_ = Xs[0], Ms[0]
    a(pka(x0, x0, Xs[1]))
    a(pka(x0 + 2, x0 + 2, Xs[1] + 2))
    a(pka(Xs[2], Xs[2], Xs[3]))
    a(pka(Xs[2] + 2, Xs[2] + 2, Xs[3] + 2))
    a(pka(x0, x0, Xs[2]))
    a(pka(x0 + 2, x0 + 2, Xs[2] + 2))
    a(pka(m0_, m0_, Ms[1]))
    a(pka(Ms[2], Ms[2], Ms[3]))
    a(pka(m0_, m0_, Ms[2]))
    mx, my = Xs[1], Xs[1] + 1
    a(f'''
    v_max3_f32 v{mx}, v{x0}, v{x0+1}, v{x0+2}
    v_max3_f32 v{mx}, v{mx}, v{x0+3}, v{m0_}
    v_max_f32 v{mx}, v{mx}, v{m0_+1}
    v_max_f32_dpp v{mx}, v{mx}, v{mx} quad_perm:[2,3,0,1] {dp}
    v_mov_b32 v{my}, v{mx}
    v_permlane32_swap_b32 v{mx}, v{my}
    v_max_f32 v{mx}, v{mx}, v{my}
    v_mov_b32 v{my}, v{mx}
    v_permlane16_swap_b32 v{mx}, v{my}
    v_max_f32 v{mx}, v{mx}, v{my}
    ''')
    for r in [x0, x0 + 1, x0 + 2, x0 + 3, m0_, m0_ + 1]:
        a(f'v_sub_f32 v{r}, v{r}, v{mx}')
        a(f'v_mul_f32 v{r}, s{sC}, v{r}')
        a(f'v_exp_f32 v{r}, v{r}')
    a(cvt(Xs[2], x0, x0 + 1))
    a(cvt(Xs[2] + 1, x0 + 2, x0 + 3))
    a(cvt(vPM, m0_, m0_ + 1))
    a(f'v_mov_b32_dpp v{vP}, v{Xs[2]} quad_perm:[0,1,0,1] {dp}')
    a(f'v_mov_b32_dpp v{vP+1}, v{Xs[2]+1} quad_perm:[0,1,0,1] {dp}')
    a(f'v_mov_b32_dpp v{vP+2}, v{Xs[2]} quad_perm:[2,3,2,3] {dp}')
    a(f'v_mov_b32_dpp v{vP+3}, v{Xs[2]+1} quad_perm:[2,3,2,3] {dp}')
    a(m32(O0, vVX, vP))
    a(m32(O1, vVX + 4, vP))
    a(m32(vL, vP, vONE))
    a(m16(O0, vKV + 2, vPM, O0))
    a(m16(O1, vV + 2, vPM, O1))
    a(m16(vL, vPM, vONE, vL))
    for i in range(4):
        a(zero4(WD(i)))
    a.fence()
    for j in (2, 3):
        a(f'v_xor_b32 v{XA[j]}, {j << 12}, v{vEXW}')
    a(cvt(OP, O0, O0 + 1))
    a(cvt(OP + 1, O0 + 2, O0 + 3))
    a(cvt(OP + 2, O1, O1 + 1))
    a(cvt(OP + 3, O1 + 2, O1 + 3))
    a(f'ds_write_b128 v{vEXW}, {v(OP,4)} offset:2048')
    a(f'v_rcp_f32 v{vRL}, v{vL}')
    a(f'v_rcp_f32 v{vRL+1}, v{vL+1}')
    a('s_waitcnt lgkmcnt(0)')
    a.fence()
    for i in range(3):
        a(smf(WD(i), OP, v(wo_reg(i), 8)))
    a(f's_branch R_noslow_{tag}')

    a.label(DONE)
    a(f'''
    s_add_u32 s{sT}, s{sKVM}, {KVM_KT}
    buffer_store_dwordx4 {v(vKV,4)}, v{vL16}, {WSr}, s{sT} offen sc1
    v_mov_b32 v{vRL}, 64
    s_waitcnt vmcnt(0)
    buffer_store_dword v{vRL}, v{ZR}, {WSr}, s{sPRG} offen sc1
    ''')
    tl(a, opts, 3, vSEL + 1, vX, None)
    if opts.get('stamps'):
        a(f'''
        s_memtime s[{sST+2}:{sST+3}]
        s_waitcnt lgkmcnt(0)
        s_sub_u32 s{sT}, s{sST+2}, s{sST}
        v_mov_b32 v{vX}, s{sT}
        s_lshl_b32 s{sT}, s{sH}, 4
        s_lshl_b32 s{sT2}, s{sW}, 2
        s_add_u32 s{sT}, s{sT}, s{sT2}
        s_add_u32 s{sT}, s{sT}, {STAMP}
        buffer_store_dword v{vX}, v{ZR}, {WSr}, s{sT} offen
        v_mov_b32 v{vRL}, s{sSPIN}
        buffer_store_dword v{vRL}, v{ZR}, {WSr}, s{sT} offen offset:512
        ''')
        for i in range(10):
            a(f'v_mov_b32 v{vT+i}, s{16+2*i if opts.get("abs") else 90+i}')
            a(f's_add_u32 s{sT2}, s{sT}, {1024+512*i}')
            a(f'buffer_store_dword v{vT+i}, v{ZR}, {WSr}, s{sT2} offen')
    a('s_endpgm')


def emit_r_role(a, opts):
    emit_r_init(a, opts)
    tl(a, opts, 1, vSEL + 1, vX, None)
    lab = a.newlabel('R_iw')
    a(f'''
    v_mov_b32 v{vX}, {D_RINIT*4}
    {lab}:
    buffer_load_dword v{vRL}, v{vX}, {srd(S_DBG)}, 0 offen sc1
    s_waitcnt vmcnt(0)
    v_readfirstlane_b32 s{sT}, v{vRL}
    ''')
    spin(a, 'R_fail')
    a(f'''
    s_and_b32 s{sT2}, s{sT}, 0xffff
    s_cmp_ge_u32 s{sT2}, 32
    s_cbranch_scc1 R_iw_ok
    s_sleep 8
    s_branch {lab}
    R_iw_ok:
    s_lshr_b32 s{sT}, s{sT}, 16
    s_cmp_eq_u32 s{sT}, 32
    s_cbranch_scc0 R_safe_entry
    ''')
    if opts.get('force_safe'):
        a('s_branch R_safe_entry')
    emit_r_loop(a, opts, True, 'f')
    a.label('R_safe_entry')
    emit_r_loop(a, opts, False, 's')
    a.label('R_fail')
    a(f'''
    v_mov_b32 v{vX}, {D_ERR*4}
    v_mov_b32 v{vRL}, 1
    s_mov_b64 exec, 1
    buffer_atomic_add v{vRL}, v{vX}, {srd(S_DBG)}, 0 offen
    s_waitcnt vmcnt(0)
    s_endpgm
    ''')
```

```python
from common import *
from asm import Q
from wrole2 import *

vL8 = 4
vSEL = 156
vQI = 5
vOO = 6
vRW = 7
T = 12
vQ = 32
vK = 48
vV = 80
vM = 96
vKT = 112
vS = 128
vP = 140
vPM = 144
vO = 148
vA = 160
vB = 176
vB2 = 32


def m32(d, a_, b_, c_=None):
    return f'v_mfma_f32_16x16x32_bf16 {v(d,4)}, {a_}, {b_}, ' + ('0' if c_ is None else v(c_, 4))


def m16(d, a_, b_, c_=None):
    return f'v_mfma_f32_16x16x16_bf16 {v(d,4)}, {v(a_,2)}, {v(b_,2)}, ' + ('0' if c_ is None else v(c_, 4))


def emit_phase3(a, opts):
    WSr = srd(S_WS)
    dp = 'row_mask:0xf bank_mask:0xf'
    y, z = T, T + 1
    a('; ---------------- phase 3 ----------------')
    a(f'''
    v_lshrrev_b32 v{vL8}, 1, v{vL16}
    v_lshrrev_b32 v{y}, 5, v{vL16}
    v_lshlrev_b32 v{y}, 10, v{y}
    v_and_b32 v{z}, 16, v{vL16}
    v_add_u32 v{y}, v{y}, v{z}
    s_lshl_b32 s{sT}, s{sR}, 5
    v_add_u32 v{y}, s{sT}, v{y}
    s_mul_i32 s{sOB}, s{sW}, 40960
    v_add_u32 v{z}, s{sOB}, v{vL8}
    s_lshl_b32 s{sT}, s{sW}, 20
    ''')
    for ks in range(32):
        a(f's_add_u32 m0, s{sOB}, {ks*1024}')
        a(f's_add_u32 s{sT2}, s{sT}, {ks*32768}')
        a(f'buffer_load_dwordx4 v{y}, {srd(S_WO)}, s{sT2} offen lds')
    a('s_waitcnt vmcnt(0)')
    for ks in range(32):
        for hf in range(2):
            a(f'ds_read_b64_tr_b16 {ar(ks*4+2*hf,2)}, v{z} offset:{ks*1024+hf*512}')
    a('s_waitcnt lgkmcnt(0)')
    a(f's_mul_i32 s{sT}, s{sW}, {448*1024}')
    for ks in range(14):
        a(f's_add_u32 m0, s{sOB}, {ks*1024}')
        a(f's_add_u32 s{sT2}, s{sT}, {ks*32768}')
        a(f'buffer_load_dwordx4 v{y}, {srd(S_W2)}, s{sT2} offen lds')
    a('s_waitcnt vmcnt(0)')
    for ks in range(14):
        for hf in range(2):
            a(f'ds_read_b64_tr_b16 {ar((32+ks)*4+2*hf,2)}, v{z} offset:{ks*1024+hf*512}')
    a(f'''
    v_and_b32 v{y}, 1, v{vC}
    v_lshlrev_b32 v{y}, 4, v{y}
    v_mov_b32 v{z}, 0x3F80
    v_lshlrev_b32 v{y}, v{y}, v{z}
    v_lshrrev_b32 v{z}, 2, v{vC}
    v_cmp_eq_u32 vcc, v{z}, v{vG}
    v_mov_b32 v{vSEL+1}, 0
    v_mov_b32 v{vSEL+2}, 0
    v_cndmask_b32 v{vSEL}, 0, v{y}, vcc
    v_mov_b32 v{vSEL+3}, v{vSEL}
    v_mov_b32 v{vPM+1}, 0
    v_mov_b32 v{vPM+2}, 0
    s_and_b32 s{sT}, s{sW}, 1
    s_lshl_b32 s{sT}, s{sT}, 4
    v_add_u32 v{vQI}, s{sT}, v{vC}
    v_lshlrev_b32 v{y}, 2, v{vG}
    v_sub_u32 v{vQI}, v{vQI}, v{y}
    v_add_u32 v{y}, s{sT}, v{vC}
    v_lshlrev_b32 v{y}, 10, v{y}
    v_lshl_add_u32 v{y}, v{vG}, 3, v{y}
    s_lshl_b32 s{sT}, s{sR}, 5
    v_add_u32 v{vOO}, s{sT}, v{y}
    s_lshl_b32 s{sT}, s{sW}, 12
    v_add_u32 v{vRW}, s{sT}, v{vL16}
    s_mov_b32 s{sC}, 0x{f32bits(math.log2(math.e)):x}
    s_mov_b32 s{sSEG}, s{sX}
    s_waitcnt lgkmcnt(0)
    s_barrier
    ''')
    a(f's_mov_b32 s{sT}, {D_RINIT*4}')

    def c0():
        a(f's_and_b32 s{sT2}, s{sT2}, 0xffff')
        a(f's_cmp_ge_u32 s{sT2}, 32')
    poll_dbg(a, sT, c0, T)
    tl(a, opts, 9, vZ, T, None)
    a.label('W3_seg')
    a(f'''
    s_lshr_b32 s{sT}, s{sSEG}, 3
    s_lshl_b32 s{sT}, s{sT}, 2
    s_add_u32 s{sT}, s{sT}, {D_QH*4}
    ''')

    def c1():
        a(f's_and_b32 s{sT2}, s{sT2}, 0xffff')
        a(f's_cmp_ge_u32 s{sT2}, 220')
    poll_dbg(a, sT, c1, T)
    vq = Q(a, 'vmcnt', 63)
    a(f'''
    s_lshl_b32 s{sT}, s{sSEG}, 18
    s_lshl_b32 s{sT2}, s{sR}, 13
    s_add_u32 s{sNO}, s{sT}, s{sT2}          ; (s*32+h)*8192
    s_mul_i32 s{sNS}, s{sSEG}, {ZS}
    s_add_u32 s{sNS}, s{sNS}, {ZX}
    s_mul_i32 s{sT}, s{sW}, {14*2048}
    s_add_u32 s{sT}, s{sT}, s{sNS}
    s_add_u32 s{sT}, s{sT}, {128*2048}
    ''')
    def zload(buf, sreg, off, tag):
        vq.issue(f'buffer_load_dwordx4 {v(buf,4)}, v{vL16}, {WSr}, s{sreg} offen offset:{off} sc1', tag)
    nh = 28
    issued = 0

    def hissue(i):
        if i % 4 == 0 and i > 0:
            a(f's_add_u32 s{sT}, s{sT}, 4096')
        zload(vB + 4 * (i % 20), sT, (i % 4) * 1024, f'h{i}')
    for i in range(20):
        hissue(i)
    a(f'''
    s_and_b32 s{sT2}, s{sW}, 1
    s_lshl_b32 s{sT2}, s{sT2}, 10
    s_add_u32 s{sT2}, s{sT2}, s{sNO}
    s_add_u32 s{sT2}, s{sT2}, {QX}
    ''')
    for wp in range(4):
        if wp == 2:
            a(f's_add_u32 s{sT2}, s{sT2}, 4096')
        zload(vQ + 4 * wp, sT2, (wp & 1) * 2048, 'q')
    a(f's_add_u32 s{sT2}, s{sNO}, {KX}')
    for i in range(8):
        if i == 4:
            a(f's_add_u32 s{sT2}, s{sT2}, 4096')
        zload(vK + 4 * i, sT2, (i & 3) * 1024, 'k')
    a(f'''
    s_lshr_b32 s{sT2}, s{sW}, 1
    s_lshl_b32 s{sT2}, s{sT2}, 12
    s_add_u32 s{sT2}, s{sT2}, s{sNO}
    s_add_u32 s{sT2}, s{sT2}, {VX}
    ''')
    for i in range(4):
        zload(vV + 4 * i, sT2, i * 1024, 'v')
    for i in range(nh):
        ks, t = i >> 1, i & 1
        vq.wait(f'h{i}')
        a(m32(vA + 4 * t, ar((32 + ks) * 4, 4), v(vB + 4 * (i % 20), 4), None if ks == 0 else vA + 4 * t))
        if i + 20 < nh:
            hissue(i + 20)
    vq.wait('v')
    for t in range(2):
        for wp in range(4):
            a(m32(vS + 4 * t, v(vK + 4 * (2 * wp + t), 4), v(vQ + 4 * wp, 4), None if wp == 0 else vS + 4 * t))
    lab, ok = a.newlabel('W3_pp'), a.newlabel('W3_pk')
    a(f'''
    s_lshl_b32 s{sT}, s{sR}, 7
    s_add_u32 s{sT}, s{sT}, {PROG}
    s_cmp_lg_u32 s{sW}, 0
    s_cbranch_scc1 {ok}
    {lab}:
    buffer_load_dwordx4 {v(T,4)}, v{vZ}, {WSr}, s{sT} offen sc1
    s_waitcnt vmcnt(0)
    v_min_u32 v{T}, v{T}, v{T+1}
    v_min_u32 v{T+2}, v{T+2}, v{T+3}
    v_min_u32 v{T}, v{T}, v{T+2}
    s_nop 0
    v_readfirstlane_b32 s{sT2}, v{T}
    s_cmp_gt_u32 s{sT2}, s{sSEG}
    s_cbranch_scc1 {ok}
    ''')
    spin(a)
    a(f's_sleep 4')
    a(f's_branch {lab}')
    a.label(ok)
    a('s_barrier')
    a(f's_lshr_b32 s{sT}, s{sNO}, 1')
    a(f's_add_u32 s{sT}, s{sT}, {KVM_KT}')
    for wp in range(4):
        a(f'buffer_load_dwordx4 {v(vM+4*wp,4)}, v{vL16}, {WSr}, s{sT} offen offset:{wp*1024} sc1')
    a('s_waitcnt vmcnt(0)')
    for wp in range(4):
        d = T + 8 * (wp & 1)
        a(m16(d, vM + 4 * wp, vSEL))
        a(m16(d + 4, vM + 4 * wp, vSEL + 2))
        for r in range(4):
            a(cvt(vKT + 4 * wp + r, d + 2 * r, d + 2 * r + 1))
    for wp in range(4):
        a(m32(vS + 8, v(vKT + 4 * wp, 4), v(vQ + 4 * wp, 4), None if wp == 0 else vS + 8))
    for r in range(0, 10, 2):
        a(cvt(T, vS + r, vS + r + 1))
        a(f'v_lshlrev_b32 v{vS+r}, 16, v{T}')
        a(f'v_and_b32 v{vS+r+1}, 0xffff0000, v{T}')
        a(f'v_mul_f32 v{vS+r}, 0x{f32bits(128 ** -0.5):x}, v{vS+r}')
        a(f'v_mul_f32 v{vS+r+1}, 0x{f32bits(128 ** -0.5):x}, v{vS+r+1}')
        a(cvt(T, vS + r, vS + r + 1))
        a(f'v_lshlrev_b32 v{vS+r}, 16, v{T}')
        a(f'v_and_b32 v{vS+r+1}, 0xffff0000, v{T}')
    NEG = 0xff800000
    a(f'v_mov_b32 v{T}, 0x{NEG:x}')
    for t in range(2):
        for r in range(4):
            a(f'v_cmp_le_i32 vcc, {16*t+r}, v{vQI}')
            a(f'v_cndmask_b32 v{vS+4*t+r}, v{T}, v{vS+4*t+r}, vcc')
    mx, my = T + 1, T + 2
    a(f'''
    v_max3_f32 v{mx}, v{vS}, v{vS+1}, v{vS+2}
    v_max3_f32 v{mx}, v{mx}, v{vS+3}, v{vS+4}
    v_max3_f32 v{mx}, v{mx}, v{vS+5}, v{vS+6}
    v_max3_f32 v{mx}, v{mx}, v{vS+7}, v{vS+8}
    v_max_f32 v{mx}, v{mx}, v{vS+9}
    v_mov_b32 v{my}, v{mx}
    v_permlane32_swap_b32 v{mx}, v{my}
    v_max_f32 v{mx}, v{mx}, v{my}
    v_mov_b32 v{my}, v{mx}
    v_permlane16_swap_b32 v{mx}, v{my}
    v_max_f32 v{mx}, v{mx}, v{my}
    ''')
    for r in range(10):
        a(f'v_sub_f32 v{vS+r}, v{vS+r}, v{mx}')
        a(f'v_mul_f32 v{vS+r}, s{sC}, v{vS+r}')
        a(f'v_exp_f32 v{vS+r}, v{vS+r}')
    a(f'v_add_f32 v{mx}, v{vS}, v{vS+1}')
    for r in range(2, 10):
        a(f'v_add_f32 v{mx}, v{mx}, v{vS+r}')
    a(f'''
    v_mov_b32 v{my}, v{mx}
    v_permlane32_swap_b32 v{mx}, v{my}
    v_add_f32 v{mx}, v{mx}, v{my}
    v_mov_b32 v{my}, v{mx}
    v_permlane16_swap_b32 v{mx}, v{my}
    v_add_f32 v{mx}, v{mx}, v{my}
    v_rcp_f32 v{mx}, v{mx}
    ''')
    for r in range(10):
        a(f'v_mul_f32 v{vS+r}, v{vS+r}, v{mx}')
    for r in range(4):
        a(cvt(vP + r, vS + 2 * r, vS + 2 * r + 1))
    a(cvt(vPM, vS + 8, vS + 9))
    a(cvt(vPM + 3, vS + 8, vS + 9))
    l1, l2 = a.newlabel('W3_e'), a.newlabel('W3_e')
    a(f's_cmp_ge_u32 s{sW}, 2')
    a(f's_cbranch_scc1 {l1}')
    for i in range(2):
        a(f'v_mov_b32 v{T+4+2*i}, v{vM+4*i+2}')
        a(f'v_mov_b32 v{T+5+2*i}, v{vM+4*i+3}')
    a(f's_branch {l2}')
    a.label(l1)
    for i in range(2):
        a(f'v_mov_b32 v{T+4+2*i}, v{vM+8+4*i+2}')
        a(f'v_mov_b32 v{T+5+2*i}, v{vM+8+4*i+3}')
    a.label(l2)
    a('s_nop 1')
    a(f'''
    s_lshl_b32 s{sT}, s{sR}, 13
    s_add_u32 s{sT}, s{sT}, s{sNS}
    s_lshr_b32 s{sT2}, s{sW}, 1
    s_lshl_b32 s{sT2}, s{sT2}, 12
    s_add_u32 s{sT}, s{sT}, s{sT2}
    s_and_b32 s{sT2}, s{sW}, 1
    s_lshl_b32 s{sT2}, s{sT2}, 10
    s_add_u32 s{sT}, s{sT}, s{sT2}
    ''')
    for i in range(2):
        for u in range(2):
            a(m32(vO + 4 * u, v(vV + 4 * (2 * i + u), 4), v(vP, 4)))
        for u in range(2):
            a(m16(vO + 4 * u, T + 4 + 2 * i, vPM + 2 * u, vO + 4 * u))
        p = T + 8 + 4 * i
        for r in range(4):
            a(cvt(p + r, vO + 2 * r, vO + 2 * r + 1))
        a(f'buffer_store_dwordx4 {v(p,4)}, v{vL16}, {WSr}, s{sT} offen offset:{i*2048} sc1')
    a(f'''
    s_lshr_b32 s{sT}, s{sSEG}, 2
    s_lshl_b32 s{sT}, s{sT}, 2
    s_add_u32 s{sT}, s{sT}, {D_OC*4}
    s_and_b32 s{sT3}, s{sSEG}, 3
    s_lshl_b32 s{sT3}, s{sT3}, 3
    s_lshl_b32 s{sT2}, 1, s{sT3}
    ''')
    signal_add(a, sT, sT2)
    a(f's_lshl_b32 s{sNO}, s{sSEG}, 15')
    a(f'buffer_load_dwordx2 {v(T+16,2)}, v{vOO}, {srd(S_X)}, s{sNO} offen')

    def c2():
        a(f's_lshr_b32 s{sT2}, s{sT2}, s{sT3}')
        a(f's_and_b32 s{sT2}, s{sT2}, 0xff')
        a(f's_cmp_ge_u32 s{sT2}, 32')
    poll_dbg(a, sT, c2, T)
    vq.reset()
    a(f's_lshl_b32 s{sT}, s{sW}, 16')
    a(f's_add_u32 s{sT}, s{sT}, s{sNS}')
    bufs = [vB + 4 * i for i in range(20)] + [vB2 + 4 * i for i in range(24)]
    nb = len(bufs)

    def oissue(i):
        if i % 4 == 0 and i > 0:
            a(f's_add_u32 s{sT}, s{sT}, 4096')
        zload(bufs[i % nb], sT, (i % 4) * 1024, f'o{i}')
    for i in range(nb):
        oissue(i)
    for i in range(64):
        ks, t = i >> 1, i & 1
        vq.wait(f'o{i}')
        a(m32(vA + 8 + 4 * t, ar(ks * 4, 4), v(bufs[i % nb], 4), None if ks == 0 else vA + 8 + 4 * t))
        if i + nb < 64:
            oissue(i + nb)
    for i in range(4):
        a(f'ds_write_b128 v{vRW}, {v(vA+4*i,4)} offset:{i*1024}')
    a('s_waitcnt lgkmcnt(0)')
    a('s_barrier')
    skip = a.newlabel('W3_nofin')
    a(f's_cmp_ge_u32 s{sW}, 2')
    a(f's_cbranch_scc1 {skip}')
    a(f's_lshl_b32 s{sT}, s{sW}, 10')
    a(f'v_add_u32 v{T}, s{sT}, v{vL16}')
    R = vB
    for wv in range(4):
        a(f'ds_read_b128 {v(R+8*wv,4)}, v{T} offset:{wv*4096}')
        a(f'ds_read_b128 {v(R+8*wv+4,4)}, v{T} offset:{wv*4096+2048}')
    a('s_waitcnt lgkmcnt(0)')
    for r in range(8):
        a(f'v_add_f32 v{R+r}, v{R+r}, v{R+8+r}')
        a(f'v_add_f32 v{R+16+r}, v{R+16+r}, v{R+24+r}')
        a(f'v_add_f32 v{R+r}, v{R+r}, v{R+16+r}')
    X = T + 16
    for pr in range(2):
        a(cvt(T + 2, R + 2 * pr, R + 2 * pr + 1))
        a(cvt(T + 3, R + 4 + 2 * pr, R + 4 + 2 * pr + 1))
        a(f'v_lshlrev_b32 v{T+4}, 16, v{T+3}')
        a(f'v_and_b32 v{T+5}, 0xffff0000, v{T+3}')
        a(f'v_lshlrev_b32 v{T+6}, 16, v{X+pr}')
        a(f'v_and_b32 v{T+7}, 0xffff0000, v{X+pr}')
        a(f'v_add_f32 v{T+4}, v{T+4}, v{T+6}')
        a(f'v_add_f32 v{T+5}, v{T+5}, v{T+7}')
        a(cvt(T + 3, T + 4, T + 5))
        a(f'v_lshlrev_b32 v{T+4}, 16, v{T+3}')
        a(f'v_and_b32 v{T+5}, 0xffff0000, v{T+3}')
        a(f'v_lshlrev_b32 v{T+6}, 16, v{T+2}')
        a(f'v_and_b32 v{T+7}, 0xffff0000, v{T+2}')
        a(f'v_add_f32 v{T+4}, v{T+4}, v{T+6}')
        a(f'v_add_f32 v{T+5}, v{T+5}, v{T+7}')
        a(cvt(T + 8 + pr, T + 4, T + 5))
    a(f'buffer_store_dwordx2 {v(T+8,2)}, v{vOO}, {srd(S_OUT)}, s{sNO} offen')
    a.label(skip)
    a(f'''
    s_barrier
    s_add_u32 s{sSEG}, s{sSEG}, 7
    s_cmp_lt_u32 s{sSEG}, 64
    s_cbranch_scc1 W3_seg
    ''')
```

```python
import sys
sys.path.insert(0, 'gen')
from asm import Asm
from common import *
import rrole11 as rrole

NAME = 'parallel_sum__memory_aug_recurrent_mem_tr__dense_activation_silu__prompt'
HEADER = open('cdna_kernels/%s.s.ref' % NAME).read().split('; Override launch')[0]


def prologue(a):
    a('''
    s_load_dwordx16 s[64:79], s[0:1], 0
    s_load_dwordx8 s[80:87], s[0:1], 64
    s_load_dwordx2 s[88:89], s[0:1], 96
    s_getreg_b32 s90, hwreg(HW_REG_XCC_ID)
    s_and_b32 s90, s90, 7
    s_waitcnt lgkmcnt(0)
    ''')
    tab = [(S_X, 64, 2097152), (S_M0, 66, 8192), (S_WQ, 68, 4194304), (S_WK, 70, 4194304), (S_WV, 72, 4194304),
           (S_WO, 74, 4194304), (S_W1, 80, 1835008), (S_W2, 82, 1835008), (S_OUT, 84, 2097152), (S_DBG, 86, 256),
           (S_WS, 88, WS_BYTES)]
    for d, p, n in tab:
        a(f's_mov_b32 s{d}, s{p}')
        a(f's_and_b32 s{d+1}, s{p+1}, 0xffff')
        a(f's_mov_b32 s{d+2}, {n}')
        a(f's_mov_b32 s{d+3}, 0x20000')
    a(f'''
    s_mov_b32 s{rrole.sXCC}, s90
    v_lshrrev_b32 v1, 6, v0
    s_nop 0
    v_readfirstlane_b32 s92, v1
    s_cmp_lg_u32 s92, 0
    s_cbranch_scc1 L_role_skip
    s_mov_b64 exec, 1
    s_mov_b32 s93, 0
    v_mov_b32 v3, 0
    L_role_try:
    s_lshl_b32 s91, s90, 2
    v_mov_b32 v1, 1
    v_mov_b32 v2, s91
    buffer_atomic_add v1, v2, {srd(S_DBG)}, 0 offen sc0
    s_waitcnt vmcnt(0)
    v_readfirstlane_b32 s91, v1
    s_cmp_lt_u32 s91, 32
    s_cbranch_scc1 L_role_got
    L_role_scan:
    buffer_load_dwordx4 v[4:7], v3, {srd(S_DBG)}, 0 offen sc1
    buffer_load_dwordx4 v[8:11], v3, {srd(S_DBG)}, 0 offen offset:16 sc1
    s_waitcnt vmcnt(0)
    s_mov_b32 s90, 8
    s_mov_b32 s94, 0
    ''')
    for x in range(7, -1, -1):
        a(f'v_readfirstlane_b32 s92, v{4+x}')
        a(f's_min_u32 s95, s92, 64')
        a(f's_add_u32 s94, s94, s95')
        a(f's_cmp_lt_u32 s92, 32')
        a(f's_cselect_b32 s90, {x}, s90')
    a(f'''
    s_cmp_eq_u32 s90, 8
    s_cbranch_scc1 L_role_got
    s_cmp_ge_u32 s94, 256
    s_cbranch_scc1 L_role_try
    s_add_u32 s93, s93, 1
    s_cmp_gt_u32 s93, 2000
    s_cbranch_scc1 L_role_try
    s_sleep 32
    s_branch L_role_scan
    L_role_got:
    s_and_b32 s90, s90, 7
    s_lshl_b32 s92, s90, 16
    s_min_u32 s91, s91, 64
    s_or_b32 s92, s92, s91
    v_mov_b32 v1, s92
    ds_write_b32 v3, v1
    s_waitcnt lgkmcnt(0)
    s_mov_b64 exec, -1
    L_role_skip:
    s_barrier
    v_mov_b32 v2, 0
    ds_read_b32 v1, v2
    s_waitcnt lgkmcnt(0)
    v_readfirstlane_b32 s91, v1
    s_lshr_b32 s90, s91, 16
    s_and_b32 s91, s91, 0xffff
    s_barrier
    ''')
    a('s_lshl_b32 s95, s90, 5')
    a('s_add_u32 s95, s95, s91')


def add_trace(a, opts):
    from asm import Ins
    start, step, n = opts['trace'][:3]
    skip = opts['trace'][3] if len(opts['trace']) > 3 else 0
    items = a.items
    i0 = items.index(start + ':')
    out = items[:i0 + 1]
    cnt = 0
    m = 0
    names = []
    for it in items[i0 + 1:]:
        if m < n and not isinstance(it, str):
            if cnt >= skip and (cnt - skip) % step == 0:
                out.append(Ins(f's_memtime s[{16+2*m}:{17+2*m}]'))
                names.append('%3d ' % cnt + it.text[:56])
                m += 1
            cnt += 1
        out.append(it)
        if it == 'R_done_f:':
            out.append(Ins('s_waitcnt lgkmcnt(0)'))
            out.append(Ins(f's_lshl_b32 s63, s52, 9'))
            out.append(Ins(f's_lshl_b32 s64, s53, 7'))
            out.append(Ins(f's_add_u32 s63, s63, s64'))
            out.append(Ins(f's_add_u32 s63, s63, {STAMP + 0x4000}'))
            for j in range(n):
                out.append(Ins(f'v_mov_b32 v13, s{16+2*j}'))
                out.append(Ins(f'buffer_store_dword v13, v17, s[8:11], s63 offen offset:{4*j}'))
    a.items = out
    import json
    json.dump(names, open(sys.argv[1].replace('.s', '.json'), 'w'))


def build(opts):
    a = Asm()
    prologue(a)
    a(f'''
    s_cmp_ge_u32 s91, 32
    s_cbranch_scc1 L_exit
    ''')
    a('v_mov_b32 v2, 0')
    tl(a, opts, 0, 2, 1, None)
    a(f'''
    s_cmp_lg_u32 s90, 0
    s_cbranch_scc1 L_worker
    s_mov_b32 s{rrole.sH}, s91
    ''')
    if opts.get('no_r'):
        a('s_endpgm')
    else:
        rrole.emit_r_role(a, opts)
    a.label('L_worker')
    if opts.get('workers'):
        import wrole2 as wrole
        wrole.emit_w_role(a, opts)
    a.label('L_exit')
    a('s_endpgm')
    if opts.get('trace'):
        add_trace(a, opts)
    body = a.render()
    txt = HEADER + '; @launch grid=(256,1,1) block=(256,1,1) lds=163840\n'
    txt += f'''.amdgcn_target "amdgcn-amd-amdhsa--gfx950"
.text
.globl {NAME}_kernel
.p2align 8
.type {NAME}_kernel,@function
{NAME}_kernel:
'''
    txt += body
    txt += f'''.section .rodata,"a"
.p2align 6
.amdhsa_kernel {NAME}_kernel
  .amdhsa_next_free_vgpr 512
  .amdhsa_next_free_sgpr 102
  .amdhsa_accum_offset 256
  .amdhsa_group_segment_fixed_size 0
  .amdhsa_kernarg_size 104
  .amdhsa_user_sgpr_count 2
  .amdhsa_user_sgpr_kernarg_segment_ptr 1
  .amdhsa_system_sgpr_workgroup_id_x 1
.end_amdhsa_kernel
'''
    return txt, a


if __name__ == '__main__':
    import json
    opts = json.loads(sys.argv[2]) if len(sys.argv) > 2 else {}
    txt, a = build(opts)
    open(sys.argv[1], 'w').write(txt)
    print('written', sys.argv[1], 'lines', txt.count('\n'), 'auto nops', a.auto_nops)
```

```python
import math

WS_BYTES = 268435456
PART = 0x0000000
MEM = 0x0080000
PROG = 0x0090000
STAMP = 0x00A0000
KVM_KT = 0x0100000
KVM_VP = 0x0900000
KX = 0x1000000
VX = 0x2000000
QX = 0x3000000
OX = 0x4000000
HX = 0x5000000

S_WS, S_DBG, S_WQ, S_WK, S_WV, S_WO, S_M0, S_X, S_W1, S_W2, S_OUT = 8, 12, 16, 20, 24, 28, 32, 36, 40, 44, 48


def srd(b):
    return 's[%d:%d]' % (b, b + 3)


D_XCD = 0
D_RINIT = 8
D_ERR = 9
D_KV = 16

SCALE_LOG2E = (128 ** -0.5) * math.log2(math.e)


def f32bits(x):
    import struct
    return struct.unpack('<I', struct.pack('<f', x))[0]

XN = 0x0A00000
ZX = 0x4000000
ZS = 184 * 2048
D_LN = 10
D_QH = 32
D_OC = 40


def tl(a, opts, slot, zero_v, tmp_v, role_expr):
    if not opts.get('tl'):
        return
    a('s_memrealtime s[96:97]')
    a('s_waitcnt lgkmcnt(0)')
    a(f'v_mov_b32 v{tmp_v}, s96')
    a(f's_lshl_b32 s99, s95, 6')
    a(f's_add_u32 s99, s99, {STAMP + 0x8000 + slot*4}')
    a(f'buffer_store_dword v{tmp_v}, v{zero_v}, s[8:11], s99 offen')

GPROG = 0x00C0000
W3 = 0x6000000
D_W3 = 12
```

```python
from common import *
from asm import Q
from wrole2 import *

vL8 = 4
sTK, sQT = 78, 79
vSEL = 156
vQI = 5
vOO = 6
vRW = 7
T = 12
vQ = 32
vK = 48
vV = 80
vM = 96
vKT = 112
vS = 128
vP = 140
vPM = 144
vO = 148
vA = 160
vB = 176
vB2 = 32


def m32(d, a_, b_, c_=None):
    return f'v_mfma_f32_16x16x32_bf16 {v(d,4)}, {a_}, {b_}, ' + ('0' if c_ is None else v(c_, 4))


def m16(d, a_, b_, c_=None):
    return f'v_mfma_f32_16x16x16_bf16 {v(d,4)}, {v(a_,2)}, {v(b_,2)}, ' + ('0' if c_ is None else v(c_, 4))


def emit_phase3(a, opts):
    WSr = srd(S_WS)
    dp = 'row_mask:0xf bank_mask:0xf'
    y, z = T, T + 1
    a('; ---------------- phase 3 ----------------')
    a(f's_mov_b32 s{sT}, {D_W3*4}')

    def cw():
        a(f's_cmp_ge_u32 s{sT2}, 4')
    poll_dbg(a, sT, cw, T, sleep=16)
    a(f's_mov_b32 s{sT}, {D_QH*4}')

    def cq():
        a(f's_and_b32 s{sT2}, s{sT2}, 0xffff')
        a(f's_cmp_ge_u32 s{sT2}, 220')
    poll_dbg(a, sT, cq, T, sleep=16)
    a(f'''
    s_mul_i32 s{sT}, s{sR}, {184*1024}
    s_add_u32 s{sT}, s{sT}, {W3}
    s_lshl_b32 s{sT2}, s{sW}, 15
    s_add_u32 s{sT2}, s{sT2}, s{sT}
    ''')
    for ks in range(32):
        if ks % 4 == 0 and ks:
            a(f's_add_u32 s{sT2}, s{sT2}, 4096')
        a(f'buffer_load_dwordx4 {ar(ks*4,4)}, v{vL16}, {WSr}, s{sT2} offen offset:{(ks%4)*1024} sc1')
    a(f'''
    s_mul_i32 s{sT2}, s{sW}, {14*1024}
    s_add_u32 s{sT2}, s{sT2}, s{sT}
    s_add_u32 s{sT2}, s{sT2}, {128*1024}
    ''')
    for ks in range(14):
        if ks % 4 == 0 and ks:
            a(f's_add_u32 s{sT2}, s{sT2}, 4096')
        a(f'buffer_load_dwordx4 {ar((32+ks)*4,4)}, v{vL16}, {WSr}, s{sT2} offen offset:{(ks%4)*1024} sc1')
    a(f'v_lshlrev_b32 v{vL8}, 3, v{vL16}')
    a(f'v_and_b32 v{vL8}, 0xf80, v{vL8}')
    a(f'''
    v_and_b32 v{y}, 1, v{vC}
    v_lshlrev_b32 v{y}, 4, v{y}
    v_mov_b32 v{z}, 0x3F80
    v_lshlrev_b32 v{y}, v{y}, v{z}
    v_lshrrev_b32 v{z}, 2, v{vC}
    v_cmp_eq_u32 vcc, v{z}, v{vG}
    v_mov_b32 v{vSEL+1}, 0
    v_mov_b32 v{vSEL+2}, 0
    v_cndmask_b32 v{vSEL}, 0, v{y}, vcc
    v_mov_b32 v{vSEL+3}, v{vSEL}
    v_mov_b32 v{vPM+1}, 0
    v_mov_b32 v{vPM+2}, 0
    s_lshl_b32 s{sT}, s{sW}, 12
    v_add_u32 v{vRW}, s{sT}, v{vL16}
    s_mov_b32 s{sC}, 0x{f32bits(math.log2(math.e)):x}
    s_mov_b32 s{sTK}, s{sX}
    s_waitcnt vmcnt(0)
    ''')
    a(f's_mov_b32 s{sT}, {D_RINIT*4}')

    def c0():
        a(f's_and_b32 s{sT2}, s{sT2}, 0xffff')
        a(f's_cmp_ge_u32 s{sT2}, 32')
    poll_dbg(a, sT, c0, T)
    tl(a, opts, 9, vZ, T, None)
    NFULL = 62
    a(f'''
    s_and_b32 s{sT}, s{sW}, 1
    s_lshl_b32 s{sT}, s{sT}, 4
    v_add_u32 v{vQI}, s{sT}, v{vC}
    v_lshlrev_b32 v{y}, 2, v{vG}
    v_sub_u32 v{vQI}, v{vQI}, v{y}
    v_add_u32 v{y}, s{sT}, v{vC}
    v_lshlrev_b32 v{y}, 10, v{y}
    v_lshl_add_u32 v{y}, v{vG}, 3, v{y}
    s_lshl_b32 s{sT}, s{sR}, 5
    v_add_u32 v{vOO}, s{sT}, v{y}
    s_mov_b32 s{sSEG}, s{sX}
    ''')
    a.label('W3_full')
    a(f'''
    s_lshr_b32 s{sT}, s{sSEG}, 3
    s_lshl_b32 s{sT}, s{sT}, 2
    s_add_u32 s{sT}, s{sT}, {D_QH*4}
    ''')

    def c1():
        a(f's_and_b32 s{sT2}, s{sT2}, 0xffff')
        a(f's_cmp_ge_u32 s{sT2}, 220')
    poll_dbg(a, sT, c1, T)
    vq = Q(a, 'vmcnt', 63)
    a(f'''
    s_lshl_b32 s{sT}, s{sSEG}, 18
    s_lshl_b32 s{sT2}, s{sR}, 13
    s_add_u32 s{sNO}, s{sT}, s{sT2}          ; (s*32+h)*8192
    s_mul_i32 s{sNS}, s{sSEG}, {ZS}
    s_add_u32 s{sNS}, s{sNS}, {ZX}
    s_mul_i32 s{sT}, s{sW}, {14*2048}
    s_add_u32 s{sT}, s{sT}, s{sNS}
    s_add_u32 s{sT}, s{sT}, {128*2048}
    ''')
    def zload(buf, sreg, off, tag):
        vq.issue(f'buffer_load_dwordx4 {v(buf,4)}, v{vL16}, {WSr}, s{sreg} offen offset:{off} sc1', tag)
    nh = 28
    issued = 0

    def hissue(i):
        if i % 4 == 0 and i > 0:
            a(f's_add_u32 s{sT}, s{sT}, 4096')
        zload(vB + 4 * (i % 20), sT, (i % 4) * 1024, f'h{i}')
    for i in range(20):
        hissue(i)
    a(f'''
    s_and_b32 s{sT2}, s{sW}, 1
    s_lshl_b32 s{sT2}, s{sT2}, 10
    s_add_u32 s{sT2}, s{sT2}, s{sNO}
    s_add_u32 s{sT2}, s{sT2}, {QX}
    ''')
    for wp in range(4):
        if wp == 2:
            a(f's_add_u32 s{sT2}, s{sT2}, 4096')
        zload(vQ + 4 * wp, sT2, (wp & 1) * 2048, 'q')
    a(f's_add_u32 s{sT2}, s{sNO}, {KX}')
    for i in range(8):
        if i == 4:
            a(f's_add_u32 s{sT2}, s{sT2}, 4096')
        zload(vK + 4 * i, sT2, (i & 3) * 1024, 'k')
    a(f'''
    s_lshr_b32 s{sT2}, s{sW}, 1
    s_lshl_b32 s{sT2}, s{sT2}, 12
    s_add_u32 s{sT2}, s{sT2}, s{sNO}
    s_add_u32 s{sT2}, s{sT2}, {VX}
    ''')
    a(f's_lshl_b32 s{sDN}, s{sSEG}, 15')
    vq.issue(f'buffer_load_dwordx2 {v(T+16,2)}, v{vOO}, {srd(S_X)}, s{sDN} offen', 'x')
    for i in range(4):
        zload(vV + 4 * i, sT2, i * 1024, 'v')
    for i in range(nh):
        ks, t = i >> 1, i & 1
        vq.wait(f'h{i}')
        a(m32(vA + 4 * t, ar((32 + ks) * 4, 4), v(vB + 4 * (i % 20), 4), None if ks == 0 else vA + 4 * t))
        if i + 20 < nh:
            hissue(i + 20)
    vq.wait('v')
    for t in range(2):
        for wp in range(4):
            a(m32(vS + 4 * t, v(vK + 4 * (2 * wp + t), 4), v(vQ + 4 * wp, 4), None if wp == 0 else vS + 4 * t))
    lab, ok = a.newlabel('W3_pp'), a.newlabel('W3_pk')
    a(f'''
    s_lshl_b32 s{sT}, s{sR}, 7
    s_add_u32 s{sT}, s{sT}, {PROG}
    s_cmp_lg_u32 s{sW}, 0
    s_cbranch_scc1 {ok}
    {lab}:
    buffer_load_dwordx4 {v(T,4)}, v{vZ}, {WSr}, s{sT} offen sc1
    s_waitcnt vmcnt(0)
    v_min_u32 v{T}, v{T}, v{T+1}
    v_min_u32 v{T+2}, v{T+2}, v{T+3}
    v_min_u32 v{T}, v{T}, v{T+2}
    s_nop 0
    v_readfirstlane_b32 s{sT2}, v{T}
    s_cmp_gt_u32 s{sT2}, s{sSEG}
    s_cbranch_scc1 {ok}
    ''')
    spin(a)
    a(f's_sleep 4')
    a(f's_branch {lab}')
    a.label(ok)
    a('s_barrier')
    tl(a, opts, 11, vZ, T, None)
    a(f's_lshr_b32 s{sT}, s{sNO}, 1')
    a(f's_add_u32 s{sT}, s{sT}, {KVM_KT}')
    for wp in range(4):
        a(f'buffer_load_dwordx4 {v(vM+4*wp,4)}, v{vL16}, {WSr}, s{sT} offen offset:{wp*1024} sc1')
    a('s_waitcnt vmcnt(0)')
    for wp in range(4):
        d = T + 8 * (wp & 1)
        a(m16(d, vM + 4 * wp, vSEL))
        a(m16(d + 4, vM + 4 * wp, vSEL + 2))
        for r in range(4):
            a(cvt(vKT + 4 * wp + r, d + 2 * r, d + 2 * r + 1))
    for wp in range(4):
        a(m32(vS + 8, v(vKT + 4 * wp, 4), v(vQ + 4 * wp, 4), None if wp == 0 else vS + 8))
    for r in range(0, 10, 2):
        a(cvt(T, vS + r, vS + r + 1))
        a(f'v_lshlrev_b32 v{vS+r}, 16, v{T}')
        a(f'v_and_b32 v{vS+r+1}, 0xffff0000, v{T}')
        a(f'v_mul_f32 v{vS+r}, 0x{f32bits(128 ** -0.5):x}, v{vS+r}')
        a(f'v_mul_f32 v{vS+r+1}, 0x{f32bits(128 ** -0.5):x}, v{vS+r+1}')
        a(cvt(T, vS + r, vS + r + 1))
        a(f'v_lshlrev_b32 v{vS+r}, 16, v{T}')
        a(f'v_and_b32 v{vS+r+1}, 0xffff0000, v{T}')
    NEG = 0xff800000
    a(f'v_mov_b32 v{T}, 0x{NEG:x}')
    for t in range(2):
        for r in range(4):
            a(f'v_cmp_le_i32 vcc, {16*t+r}, v{vQI}')
            a(f'v_cndmask_b32 v{vS+4*t+r}, v{T}, v{vS+4*t+r}, vcc')
    mx, my = T + 1, T + 2
    a(f'''
    v_max3_f32 v{mx}, v{vS}, v{vS+1}, v{vS+2}
    v_max3_f32 v{mx}, v{mx}, v{vS+3}, v{vS+4}
    v_max3_f32 v{mx}, v{mx}, v{vS+5}, v{vS+6}
    v_max3_f32 v{mx}, v{mx}, v{vS+7}, v{vS+8}
    v_max_f32 v{mx}, v{mx}, v{vS+9}
    v_mov_b32 v{my}, v{mx}
    v_permlane32_swap_b32 v{mx}, v{my}
    v_max_f32 v{mx}, v{mx}, v{my}
    v_mov_b32 v{my}, v{mx}
    v_permlane16_swap_b32 v{mx}, v{my}
    v_max_f32 v{mx}, v{mx}, v{my}
    ''')
    for r in range(10):
        a(f'v_sub_f32 v{vS+r}, v{vS+r}, v{mx}')
        a(f'v_mul_f32 v{vS+r}, s{sC}, v{vS+r}')
        a(f'v_exp_f32 v{vS+r}, v{vS+r}')
    a(f'v_add_f32 v{mx}, v{vS}, v{vS+1}')
    for r in range(2, 10):
        a(f'v_add_f32 v{mx}, v{mx}, v{vS+r}')
    a(f'''
    v_mov_b32 v{my}, v{mx}
    v_permlane32_swap_b32 v{mx}, v{my}
    v_add_f32 v{mx}, v{mx}, v{my}
    v_mov_b32 v{my}, v{mx}
    v_permlane16_swap_b32 v{mx}, v{my}
    v_add_f32 v{mx}, v{mx}, v{my}
    v_rcp_f32 v{mx}, v{mx}
    ''')
    for r in range(10):
        a(f'v_mul_f32 v{vS+r}, v{vS+r}, v{mx}')
    for r in range(4):
        a(cvt(vP + r, vS + 2 * r, vS + 2 * r + 1))
    a(cvt(vPM, vS + 8, vS + 9))
    a(cvt(vPM + 3, vS + 8, vS + 9))
    l1, l2 = a.newlabel('W3_e'), a.newlabel('W3_e')
    a(f's_cmp_ge_u32 s{sW}, 2')
    a(f's_cbranch_scc1 {l1}')
    for i in range(2):
        a(f'v_mov_b32 v{T+4+2*i}, v{vM+4*i+2}')
        a(f'v_mov_b32 v{T+5+2*i}, v{vM+4*i+3}')
    a(f's_branch {l2}')
    a.label(l1)
    for i in range(2):
        a(f'v_mov_b32 v{T+4+2*i}, v{vM+8+4*i+2}')
        a(f'v_mov_b32 v{T+5+2*i}, v{vM+8+4*i+3}')
    a.label(l2)
    a('s_nop 1')
    a(f'''
    s_lshl_b32 s{sT}, s{sR}, 13
    s_add_u32 s{sT}, s{sT}, s{sNS}
    s_lshr_b32 s{sT2}, s{sW}, 1
    s_lshl_b32 s{sT2}, s{sT2}, 12
    s_add_u32 s{sT}, s{sT}, s{sT2}
    s_and_b32 s{sT2}, s{sW}, 1
    s_lshl_b32 s{sT2}, s{sT2}, 10
    s_add_u32 s{sT}, s{sT}, s{sT2}
    ''')
    for i in range(2):
        for u in range(2):
            a(m32(vO + 4 * u, v(vV + 4 * (2 * i + u), 4), v(vP, 4)))
        for u in range(2):
            a(m16(vO + 4 * u, T + 4 + 2 * i, vPM + 2 * u, vO + 4 * u))
        p = T + 8 + 4 * i
        for r in range(4):
            a(cvt(p + r, vO + 2 * r, vO + 2 * r + 1))
        a(f'buffer_store_dwordx4 {v(p,4)}, v{vL16}, {WSr}, s{sT} offen offset:{i*2048} sc1')
    tl(a, opts, 12, vZ, T, None)
    l5, l6, l7 = a.newlabel('W3_g'), a.newlabel('W3_g'), a.newlabel('W3_g')
    a(f'''
    s_waitcnt vmcnt(0)
    s_barrier
    s_cmp_lg_u32 s{sW}, 0
    s_cbranch_scc1 {l6}
    s_add_u32 s{sT2}, s{sSEG}, 1
    v_mov_b32 v{T}, s{sT2}
    s_mov_b64 exec, 1
    buffer_store_dword v{T}, v{vZ}, {WSr}, s{sGP} offen sc1
    s_mov_b64 exec, -1
    s_lshl_b32 s{sT}, s{sX}, 12
    s_add_u32 s{sT}, s{sT}, {GPROG}
    {l5}:
    buffer_load_dword v{T+1}, v{vL8}, {WSr}, s{sT} offen sc1
    s_waitcnt vmcnt(0)
    v_cmp_gt_u32 vcc, s{sT2}, v{T+1}
    s_cbranch_vccz {l6}
    ''')
    spin(a)
    a(f's_sleep 2')
    a(f's_branch {l5}')
    a.label(l6)
    a('s_barrier')
    tl(a, opts, 14, vZ, T, None)
    vq.reset()
    a(f's_lshl_b32 s{sT}, s{sW}, 16')
    a(f's_add_u32 s{sT}, s{sT}, s{sNS}')
    bufs = [vB + 4 * i for i in range(20)] + [vB2 + 4 * i for i in range(24)]
    nb = len(bufs)

    def oissue(i):
        if i % 4 == 0 and i > 0:
            a(f's_add_u32 s{sT}, s{sT}, 4096')
        zload(bufs[i % nb], sT, (i % 4) * 1024, f'o{i}')
    for i in range(nb):
        oissue(i)
    for i in range(64):
        ks, t = i >> 1, i & 1
        vq.wait(f'o{i}')
        a(m32(vA + 8 + 4 * t, ar(ks * 4, 4), v(bufs[i % nb], 4), None if ks == 0 else vA + 8 + 4 * t))
        if i + nb < 64:
            oissue(i + nb)
    tl(a, opts, 15, vZ, T, None)
    for i in range(4):
        a(f'ds_write_b128 v{vRW}, {v(vA+4*i,4)} offset:{i*1024}')
    a('s_waitcnt lgkmcnt(0)')
    a('s_barrier')
    skip = a.newlabel('W3_nofin')
    a(f's_cmp_ge_u32 s{sW}, 2')
    a(f's_cbranch_scc1 {skip}')
    a(f's_lshl_b32 s{sT}, s{sW}, 10')
    a(f'v_add_u32 v{T}, s{sT}, v{vL16}')
    R = vB
    for wv in range(4):
        a(f'ds_read_b128 {v(R+8*wv,4)}, v{T} offset:{wv*4096}')
        a(f'ds_read_b128 {v(R+8*wv+4,4)}, v{T} offset:{wv*4096+2048}')
    a('s_waitcnt lgkmcnt(0)')
    for r in range(8):
        a(f'v_add_f32 v{R+r}, v{R+r}, v{R+8+r}')
        a(f'v_add_f32 v{R+16+r}, v{R+16+r}, v{R+24+r}')
        a(f'v_add_f32 v{R+r}, v{R+r}, v{R+16+r}')
    X = T + 16
    for pr in range(2):
        a(cvt(T + 2, R + 2 * pr, R + 2 * pr + 1))
        a(cvt(T + 3, R + 4 + 2 * pr, R + 4 + 2 * pr + 1))
        a(f'v_lshlrev_b32 v{T+4}, 16, v{T+3}')
        a(f'v_and_b32 v{T+5}, 0xffff0000, v{T+3}')
        a(f'v_lshlrev_b32 v{T+6}, 16, v{X+pr}')
        a(f'v_and_b32 v{T+7}, 0xffff0000, v{X+pr}')
        a(f'v_add_f32 v{T+4}, v{T+4}, v{T+6}')
        a(f'v_add_f32 v{T+5}, v{T+5}, v{T+7}')
        a(cvt(T + 3, T + 4, T + 5))
        a(f'v_lshlrev_b32 v{T+4}, 16, v{T+3}')
        a(f'v_and_b32 v{T+5}, 0xffff0000, v{T+3}')
        a(f'v_lshlrev_b32 v{T+6}, 16, v{T+2}')
        a(f'v_and_b32 v{T+7}, 0xffff0000, v{T+2}')
        a(f'v_add_f32 v{T+4}, v{T+4}, v{T+6}')
        a(f'v_add_f32 v{T+5}, v{T+5}, v{T+7}')
        a(cvt(T + 8 + pr, T + 4, T + 5))
    a(f'buffer_store_dwordx2 {v(T+8,2)}, v{vOO}, {srd(S_OUT)}, s{sDN} offen')
    a.label(skip)
    a(f'''
    s_barrier
    s_add_u32 s{sSEG}, s{sSEG}, 7
    s_cmp_lt_u32 s{sSEG}, {NFULL}
    s_cbranch_scc1 W3_full
    ''')

    a(f'''
    s_add_u32 s{sTK}, s{sX}, 1
    s_cmp_eq_u32 s{sTK}, 7
    s_cselect_b32 s{sTK}, 0, s{sTK}
    s_add_u32 s{sTK}, s{sTK}, {2*NFULL}
    s_cmp_ge_u32 s{sTK}, 128
    s_cbranch_scc1 W3_done
    ''')
    a.label('W3_seg')
    a(f'''
    s_lshr_b32 s{sSEG}, s{sTK}, 1
    s_and_b32 s{sQT}, s{sTK}, 1
    s_lshl_b32 s{sT}, s{sQT}, 4
    v_add_u32 v{vQI}, s{sT}, v{vC}
    v_lshlrev_b32 v{y}, 10, v{vQI}
    v_lshl_add_u32 v{y}, v{vG}, 3, v{y}
    s_lshl_b32 s{sT}, s{sR}, 5
    v_add_u32 v{vOO}, s{sT}, v{y}
    v_lshlrev_b32 v{y}, 2, v{vG}
    v_sub_u32 v{vQI}, v{vQI}, v{y}
    s_lshl_b32 s{sQT}, s{sQT}, 10
    ''')
    a(f'''
    s_lshr_b32 s{sT}, s{sSEG}, 3
    s_lshl_b32 s{sT}, s{sT}, 2
    s_add_u32 s{sT}, s{sT}, {D_QH*4}
    ''')

    def c1():
        a(f's_and_b32 s{sT2}, s{sT2}, 0xffff')
        a(f's_cmp_ge_u32 s{sT2}, 220')
    poll_dbg(a, sT, c1, T)
    vq = Q(a, 'vmcnt', 63)
    a(f'''
    s_lshl_b32 s{sT}, s{sSEG}, 18
    s_lshl_b32 s{sT2}, s{sR}, 13
    s_add_u32 s{sNO}, s{sT}, s{sT2}          ; (s*32+h)*8192
    s_mul_i32 s{sNS}, s{sSEG}, {ZS}
    s_add_u32 s{sNS}, s{sNS}, {ZX}
    s_add_u32 s{sNS}, s{sNS}, s{sQT}
    s_mul_i32 s{sT}, s{sW}, {14*2048}
    s_add_u32 s{sT}, s{sT}, s{sNS}
    s_add_u32 s{sT}, s{sT}, {128*2048}
    ''')

    def zload(buf, sreg, off, tag):
        vq.issue(f'buffer_load_dwordx4 {v(buf,4)}, v{vL16}, {WSr}, s{sreg} offen offset:{off} sc1', tag)
    for i in range(14):
        if i % 2 == 0 and i > 0:
            a(f's_add_u32 s{sT}, s{sT}, 4096')
        zload(vB + 4 * i, sT, (i % 2) * 2048, f'h{i}')
    a(f'''
    s_add_u32 s{sT2}, s{sQT}, s{sNO}
    s_add_u32 s{sT2}, s{sT2}, {QX}
    ''')
    for wp in range(4):
        if wp == 2:
            a(f's_add_u32 s{sT2}, s{sT2}, 4096')
        zload(vQ + 4 * wp, sT2, (wp & 1) * 2048, 'q')
    a(f's_add_u32 s{sT2}, s{sNO}, {KX}')
    for i in range(8):
        if i == 4:
            a(f's_add_u32 s{sT2}, s{sT2}, 4096')
        zload(vK + 4 * i, sT2, (i & 3) * 1024, 'k')
    a(f'''
    s_lshl_b32 s{sT2}, s{sW}, 11
    s_add_u32 s{sT2}, s{sT2}, s{sNO}
    s_add_u32 s{sT2}, s{sT2}, {VX}
    s_lshl_b32 s{sDN}, s{sSEG}, 15
    ''')
    vq.issue(f'buffer_load_dwordx2 {v(T+16,2)}, v{vOO}, {srd(S_X)}, s{sDN} offen', 'x')
    for i in range(2):
        zload(vV + 4 * i, sT2, i * 1024, 'v')
    for i in range(14):
        vq.wait(f'h{i}')
        a(m32(vA, ar((32 + i) * 4, 4), v(vB + 4 * i, 4), None if i == 0 else vA))
    vq.wait('v')
    for t in range(2):
        for wp in range(4):
            a(m32(vS + 4 * t, v(vK + 4 * (2 * wp + t), 4), v(vQ + 4 * wp, 4), None if wp == 0 else vS + 4 * t))
    lab, ok = a.newlabel('W3_pp'), a.newlabel('W3_pk')
    a(f'''
    s_lshl_b32 s{sT}, s{sR}, 7
    s_add_u32 s{sT}, s{sT}, {PROG}
    s_cmp_lg_u32 s{sW}, 0
    s_cbranch_scc1 {ok}
    {lab}:
    buffer_load_dwordx4 {v(T,4)}, v{vZ}, {WSr}, s{sT} offen sc1
    s_waitcnt vmcnt(0)
    v_min_u32 v{T}, v{T}, v{T+1}
    v_min_u32 v{T+2}, v{T+2}, v{T+3}
    v_min_u32 v{T}, v{T}, v{T+2}
    s_nop 0
    v_readfirstlane_b32 s{sT2}, v{T}
    s_cmp_gt_u32 s{sT2}, s{sSEG}
    s_cbranch_scc1 {ok}
    ''')
    spin(a)
    a(f's_sleep 4')
    a(f's_branch {lab}')
    a.label(ok)
    a('s_barrier')
    tl(a, opts, 11, vZ, T, None)
    a(f's_lshr_b32 s{sT}, s{sNO}, 1')
    a(f's_add_u32 s{sT}, s{sT}, {KVM_KT}')
    for wp in range(4):
        a(f'buffer_load_dwordx4 {v(vM+4*wp,4)}, v{vL16}, {WSr}, s{sT} offen offset:{wp*1024} sc1')
    a(f's_lshl_b32 s{sT2}, s{sW}, 10')
    a(f's_add_u32 s{sT}, s{sT}, s{sT2}')
    a(f'buffer_load_dwordx4 {v(vV+8,4)}, v{vL16}, {WSr}, s{sT} offen sc1')
    a('s_waitcnt vmcnt(0)')
    for wp in range(4):
        d = T + 8 * (wp & 1)
        a(m16(d, vM + 4 * wp, vSEL))
        a(m16(d + 4, vM + 4 * wp, vSEL + 2))
        for r in range(4):
            a(cvt(vKT + 4 * wp + r, d + 2 * r, d + 2 * r + 1))
    for wp in range(4):
        a(m32(vS + 8, v(vKT + 4 * wp, 4), v(vQ + 4 * wp, 4), None if wp == 0 else vS + 8))
    for r in range(0, 10, 2):
        a(cvt(T, vS + r, vS + r + 1))
        a(f'v_lshlrev_b32 v{vS+r}, 16, v{T}')
        a(f'v_and_b32 v{vS+r+1}, 0xffff0000, v{T}')
        a(f'v_mul_f32 v{vS+r}, 0x{f32bits(128 ** -0.5):x}, v{vS+r}')
        a(f'v_mul_f32 v{vS+r+1}, 0x{f32bits(128 ** -0.5):x}, v{vS+r+1}')
        a(cvt(T, vS + r, vS + r + 1))
        a(f'v_lshlrev_b32 v{vS+r}, 16, v{T}')
        a(f'v_and_b32 v{vS+r+1}, 0xffff0000, v{T}')
    NEG = 0xff800000
    a(f'v_mov_b32 v{T}, 0x{NEG:x}')
    for t in range(2):
        for r in range(4):
            a(f'v_cmp_le_i32 vcc, {16*t+r}, v{vQI}')
            a(f'v_cndmask_b32 v{vS+4*t+r}, v{T}, v{vS+4*t+r}, vcc')
    mx, my = T + 1, T + 2
    a(f'''
    v_max3_f32 v{mx}, v{vS}, v{vS+1}, v{vS+2}
    v_max3_f32 v{mx}, v{mx}, v{vS+3}, v{vS+4}
    v_max3_f32 v{mx}, v{mx}, v{vS+5}, v{vS+6}
    v_max3_f32 v{mx}, v{mx}, v{vS+7}, v{vS+8}
    v_max_f32 v{mx}, v{mx}, v{vS+9}
    v_mov_b32 v{my}, v{mx}
    v_permlane32_swap_b32 v{mx}, v{my}
    v_max_f32 v{mx}, v{mx}, v{my}
    v_mov_b32 v{my}, v{mx}
    v_permlane16_swap_b32 v{mx}, v{my}
    v_max_f32 v{mx}, v{mx}, v{my}
    ''')
    for r in range(10):
        a(f'v_sub_f32 v{vS+r}, v{vS+r}, v{mx}')
        a(f'v_mul_f32 v{vS+r}, s{sC}, v{vS+r}')
        a(f'v_exp_f32 v{vS+r}, v{vS+r}')
    a(f'v_add_f32 v{mx}, v{vS}, v{vS+1}')
    for r in range(2, 10):
        a(f'v_add_f32 v{mx}, v{mx}, v{vS+r}')
    a(f'''
    v_mov_b32 v{my}, v{mx}
    v_permlane32_swap_b32 v{mx}, v{my}
    v_add_f32 v{mx}, v{mx}, v{my}
    v_mov_b32 v{my}, v{mx}
    v_permlane16_swap_b32 v{mx}, v{my}
    v_add_f32 v{mx}, v{mx}, v{my}
    v_rcp_f32 v{mx}, v{mx}
    ''')
    for r in range(10):
        a(f'v_mul_f32 v{vS+r}, v{vS+r}, v{mx}')
    for r in range(4):
        a(cvt(vP + r, vS + 2 * r, vS + 2 * r + 1))
    a(cvt(vPM, vS + 8, vS + 9))
    a(cvt(vPM + 3, vS + 8, vS + 9))
    a(f'''
    s_lshl_b32 s{sT}, s{sR}, 13
    s_add_u32 s{sT}, s{sT}, s{sNS}
    s_lshl_b32 s{sT2}, s{sW}, 11
    s_add_u32 s{sT}, s{sT}, s{sT2}
    ''')
    for u in range(2):
        a(m32(vO + 4 * u, v(vV + 4 * u, 4), v(vP, 4)))
    for u in range(2):
        a(m16(vO + 4 * u, vV + 10, vPM + 2 * u, vO + 4 * u))
    for r in range(4):
        a(cvt(T + 8 + r, vO + 2 * r, vO + 2 * r + 1))
    a(f'buffer_store_dwordx4 {v(T+8,4)}, v{vL16}, {WSr}, s{sT} offen sc1')
    tl(a, opts, 12, vZ, T, None)
    l5, l6, l7 = a.newlabel('W3_g'), a.newlabel('W3_g'), a.newlabel('W3_g')
    a(f'''
    s_waitcnt vmcnt(0)
    s_barrier
    s_cmp_lg_u32 s{sW}, 0
    s_cbranch_scc1 {l6}
    s_add_u32 s{sT2}, s{sTK}, 1
    v_mov_b32 v{T}, s{sT2}
    s_mov_b64 exec, 1
    buffer_store_dword v{T}, v{vZ}, {WSr}, s{sGP} offen sc1
    s_mov_b64 exec, -1
    s_lshl_b32 s{sT}, s{sX}, 12
    s_add_u32 s{sT}, s{sT}, {GPROG}
    {l5}:
    buffer_load_dword v{T+1}, v{vL8}, {WSr}, s{sT} offen sc1
    s_waitcnt vmcnt(0)
    v_cmp_gt_u32 vcc, s{sT2}, v{T+1}
    s_cbranch_vccz {l6}
    ''')
    spin(a)
    a(f's_sleep 2')
    a(f's_branch {l5}')
    a.label(l6)
    a('s_barrier')
    tl(a, opts, 14, vZ, T, None)
    vq.reset()
    a(f's_lshl_b32 s{sT}, s{sW}, 16')
    a(f's_add_u32 s{sT}, s{sT}, s{sNS}')
    bufs = [vB + 4 * i for i in range(20)] + [vB2 + 4 * i for i in range(24)]
    nb = len(bufs)

    for i in range(32):
        if i % 2 == 0 and i > 0:
            a(f's_add_u32 s{sT}, s{sT}, 4096')
        zload(bufs[i], sT, (i % 2) * 2048, f'o{i}')
    for i in range(32):
        vq.wait(f'o{i}')
        a(m32(vA + 4 + 4 * (i & 1), ar(i * 4, 4), v(bufs[i], 4), None if i < 2 else vA + 4 + 4 * (i & 1)))
    tl(a, opts, 15, vZ, T, None)
    for r in range(4):
        a(f'v_add_f32 v{vA+4+r}, v{vA+4+r}, v{vA+8+r}')
    for i in range(2):
        a(f'ds_write_b128 v{vRW}, {v(vA+4*i,4)} offset:{i*1024}')
    a('s_waitcnt lgkmcnt(0)')
    a('s_barrier')
    skip = a.newlabel('W3_nofin')
    a(f's_cmp_ge_u32 s{sW}, 1')
    a(f's_cbranch_scc1 {skip}')
    R = vB
    for wv in range(4):
        a(f'ds_read_b128 {v(R+8*wv,4)}, v{vL16} offset:{wv*4096}')
        a(f'ds_read_b128 {v(R+8*wv+4,4)}, v{vL16} offset:{wv*4096+1024}')
    a('s_waitcnt lgkmcnt(0)')
    for r in range(8):
        a(f'v_add_f32 v{R+r}, v{R+r}, v{R+8+r}')
        a(f'v_add_f32 v{R+16+r}, v{R+16+r}, v{R+24+r}')
        a(f'v_add_f32 v{R+r}, v{R+r}, v{R+16+r}')
    X = T + 16
    for pr in range(2):
        a(cvt(T + 2, R + 2 * pr, R + 2 * pr + 1))
        a(cvt(T + 3, R + 4 + 2 * pr, R + 4 + 2 * pr + 1))
        a(f'v_lshlrev_b32 v{T+4}, 16, v{T+3}')
        a(f'v_and_b32 v{T+5}, 0xffff0000, v{T+3}')
        a(f'v_lshlrev_b32 v{T+6}, 16, v{X+pr}')
        a(f'v_and_b32 v{T+7}, 0xffff0000, v{X+pr}')
        a(f'v_add_f32 v{T+4}, v{T+4}, v{T+6}')
        a(f'v_add_f32 v{T+5}, v{T+5}, v{T+7}')
        a(cvt(T + 3, T + 4, T + 5))
        a(f'v_lshlrev_b32 v{T+4}, 16, v{T+3}')
        a(f'v_and_b32 v{T+5}, 0xffff0000, v{T+3}')
        a(f'v_lshlrev_b32 v{T+6}, 16, v{T+2}')
        a(f'v_and_b32 v{T+7}, 0xffff0000, v{T+2}')
        a(f'v_add_f32 v{T+4}, v{T+4}, v{T+6}')
        a(f'v_add_f32 v{T+5}, v{T+5}, v{T+7}')
        a(cvt(T + 8 + pr, T + 4, T + 5))
    a(f'buffer_store_dwordx2 {v(T+8,2)}, v{vOO}, {srd(S_OUT)}, s{sDN} offen')
    a.label(skip)
    a(f'''
    s_barrier
    s_add_u32 s{sTK}, s{sTK}, 7
    s_cmp_lt_u32 s{sTK}, 128
    s_cbranch_scc1 W3_seg
    ''')
    a.label('W3_done')
```

```python
from common import *
from asm import Q

sX, sR, sW = 52, 53, 54
sCB, sPAR, sI = 55, 56, 57
sT, sT2, sT3 = 58, 59, 60
sSPIN = 61
sXO = 62
S_NX = 64
sNO, sNS = 68, 69
sSEG, sC, sOB = 70, 71, 72
sDST, sDSS = 73, 74
sKIND = 75
sDN = 76
sGP = 77
SPIN_MAX = 0x400000
import os
XSC = os.environ.get('XSC', ' sc1')
SSC = os.environ.get('SSC', ' sc1')


def v(i, n=1):
    return 'v%d' % i if n == 1 else 'v[%d:%d]' % (i, i + n - 1)


def ar(i, n=1):
    return 'a%d' % i if n == 1 else 'a[%d:%d]' % (i, i + n - 1)


def cvt(d, x, y):
    return f'v_cvt_pk_bf16_f32 v{d}, v{x}, v{y}'


def spin(a):
    a(f's_add_u32 s{sSPIN}, s{sSPIN}, 1')
    a(f's_cmp_gt_u32 s{sSPIN}, 0x{SPIN_MAX:x}')
    a('s_cbranch_scc1 W_fail')


vL16, vZ, vC, vG = 0, 1, 2, 3
vLH = 4
vTMP = 10
vXF = 32
vACC = 64
vPK = 96
vWF = 128


def poll_dbg(a, word_s, cond, tmpv, sleep=8, x2=False, srdb=None):
    lab = a.newlabel('W_poll')
    ok = a.newlabel('W_pok')
    a(f's_cmp_lg_u32 s{sW}, 0')
    a(f's_cbranch_scc1 {ok}')
    a.label(lab)
    if x2:
        a(f'buffer_load_dwordx2 {v(tmpv,2)}, v{vZ}, {srd(S_DBG)}, s{word_s} offen sc1')
    else:
        a(f'buffer_load_dword v{tmpv}, v{vZ}, {srd(S_DBG)}, s{word_s} offen sc1')
    a('s_waitcnt vmcnt(0)')
    a(f'v_readfirstlane_b32 s{sT2}, v{tmpv}')
    if x2:
        a(f'v_readfirstlane_b32 s{sT3}, v{tmpv+1}')
    cond()
    a(f's_cbranch_scc1 {ok}')
    spin(a)
    a(f's_sleep {sleep}')
    a(f's_branch {lab}')
    a.label(ok)
    a('s_barrier')


def signal_add(a, off_s, val_s, op='add'):
    lab = a.newlabel('W_sig')
    a('s_waitcnt vmcnt(0)')
    a('s_barrier')
    a(f'''
    s_cmp_lg_u32 s{sW}, 0
    s_cbranch_scc1 {lab}
    v_mov_b32 v{vTMP}, s{val_s}
    s_mov_b64 exec, 1
    buffer_atomic_{op} v{vTMP}, v{vZ}, {srd(S_DBG)}, s{off_s} offen
    s_mov_b64 exec, -1
    {lab}:
    ''')


def emit_ln(a):
    WSr = srd(S_WS)
    dp = 'row_mask:0xf bank_mask:0xf'
    a(f'''
    s_lshl_b32 s{sT}, s{sX}, 5
    s_add_u32 s{sT}, s{sT}, s{sR}
    s_cmp_ge_u32 s{sT}, 128
    s_cbranch_scc1 W_noln
    s_lshl_b32 s{sT2}, s{sT}, 14
    s_lshl_b32 s{sT3}, s{sW}, 12
    s_add_u32 s{sT3}, s{sT2}, s{sT3}
    v_lshlrev_b32 v{vTMP}, 10, v{vG}
    v_lshl_add_u32 v{vTMP}, v{vC}, 4, v{vTMP}
    ''')
    X = vXF
    F = vACC
    for i in range(4):
        a(f'buffer_load_dwordx4 {v(X+4*i,4)}, v{vTMP}, {srd(S_X)}, s{sT3} offen offset:{256*i}')
    so = vTMP + 5
    a(f'''
    v_lshrrev_b32 v{so}, 2, v{vC}
    v_lshlrev_b32 v{so}, 10, v{so}
    v_and_b32 v{vTMP+6}, 3, v{vC}
    v_lshl_add_u32 v{so}, v{vTMP+6}, 8, v{so}
    v_lshl_add_u32 v{so}, v{vG}, 4, v{so}
    s_lshl_b32 s{sT3}, s{sW}, 6
    s_add_u32 s{sT2}, s{sT2}, s{sT3}
    s_add_u32 s{sT2}, s{sT2}, {XN}
    s_waitcnt vmcnt(0)
    ''')
    for i in range(16):
        a(f'v_lshlrev_b32 v{F+2*i}, 16, v{X+i}')
        a(f'v_and_b32 v{F+2*i+1}, 0xffff0000, v{X+i}')
    s_, q_, t_ = vTMP + 1, vTMP + 2, vTMP + 3
    a(f'v_add_f32 v{s_}, v{F}, v{F+1}')
    for i in range(2, 32):
        a(f'v_add_f32 v{s_}, v{s_}, v{F+i}')

    def rowsum(r):
        for sh in (1, 2, 4, 8):
            a(f'v_add_f32_dpp v{r}, v{r}, v{r} row_ror:{sh} {dp}')
    rowsum(s_)
    a(f'v_mul_f32 v{s_}, 0x{f32bits(1.0/512):x}, v{s_}')
    a(f'v_sub_f32 v{t_}, v{F}, v{s_}')
    a(f'v_mul_f32 v{q_}, v{t_}, v{t_}')
    for i in range(1, 32):
        a(f'v_sub_f32 v{t_}, v{F+i}, v{s_}')
        a(f'v_fmac_f32 v{q_}, v{t_}, v{t_}')
    rowsum(q_)
    a(f'v_mul_f32 v{q_}, 0x{f32bits(1.0/512):x}, v{q_}')

    def rnd(r):
        a(cvt(r, r, r))
        a(f'v_lshlrev_b32 v{r}, 16, v{r}')
    rnd(s_)
    rnd(q_)
    a(f'v_add_f32 v{q_}, 0x{f32bits(1e-5):x}, v{q_}')
    rnd(q_)
    a(f'v_sqrt_f32 v{q_}, v{q_}')
    rnd(q_)
    a(f'v_rcp_f32 v{t_}, v{q_}')
    a(f'v_fma_f32 v{vTMP+4}, -v{q_}, v{t_}, 1.0')
    a(f'v_fma_f32 v{t_}, v{vTMP+4}, v{t_}, v{t_}')
    for i in range(16):
        a(f'v_sub_f32 v{F+2*i}, v{F+2*i}, v{s_}')
        a(f'v_sub_f32 v{F+2*i+1}, v{F+2*i+1}, v{s_}')
        a(cvt(X + i, F + 2 * i, F + 2 * i + 1))
        a(f'v_lshlrev_b32 v{F+2*i}, 16, v{X+i}')
        a(f'v_and_b32 v{F+2*i+1}, 0xffff0000, v{X+i}')
        a(f'v_mul_f32 v{F+2*i}, v{F+2*i}, v{t_}')
        a(f'v_mul_f32 v{F+2*i+1}, v{F+2*i+1}, v{t_}')
        a(cvt(X + i, F + 2 * i, F + 2 * i + 1))
    for i in range(4):
        a(f'buffer_store_dwordx4 {v(X+4*i,4)}, v{so}, {WSr}, s{sT2} offen sc1')
        if i < 3:
            a(f's_add_u32 s{sT2}, s{sT2}, 4096')
    a.label('W_noln')


def emit_ln_signal(a):
    lab = a.newlabel('W_sig')
    a(f'''
    s_lshl_b32 s{sT}, s{sX}, 5
    s_add_u32 s{sT}, s{sT}, s{sR}
    s_cmp_ge_u32 s{sT}, 128
    s_cbranch_scc1 {lab}
    s_lshr_b32 s{sT}, s{sT}, 4
    s_lshr_b32 s{sT2}, s{sT}, 2
    s_lshl_b32 s{sT2}, s{sT2}, 2
    s_add_u32 s{sT2}, s{sT2}, {D_LN*4}
    s_and_b32 s{sT}, s{sT}, 3
    s_lshl_b32 s{sT}, s{sT}, 3
    s_lshl_b32 s{sT}, 1, s{sT}
    s_waitcnt vmcnt(0)
    s_barrier
    s_cmp_lg_u32 s{sW}, 0
    s_cbranch_scc1 {lab}
    v_mov_b32 v{vTMP}, s{sT}
    s_mov_b64 exec, 1
    buffer_atomic_add v{vTMP}, v{vZ}, {srd(S_DBG)}, s{sT2} offen
    s_mov_b64 exec, -1
    {lab}:
    ''')


def emit_wload_issue(a):
    y, z, dn = vTMP, vTMP + 1, vTMP + 8
    l1, l2, l3, dnl = (a.newlabel('W_nb') for _ in range(4))

    def cp(src):
        for i in range(4):
            a(f's_mov_b32 s{S_NX+i}, s{src+i}')
    a(f'''
    s_lshr_b32 s{sT}, s{sW}, 1
    s_lshl_b32 s{sT}, s{sT}, 2
    v_or_b32 v{y}, s{sT}, v{vG}
    v_lshlrev_b32 v{y}, 1, v{y}
    v_xor_b32 v{y}, v{y}, v{vC}
    v_lshlrev_b32 v{y}, 4, v{y}
    s_lshl_b32 s{sT}, s{sW}, 2
    v_add_u32 v{z}, s{sT}, v{vG}
    s_lshl_b32 s{sOB}, s{sW}, 10
    s_lshl_b32 s{sT3}, s{sW}, 11
    s_cmp_ge_u32 s{sCB}, 96
    s_cbranch_scc1 {l3}
    s_and_b32 s{sNO}, s{sCB}, 31
    s_lshl_b32 s{sDST}, s{sNO}, 13
    s_add_u32 s{sDST}, s{sDST}, s{sT3}
    s_lshl_b32 s{sT3}, s{sPAR}, 18
    s_add_u32 s{sDST}, s{sDST}, s{sT3}
    s_mov_b32 s{sDSS}, 0x80000
    s_lshl_b32 s{sNO}, s{sNO}, 8
    s_mov_b32 s{sNS}, {16*8192}
    v_lshl_add_u32 v{dn}, v{z}, 13, v{y}
    s_cmp_ge_u32 s{sCB}, 64
    s_cbranch_scc1 {l2}
    s_cmp_ge_u32 s{sCB}, 32
    s_cbranch_scc1 {l1}
    s_add_u32 s{sDST}, s{sDST}, {KX}
    s_mov_b32 s{sKIND}, 0
    ''')
    cp(S_WK)
    a(f's_branch {dnl}')
    a.label(l1)
    a(f's_add_u32 s{sDST}, s{sDST}, {VX}')
    a(f's_mov_b32 s{sKIND}, 1')
    cp(S_WV)
    a(f's_branch {dnl}')
    a.label(l2)
    a(f's_add_u32 s{sDST}, s{sDST}, {QX}')
    a(f's_mov_b32 s{sKIND}, 0')
    cp(S_WQ)
    a(f's_branch {dnl}')
    a.label(l3)
    a(f'''
    s_sub_u32 s{sDST}, s{sCB}, 64
    s_lshl_b32 s{sDST}, s{sDST}, 13
    s_add_u32 s{sDST}, s{sDST}, s{sT3}
    s_mul_i32 s{sT3}, s{sPAR}, {ZS}
    s_add_u32 s{sDST}, s{sDST}, s{sT3}
    s_add_u32 s{sDST}, s{sDST}, {ZX}
    s_mov_b32 s{sDSS}, {2*ZS}
    s_sub_u32 s{sNO}, s{sCB}, 96
    s_lshl_b32 s{sNO}, s{sNO}, 8
    s_mov_b32 s{sNS}, {16*3584}
    v_mul_u32_u24 v{dn}, 3584, v{z}
    v_add_u32 v{dn}, v{dn}, v{y}
    s_mov_b32 s{sKIND}, 2
    ''')
    cp(S_W1)
    a.label(dnl)
    for j in range(32):
        a(f's_add_u32 m0, s{sOB}, {j*4096}')
        a(f'buffer_load_dwordx4 v{dn}, {srd(S_NX)}, s{sNO} offen lds')
        a(f's_add_u32 s{sNO}, s{sNO}, s{sNS}')


def emit_wload_consume(a):
    y, z, f3 = vTMP, vTMP + 1, vTMP + 2
    tb = vTMP + 4
    a(f'''
    v_lshrrev_b32 v{y}, 2, v{vC}
    v_and_b32 v{z}, 1, v{vG}
    v_lshl_add_u32 v{f3}, v{z}, 2, v{y}
    v_lshl_add_u32 v{y}, v{vG}, 3, v{y}
    v_lshlrev_b32 v{y}, 8, v{y}
    v_and_b32 v{z}, 3, v{vC}
    v_lshl_add_u32 v{y}, v{z}, 3, v{y}
    s_lshl_b32 s{sT}, s{sW}, 1
    v_xor_b32 v{z}, s{sT}, v{f3}
    v_lshl_add_u32 v{tb}, v{z}, 5, v{y}
    v_add_u32 v{tb+1}, 0x10000, v{tb}
    v_xor_b32 v{tb+2}, 32, v{tb}
    v_add_u32 v{tb+3}, 0x10000, v{tb+2}
    s_waitcnt vmcnt(0)
    s_barrier
    ''')
    for u in range(2):
        for ks in range(16):
            for hf in range(2):
                off = (32 * ks + 4 * hf) * 256
                a(f'ds_read_b64_tr_b16 {v(vWF+(u*16+ks)*4+2*hf,2)}, v{tb+2*u+(1 if off >= 65536 else 0)} offset:{off & 0xffff}')
    a('s_waitcnt lgkmcnt(0)')
    a('s_barrier')


def x_dma(slot):
    WSr = srd(S_WS)
    out = []
    for hb in range(2):
        out.append(f's_add_u32 m0, s{sOB}, {slot*32768 + hb*4096}')
        for j in range(4):
            out.append(f'buffer_load_dwordx4 v{vL16}, {WSr}, s{sXO} offen offset:{j*1024}{XSC} lds')
        out.append(f's_add_u32 s{sXO}, s{sXO}, {4096 if hb == 0 else 65536 - 4096}')
    return out


def ln_wait(a):
    a(f's_mov_b32 s{sT}, {D_LN*4}')

    def cond():
        a(f's_and_b32 s{sT2}, s{sT2}, s{sT3}')
        a(f's_cmp_eq_u32 s{sT2}, 0x10101010')
    poll_dbg(a, sT, cond, vTMP, sleep=16, x2=True)


def epilogue(kind, ab):
    WSr = srd(S_WS)
    A = lambda t, u: vACC + ab * 16 + (t * 2 + u) * 4
    out = []
    for i in range(2):
        srcs = [A(0, i), A(1, i)] if kind == 1 else [A(i, 0), A(i, 1)]
        if kind == 2:
            for sreg in srcs:
                for r in range(4):
                    x = sreg + r
                    t0 = vTMP + 10 + (r & 3)
                    out += [cvt(x, x, x),
                            f'v_lshlrev_b32 v{x}, 16, v{x}',
                            f'v_mul_f32 v{t0}, 0x{f32bits(-math.log2(math.e)):x}, v{x}',
                            f'v_exp_f32 v{t0}, v{t0}',
                            f'v_add_f32 v{t0}, 1.0, v{t0}',
                            f'v_rcp_f32 v{t0}, v{t0}',
                            f'v_mul_f32 v{x}, v{x}, v{t0}']
        p = vPK + 4 * i
        out += [cvt(p, srcs[0], srcs[0] + 1), cvt(p + 1, srcs[0] + 2, srcs[0] + 3),
                cvt(p + 2, srcs[1], srcs[1] + 1), cvt(p + 3, srcs[1] + 2, srcs[1] + 3),
                f'buffer_store_dwordx4 {v(p,4)}, v{vL16}, {WSr}, s{sDST} offen offset:{i*1024}{SSC}']
    out.append(f's_mov_b32 s{sDST}, s{sDN}')
    out.append(f's_add_u32 s{sDN}, s{sDN}, s{sDSS}')
    return out


def emit_stream(a, kind, opts):
    tag = 'kvh'[kind]
    LOOP = f'W_str_{tag}'

    def xrd(slot, i):
        ks, t = i >> 1, i & 1
        off = slot * 32768 + (t * 16 + ks) * 1024
        base = vL16 if off < 65536 else vLH
        return f'ds_read_b128 {v(vXF+4*(i%8),4)}, v{base} offset:{off & 0xffff}'
    a.label(LOOP)
    for q in range(4):
        ab = q & 1
        a('s_waitcnt vmcnt(%d)' % (10 if q == 2 else 18))
        a('s_barrier')
        if q == 2:
            lab = a.newlabel('W_nosig')
            a(f'''
            s_cmp_lg_u32 s{sW}, 0
            s_cbranch_scc1 {lab}
            s_cmp_eq_u32 s{sI}, 0
            s_cbranch_scc1 {lab}
            ''')
            emit_sig(a)
            a.label(lab)
        side = x_dma((q + 3) & 3)
        epi = epilogue(kind, ab ^ 1)
        lq = Q(a, 'lgkmcnt', 15)
        for i in range(6):
            lq.issue(xrd(q, i), i)
        n = 0
        per = 2 if kind == 2 else 1
        for i in range(32):
            ks, t = i >> 1, i & 1
            lq.wait(i)
            for u in range(2):
                D = v(vACC + ab * 16 + (t * 2 + u) * 4, 4)
                C = '0' if ks == 0 else D
                W = v(vWF + (u * 16 + ks) * 4, 4)
                Xr = v(vXF + 4 * (i % 8), 4)
                if kind == 1:
                    a(f'v_mfma_f32_16x16x32_bf16 {D}, {Xr}, {W}, {C}')
                else:
                    a(f'v_mfma_f32_16x16x32_bf16 {D}, {W}, {Xr}, {C}')
                n += 1
                if u == 1 and i + 6 < 32:
                    lq.issue(xrd(q, i + 6), i + 6)
                if u == 0 and side and n > 2:
                    a(side.pop(0))
                if n > 2:
                    for _ in range(per):
                        if epi:
                            a(epi.pop(0))
        for s_ in side + epi:
            a(s_)
    if opts.get('tl'):
        for sl, val in ((4, 0), (5, 1), (6, 3), (7, 5)):
            lb = a.newlabel('W_tl')
            a(f's_cmp_lg_u32 s{sI}, {val}')
            a(f's_cbranch_scc1 {lb}')
            tl(a, opts, sl, vZ, vTMP, None)
            a.label(lb)
    a(f'''
    s_add_u32 s{sI}, s{sI}, 1
    s_cmp_lt_u32 s{sI}, 8
    s_cbranch_scc1 {LOOP}
    ''')
    a.fence()
    for s_ in epilogue(kind, 1):
        a(s_)
    a('s_branch W_str_end')


def emit_sig(a):
    a(f'''
    s_mov_b64 exec, 1
    s_lshl_b32 s{sT}, s{sI}, 2
    s_add_u32 s{sT}, s{sT}, {D_QH*4 - 4}
    s_cmp_lt_u32 s{sCB}, 64
    s_cselect_b32 s{sT2}, 0x10001, 1
    v_mov_b32 v{vTMP}, s{sT2}
    buffer_atomic_add v{vTMP}, v{vZ}, {srd(S_DBG)}, s{sT} offen
    s_mov_b64 exec, -1
    s_nop 3
    ''')


def emit_relayout(a):
    WSr = srd(S_WS)
    y, z = vTMP, vTMP + 1
    l2, ld = a.newlabel('W_rl'), a.newlabel('W_rl')
    a(f'''
    s_sub_u32 s{sI}, s{sCB}, 64
    s_lshl_b32 s{sI}, s{sI}, 1
    s_add_u32 s{sI}, s{sI}, s{sPAR}          ; 0..91 -> K-steps 2i, 2i+1
    s_lshl_b32 s{sOB}, s{sW}, 13
    v_lshrrev_b32 v{y}, 2, v{vC}
    v_lshl_add_u32 v{y}, v{vG}, 2, v{y}
    v_lshlrev_b32 v{y}, 10, v{y}
    v_and_b32 v{z}, 3, v{vC}
    v_lshl_add_u32 v{y}, v{z}, 3, v{y}
    s_lshl_b32 s{sT}, s{sW}, 8
    v_add_u32 v{y}, s{sT}, v{y}
    s_lshl_b32 s{sDST}, s{sI}, 11
    s_add_u32 s{sDST}, s{sDST}, {W3}
    s_mul_i32 s{sT}, s{sW}, {8*184*1024}
    s_add_u32 s{sDST}, s{sDST}, s{sT}
    s_cmp_ge_u32 s{sI}, 64
    s_cbranch_scc1 {l2}
    s_lshl_b32 s{sXO}, s{sI}, 16
    ''')
    for i in range(4):
        a(f's_mov_b32 s{S_NX+i}, s{S_WO+i}')
    a(f's_branch {ld}')
    a.label(l2)
    a(f's_sub_u32 s{sXO}, s{sI}, 64')
    a(f's_lshl_b32 s{sXO}, s{sXO}, 16')
    for i in range(4):
        a(f's_mov_b32 s{S_NX+i}, s{S_W2+i}')
    a.label(ld)
    a(f's_add_u32 s{sXO}, s{sXO}, s{sOB}')
    for st in range(2):
        for hb in range(2):
            a(f's_add_u32 m0, s{sOB}, {st*32768 + hb*4096}')
            a(f's_add_u32 s{sT}, s{sXO}, {st*32768 + hb*4096}')
            for j in range(4):
                a(f'buffer_load_dwordx4 v{vL16}, {srd(S_NX)}, s{sT} offen offset:{j*1024} lds')
    a('s_waitcnt vmcnt(0)')
    a('s_barrier')
    for st in range(2):
        for j in range(8):
            for hf in range(2):
                a(f'ds_read_b64_tr_b16 {v(vWF+32*st+4*j+2*hf,2)}, v{y} offset:{st*32768 + hf*16384 + j*32}')
    a('s_waitcnt lgkmcnt(0)')
    a('s_barrier')
    for j in range(8):
        for st in range(2):
            a(f'buffer_store_dwordx4 {v(vWF+32*st+4*j,4)}, v{vL16}, {WSr}, s{sDST} offen offset:{st*1024} sc1')
        a(f's_add_u32 s{sDST}, s{sDST}, {184*1024}')


def emit_w_role(a, opts):
    a('; ================= worker role =================')
    a(f'''
    s_sub_u32 s{sX}, s90, 1
    s_mov_b32 s{sR}, s91
    s_mov_b32 s{sSPIN}, 0
    v_lshrrev_b32 v{vTMP}, 6, v0
    s_nop 0
    v_readfirstlane_b32 s{sW}, v{vTMP}
    v_and_b32 v{vC}, 15, v0
    v_bfe_u32 v{vG}, v0, 4, 2
    v_and_b32 v{vTMP}, 63, v0
    v_lshlrev_b32 v{vL16}, 4, v{vTMP}
    v_add_u32 v{vLH}, 0x10000, v{vL16}
    v_mov_b32 v{vZ}, 0
    s_lshl_b32 s{sT}, s{sX}, 5
    s_add_u32 s{sT}, s{sT}, s{sR}
    s_lshr_b32 s{sCB}, s{sT}, 1
    s_and_b32 s{sPAR}, s{sT}, 1
    s_lshl_b32 s{sGP}, s{sT}, 7
    s_add_u32 s{sGP}, s{sGP}, {GPROG}
    buffer_store_dword v{vZ}, v{vZ}, {srd(S_WS)}, s{sGP} offen sc1
    s_cmp_ge_u32 s{sCB}, 110
    s_cbranch_scc1 W_relayout
    ''')
    emit_ln(a)
    emit_ln_signal(a)
    if opts.get('qlate'):
        a(f's_cmp_lt_u32 s{sCB}, 64')
        a('s_cbranch_scc1 W_noq')
        ln_wait(a)
        emit_relayout(a)
        a.label('W_noq')
    emit_wload_issue(a)
    tl(a, opts, 1, vZ, vTMP, None)
    emit_wload_consume(a)
    tl(a, opts, 2, vZ, vTMP, None)
    a(f'''
    s_mov_b32 s{sI}, 0
    s_lshl_b32 s{sOB}, s{sW}, 13
    s_lshl_b32 s{sXO}, s{sPAR}, 15
    s_add_u32 s{sXO}, s{sXO}, s{sOB}
    s_add_u32 s{sXO}, s{sXO}, {XN}
    s_mov_b32 s{sDN}, s{sDST}
    s_mov_b32 s{sDST}, 0x7FFF0000
    ''')
    ln_wait(a)
    tl(a, opts, 3, vZ, vTMP, None)
    for q in range(3):
        for s_ in x_dma(q):
            a(s_)
    for i in range(32):
        a(f'v_mov_b32 v{vACC+i}, 0')
    a('s_waitcnt vmcnt(16)')
    a(f'''
    s_cmp_eq_u32 s{sKIND}, 1
    s_cbranch_scc1 W_str_v
    s_cmp_eq_u32 s{sKIND}, 2
    s_cbranch_scc1 W_str_h
    ''')
    for kind in range(3):
        emit_stream(a, kind, opts)
    a.label('W_str_end')
    lab = a.newlabel('W_nosig')
    a(f'''
    s_waitcnt vmcnt(0)
    s_barrier
    s_cmp_lg_u32 s{sW}, 0
    s_cbranch_scc1 {lab}
    ''')
    emit_sig(a)
    a.label(lab)
    a('s_branch W_gemm_done')
    a.label('W_relayout')
    a(f's_mov_b32 s{sT}, {D_W3*4}')
    a(f's_mov_b32 s{sT2}, 1')
    signal_add(a, sT, sT2)
    a.label('W_gemm_done')
    tl(a, opts, 8, vZ, vTMP, None)
    if not opts.get('no_p3'):
        import wphase3
        wphase3.emit_phase3(a, opts)
        tl(a, opts, 10, vZ, vTMP, None)
    a('s_endpgm')
    a.label('W_fail')
    a(f'''
    v_mov_b32 v{vTMP}, 0x100
    s_mov_b32 s{sT}, {D_ERR*4}
    s_mov_b64 exec, 1
    buffer_atomic_add v{vTMP}, v{vZ}, {srd(S_DBG)}, s{sT} offen
    s_waitcnt vmcnt(0)
    s_endpgm
    ''')
```

```python
from common import *
from asm import Q

L_MEM0, L_EX, L_WO = 0, 16384, 32768
L_ZERO = L_EX + 1024
L_KVB = L_WO
SENT = 0xFFBFFFBF

sH, sW, sS, sSPIN = 52, 53, 54, 55
sPLD, sMCW, sMNX, sMCU, sMTH = 57, 58, 59, 60, 61
sKX, sT, sT2, sKVM = 62, 63, 64, 65
sXCC = 66
sM0 = 67
sMB = 68
sCOL = 70
sC = 78
sST = 80
sFLG = 84
sSENT, sBIG, sPRG, sPPO = 86, 87, 88, 89
sPS = 2
PST_S = [2, 3, 4, 5, 6, 7, 56, 100]
sMPO = 101
sKVV = 6
sAO, sWO = 36, 40
sFO = 46
sKVL = 1

vL16, vIDX, vMRD, vEXW, vOR, vPST, vPLD, vMST, vWOB, vRV = range(10)
vRL = 10
vWOH, vX = 12, 13
vPM = 14
vSEL = 16
vONE = 20
vP = 24
vL = 28
vAW = 32
vKV = 48
vT = 52
vQ, vK, vV = 64, 72, 80
vKX, vVX = 88, 96
vWS = 104
vWV = 128

SPIN_MAX = 0x200000


def v(i, n=1):
    return 'v%d' % i if n == 1 else 'v[%d:%d]' % (i, i + n - 1)


def AW(k):
    return vAW + 4 * (k % 4)


def WQ(u, k):
    b = (u * 8 + k) * 8
    return 'a[%d:%d]' % (b, b + 7)


def WK(u, k):
    b = 128 + (u * 8 + k) * 8
    return 'a[%d:%d]' % (b, b + 7)


def WV(u, k):
    return v(vWV + (u * 8 + k) * 8, 8)


def mpos(k):
    return k


def smf(d, a, b):
    return 'v_smfmac_f32_16x16x64_bf16 %s, %s, %s, v%d' % (v(d, 4), v(a, 4), b, vIDX)


def m16(d, a, b, c=None):
    return 'v_mfma_f32_16x16x16_bf16 %s, %s, %s, %s' % (v(d, 4), v(a, 2), v(b, 2), '0' if c is None else v(c, 4))


def m32(d, a, b, c=None):
    return 'v_mfma_f32_16x16x32_bf16 %s, %s, %s, %s' % (v(d, 4), v(a, 4), v(b, 4), '0' if c is None else v(c, 4))


def cvt(d, x, y):
    return f'v_cvt_pk_bf16_f32 v{d}, v{x}, v{y}'


def pka(d, x, y):
    return f'v_pk_add_f32 {v(d,2)}, {v(x,2)}, {v(y,2)}'


def spin(a, fail):
    a('s_add_u32 s%d, s%d, 1' % (sSPIN, sSPIN))
    a('s_cmp_gt_u32 s%d, 0x%x' % (sSPIN, SPIN_MAX))
    a('s_cbranch_scc1 %s' % fail)


def stamp(a, opts, i):
    if opts.get('abs'):
        lb = a.newlabel('R_ab')
        a(f's_cmp_lg_u32 s{sS}, {41 if i == 5 else 40}')
        a(f's_cbranch_scc1 {lb}')
        a(f's_memrealtime s[{16+2*i}:{17+2*i}]')
        a.label(lb)
        return
    if not opts.get('fine'):
        return
    a(f'''
    s_memtime s[{sST+2}:{sST+3}]
    s_waitcnt lgkmcnt(0)
    s_sub_u32 s{sFLG}, s{sST+2}, s{sFLG+1}
    s_add_u32 s{90+i}, s{90+i}, s{sFLG}
    s_mov_b32 s{sFLG+1}, s{sST+2}
    ''')


def emit_r_init(a, opts):
    a('; ================= R role init =================')
    t = 104
    a(f'''
    v_lshrrev_b32 v{t}, 6, v0
    s_nop 0
    v_readfirstlane_b32 s{sW}, v{t}
    v_and_b32 v{t+1}, 63, v0
    v_and_b32 v{t+2}, 15, v0
    v_bfe_u32 v{t+3}, v0, 4, 2
    v_lshlrev_b32 v{vL16}, 4, v{t+1}
    ''')
    c, g = t + 2, t + 3
    x, y, z = t + 4, t + 5, t + 6
    a(f'''
    v_bfe_u32 v{x}, v{c}, 1, 1          ; b
    v_mul_u32_u24 v{y}, 0xAAAA, v{x}
    v_add_u32 v{vIDX}, 0x4444, v{y}
    ; MRD = g*256 + b*128 + m*16 , m = 2*(c>>2) + (c&1)
    v_lshlrev_b32 v{y}, 8, v{g}
    v_lshl_add_u32 v{y}, v{x}, 7, v{y}
    v_lshrrev_b32 v{z}, 2, v{c}
    v_lshl_add_u32 v{y}, v{z}, 5, v{y}
    v_and_b32 v{z}, 1, v{c}
    v_lshl_add_u32 v{vMRD}, v{z}, 4, v{y}
    s_lshl_b32 s{sT}, s{sW}, 12
    s_add_u32 s{sT}, s{sT}, {L_EX}
    v_add_u32 v{vEXW}, s{sT}, v{vL16}
    v_xor_b32 v{vOR}, 0x1000, v{vEXW}
    s_lshl_b32 s{sT}, s{sW}, 15
    s_add_u32 s{sT}, s{sT}, {L_WO}
    v_add_u32 v{vWOB}, s{sT}, v{vL16}
    ; PST = (8w + 2g + (c>>3))*2048 + h*64 + (c&7)*8
    s_lshl_b32 s{sT}, s{sH}, 6
    s_lshl_b32 s{sT2}, s{sW}, 14
    s_add_u32 s{sT}, s{sT}, s{sT2}
    v_lshrrev_b32 v{y}, 3, v{c}
    v_lshl_add_u32 v{y}, v{g}, 1, v{y}
    v_lshlrev_b32 v{y}, 11, v{y}
    v_and_b32 v{z}, 7, v{c}
    v_lshl_add_u32 v{y}, v{z}, 3, v{y}
    v_add_u32 v{vPST}, s{sT}, v{y}
    s_lshl_b32 s{sT}, s{sH}, 11
    s_lshl_b32 s{sT2}, s{sW}, 16
    s_add_u32 s{sT}, s{sT}, s{sT2}
    v_add_u32 v{vPLD}, s{sT}, v{vL16}
    ''')
    m0o = t + 7
    a(f'''
    s_lshl_b32 s{sT}, s{sW}, 11
    s_lshl_b32 s{sT2}, s{sH}, 5                ; (gA*16 + 4*((h>>1)&3) + 2*(h&1))*16 = h*32
    s_add_u32 s{sT}, s{sT}, s{sT2}
    s_and_b32 s{sT2}, s{sH}, 6
    v_bfe_u32 v{z}, v{c}, 2, 1
    v_add_u32 v{m0o}, s{sT2}, v{z}             ; m
    v_lshlrev_b32 v{y}, 4, v{z}
    v_lshl_add_u32 v{y}, v{x}, 10, v{y}        ; + t*1024   (x = (c>>1)&1)
    v_lshl_add_u32 v{y}, v{g}, 2, v{y}
    v_add_u32 v{y}, s{sT}, v{y}
    v_and_b32 v{z}, 9, v{c}
    v_cmp_eq_u32 vcc, 0, v{z}
    v_mov_b32 v{z}, 0x40000000
    v_cndmask_b32 v{vMST}, v{z}, v{y}, vcc
    s_lshl_b32 s{sT}, s{sW}, 8
    s_lshr_b32 s{sT2}, s{sH}, 3
    s_lshl_b32 s{sT2}, s{sT2}, 5
    s_add_u32 s{sT}, s{sT}, s{sT2}
    s_and_b32 s{sT2}, s{sH}, 1
    s_lshl_b32 s{sT2}, s{sT2}, 4
    s_add_u32 s{sT}, s{sT}, s{sT2}
    v_lshlrev_b32 v{m0o}, 10, v{m0o}
    v_lshl_add_u32 v{m0o}, v{x}, 7, v{m0o}
    v_lshl_add_u32 v{m0o}, v{g}, 2, v{m0o}
    v_add_u32 v{m0o}, s{sT}, v{m0o}
    buffer_load_dword v{t+8}, v{m0o}, {srd(S_M0)}, 0 offen
    ''')
    a(f'''
    v_bfe_u32 v{y}, v{c}, 2, 1
    v_lshlrev_b32 v{y}, 4, v{y}
    v_mov_b32 v{z}, 0x3F80
    v_lshlrev_b32 v{vRV}, v{y}, v{z}
    ; SEL: S = (g == c>>2) ? ((c&1) ? 0x3F800000 : 0x3F80) : 0
    v_and_b32 v{y}, 1, v{c}
    v_lshlrev_b32 v{y}, 4, v{y}
    v_lshlrev_b32 v{y}, v{y}, v{z}
    v_lshrrev_b32 v{z}, 2, v{c}
    v_cmp_eq_u32 vcc, v{z}, v{g}
    v_mov_b32 v{vSEL+1}, 0
    v_mov_b32 v{vSEL+2}, 0
    v_cndmask_b32 v{vSEL}, 0, v{y}, vcc
    v_mov_b32 v{vSEL+3}, v{vSEL}
    v_mov_b32 v{vONE}, 0x3F803F80
    v_mov_b32 v{vONE+1}, 0x3F803F80
    v_mov_b32 v{vONE+2}, 0x3F803F80
    v_mov_b32 v{vONE+3}, 0x3F803F80
    v_mov_b32 v{vPM}, 0
    v_mov_b32 v{vPM+1}, 0
    v_mov_b32 v{vKV}, 0
    v_mov_b32 v{vKV+1}, 0
    v_mov_b32 v{vKV+2}, 0
    v_mov_b32 v{vKV+3}, 0
    s_mov_b32 s{sMB}, 0xCCCCCCCC
    s_mov_b32 s{sMB+1}, 0xCCCCCCCC
    s_mov_b32 s{sC}, 0x{f32bits(SCALE_LOG2E):x}
    s_mov_b32 s{sC+1}, 0x{f32bits(SCALE_LOG2E):x}
    s_mov_b32 s{sSENT}, 0x{SENT:x}
    s_mov_b32 s{sBIG}, 0x{f32bits(2.0**opts.get('biglog', 60)):x}
    ''')
    for k in range(4):
        m = 0x11111111 << [0, 2, 1, 3][k]
        a(f's_mov_b32 s{sCOL+2*k}, 0x{m:x}')
        a(f's_mov_b32 s{sCOL+2*k+1}, 0x{m:x}')
    r0, r1, f3, rowb = t + 9, t + 10, t + 11, t + 12
    wv = vT
    wo = vT + 4
    a(f'''
    v_bfe_u32 v{r0}, v{c}, 2, 1
    v_bfe_u32 v{r1}, v{c}, 3, 1
    v_lshrrev_b32 v{y}, 1, v{g}
    v_lshlrev_b32 v{rowb}, 4, v{y}
    v_and_b32 v{y}, 1, v{g}
    v_lshl_add_u32 v{rowb}, v{y}, 2, v{rowb}
    v_add_u32 v{rowb}, v{rowb}, v{r0}
    v_lshl_add_u32 v{rowb}, v{r1}, 3, v{rowb}
    v_lshl_add_u32 v{f3}, v{y}, 1, v{r0}
    v_lshl_add_u32 v{f3}, v{r1}, 2, v{f3}
    s_lshl_b32 s{sT}, s{sW}, 1
    v_xor_b32 v{y}, s{sT}, v{f3}
    v_lshlrev_b32 v{y}, 5, v{y}
    v_lshl_add_u32 v{y}, v{rowb}, 8, v{y}
    v_and_b32 v{z}, 3, v{c}
    v_lshl_add_u32 v{y}, v{z}, 3, v{y}
    v_add_u32 v{wv}, {L_WO}, v{y}
    v_xor_b32 v{wv+1}, 32, v{wv}
    v_add_u32 v{wv+2}, 0x10000, v{wv}
    v_add_u32 v{wv+3}, 0x10000, v{wv+1}
    v_and_b32 v{y}, 1, v{g}
    v_lshlrev_b32 v{rowb}, 4, v{y}
    v_lshrrev_b32 v{y}, 1, v{g}
    v_lshl_add_u32 v{rowb}, v{y}, 2, v{rowb}
    v_add_u32 v{rowb}, v{rowb}, v{r0}
    v_xor_b32 v{y}, s{sW}, v{f3}
    v_lshlrev_b32 v{y}, 5, v{y}
    v_lshl_add_u32 v{y}, v{rowb}, 8, v{y}
    v_lshl_add_u32 v{y}, v{z}, 3, v{y}
    v_add_u32 v{wo}, {L_WO}, v{y}
    v_xor_b32 v{wo+1}, 128, v{wo}         ; odd w'
    v_add_u32 v{wo+2}, 0x10000, v{wo}
    v_add_u32 v{wo+3}, 0x10000, v{wo+1}
    ''')
    woj = 96
    for j in range(4):
        a(f'''
        s_xor_b32 s{sT}, s{sW}, {j}
        s_and_b32 s{sT2}, s{sT}, 1
        s_lshl_b32 s{sT2}, s{sT2}, 7
        v_xor_b32 v{woj+j}, s{sT2}, v{wo}
        s_lshl_b32 s{sT}, s{sT}, 13
        v_add_u32 v{woj+j}, s{sT}, v{woj+j}
        v_add_u32 v{woj+4+j}, 0x10000, v{woj+j}
        ''')
    dq, dw = vT + 8, vT + 9
    a(f'''
    v_and_b32 v{y}, 1, v{g}
    s_lshl_b32 s{sT}, s{sW}, 1
    v_or_b32 v{y}, s{sT}, v{y}
    v_lshlrev_b32 v{y}, 1, v{y}
    v_xor_b32 v{y}, v{y}, v{c}
    v_lshlrev_b32 v{y}, 4, v{y}
    s_lshl_b32 s{sT}, s{sW}, 15
    s_lshl_b32 s{sT2}, s{sH}, 8
    s_add_u32 s{sT}, s{sT}, s{sT2}
    v_lshl_add_u32 v{dq}, v{g}, 13, v{y}
    v_add_u32 v{dq}, s{sT}, v{dq}
    s_lshl_b32 s{sT}, s{sW}, 14
    s_lshl_b32 s{sT2}, s{sH}, 17
    s_add_u32 s{sT}, s{sT}, s{sT2}
    v_lshl_add_u32 v{dw}, v{g}, 10, v{y}
    v_add_u32 v{dw}, s{sT}, v{dw}
    s_lshl_b32 s{sT}, s{sW}, 11
    s_add_u32 s{sT}, s{sT}, {L_WO}
    v_add_u32 v{vWOB}, s{sT}, v{vL16}
    v_add_u32 v{vWOH}, 0x10000, v{vWOB}
    ''')
    nt = ' nt' if opts.get('nt') else ''

    def issue(cn):
        slot = cn & 3
        kind = (0, 1, 3, 2)[cn >> 2]
        for j in range(8):
            if kind != 3:
                so = ((cn & 3) * 128 + 16 * j) * 8192
                a(f's_lshl_b32 s{sT}, s{sW}, 10')
                a(f's_add_u32 m0, s{sT}, {L_WO + slot * 32768 + j * 4096}')
                a(f's_mov_b32 s{sT2}, {so}')
                sr = (S_WQ, S_WK, S_WV)[kind]
                a(f'buffer_load_dwordx4 v{dq}, {srd(sr)}, s{sT2} offen{nt} lds')
            else:
                jh, jl = j >> 2, j & 3
                so = (64 * jh + 4 * jl) * 1024 + (cn & 3) * 256
                a(f's_lshl_b32 s{sT}, s{sW}, 12')
                a(f's_add_u32 m0, s{sT}, {L_WO + slot * 32768 + (64 * jh + 4 * jl) * 256}')
                a(f's_mov_b32 s{sT2}, {so}')
                a(f'buffer_load_dwordx4 v{dw}, {srd(S_WO)}, s{sT2} offen{nt} lds')

    def consume(cn):
        slot = cn & 3
        kind = (0, 1, 3, 2)[cn >> 2]
        if kind < 2:
            end = a.newlabel('R_cend')
            for wv_ in range(4):
                nxt = a.newlabel('R_cw')
                if wv_ < 3:
                    a(f's_cmp_lg_u32 s{sW}, {wv_}')
                    a(f's_cbranch_scc1 {nxt}')
                for kk in range(2):
                    k = 2 * (cn & 3) + kk
                    j = k ^ (2 * wv_)
                    for u in range(2):
                        for q in range(4):
                            off = (64 * (k & 3) + 32 * (q >> 1) + 2 * (q & 1)) * 256
                            b = kind * 128 + (u * 8 + j) * 8 + 2 * q
                            a(f'ds_read_b64_tr_b16 a[{b}:{b+1}], v{wv + (k >> 2) * 2 + u} offset:{off}')
                if wv_ < 3:
                    a(f's_branch {end}')
                    a.label(nxt)
            a.label(end)
        elif kind == 2:
            for kk in range(2):
                k = 2 * (cn & 3) + kk
                for u in range(2):
                    for q in range(4):
                        off = (64 * (k & 3) + 32 * (q >> 1) + 2 * (q & 1)) * 256
                        a(f'ds_read_b64_tr_b16 {v(64 + (kk * 2 + u) * 8 + 2 * q, 2)}, v{wv + (k >> 2) * 2 + u} offset:{off}')
        else:
            for j in range(4):
                for q in range(4):
                    off = (slot & 1) * 32768 + (8 * (q >> 1) + 2 * (q & 1)) * 256
                    a(f'ds_read_b64_tr_b16 {v(vWV+(slot*4+j)*8+2*q,2)}, v{woj + (slot>>1)*4 + j} offset:{off}')

    for cn in range(4):
        issue(cn)
    se = vAW
    a(f'''
    v_mov_b32 v{se}, s{sSENT}
    v_mov_b32 v{se+1}, s{sSENT}
    v_mov_b32 v{se+2}, s{sSENT}
    v_mov_b32 v{se+3}, s{sSENT}
    s_mov_b32 s{sT}, {PART}
    s_mov_b32 s{sT2}, {PART + 0x40000}
    buffer_store_dwordx4 {v(se,4)}, v{vPLD}, {srd(S_WS)}, s{sT} offen sc1
    buffer_store_dwordx4 {v(se,4)}, v{vPLD}, {srd(S_WS)}, s{sT} offen offset:1024 sc1
    buffer_store_dwordx4 {v(se,4)}, v{vPLD}, {srd(S_WS)}, s{sT2} offen sc1
    buffer_store_dwordx4 {v(se,4)}, v{vPLD}, {srd(S_WS)}, s{sT2} offen offset:1024 sc1
    s_mov_b32 s{sT}, {MEM + 8192}
    s_mov_b32 s{sT2}, {MEM + 16384}
    buffer_store_dword v{se}, v{vMST}, {srd(S_WS)}, s{sT} offen sc1
    buffer_store_dword v{se}, v{vMST}, {srd(S_WS)}, s{sT2} offen sc1
    s_lshl_b32 s{sT}, s{sW}, 11
    v_add_u32 v{y}, s{sT}, v{vL16}
    ds_write_b128 v{y}, {v(se,4)} offset:{L_MEM0}
    ds_write_b128 v{y}, {v(se,4)} offset:{L_MEM0+1024}
    ds_write_b128 v{y}, {v(se,4)} offset:{L_MEM0+8192}
    ds_write_b128 v{y}, {v(se,4)} offset:{L_MEM0+8192+1024}
    v_pk_mov_b32 {v(se+4,2)}, 0, 0
    v_pk_mov_b32 {v(se+6,2)}, 0, 0
    ds_write_b128 v{vEXW}, {v(se+4,4)} offset:1024
    s_waitcnt vmcnt(38)
    v_cmp_eq_u32 vcc, s{sSENT}, v{t+8}
    v_xor_b32 v{y}, 0x00400040, v{t+8}
    v_cndmask_b32 v{t+8}, v{t+8}, v{y}, vcc
    s_mov_b32 s{sT}, {MEM}
    buffer_store_dword v{t+8}, v{vMST}, {srd(S_WS)}, s{sT} offen sc1
    s_lshl_b32 s{sT}, s{sH}, 7
    s_lshl_b32 s{sT2}, s{sW}, 2
    s_add_u32 s{sT}, s{sT}, s{sT2}
    s_add_u32 s{sPRG}, s{sT}, {PROG}
    buffer_store_dword v{vSEL+1}, v{vSEL+1}, {srd(S_WS)}, s{sPRG} offen sc1
    ''')
    for cn in range(16):
        if cn <= 3:
            n = 32
        elif cn <= 12:
            n = 24
        else:
            n = 8 * (15 - cn)
        a(f's_waitcnt vmcnt({n})')
        a('s_barrier')
        if cn == 4:
            lab = a.newlabel('R_noarr')
            a(f'''
            s_cmp_lg_u32 s{sW}, 0
            s_cbranch_scc1 {lab}
            s_cmp_eq_u32 s{sXCC}, 0
            s_cselect_b32 s{sT}, 0x10001, 1
            v_mov_b32 v{y}, s{sT}
            v_mov_b32 v{z}, {D_RINIT*4}
            s_mov_b64 exec, 1
            buffer_atomic_add v{y}, v{z}, {srd(S_DBG)}, 0 offen
            s_mov_b64 exec, -1
            {lab}:
            ''')
        consume(cn)
        a('s_waitcnt lgkmcnt(0)')
        a('s_barrier')
        if cn < 12:
            issue(cn + 4)
        else:
            slot = cn & 3
            if slot >= 2:
                a(f'v_add_u32 v{y}, 0x10000, v{vWOB}')
            else:
                a(f'v_mov_b32 v{y}, v{vWOB}')
            for hf in range(2):
                a(f'ds_write_b128 v{y}, {v(64+hf*4,4)} offset:{(slot&1)*32768 + hf*1024}')
            lres, lend = a.newlabel('R_res'), a.newlabel('R_rese')
            a(f's_cmp_eq_u32 s{sW}, {3 ^ slot}')
            a(f's_cbranch_scc1 {lres}')
            for f in range(1, 4):
                for hf in range(2):
                    a(f'ds_write_b128 v{y}, {v(64+f*8+hf*4,4)} offset:{(slot&1)*32768 + f*8192 + hf*1024}')
            a(f's_branch {lend}')
            a.label(lres)
            for r in range(24):
                a(f'v_mov_b32 v{24+r}, v{72+r}')
            a.label(lend)
            a('s_waitcnt lgkmcnt(0)')
    for r in range(24):
        a(f'v_mov_b32 v{vWS+r}, v{24+r}')
    for jp in range(4):
        a(f's_xor_b32 s{sT}, s{sW}, {jp}')
        a(f's_lshl_b32 s{sAO+jp}, s{sT}, 11')
        a(f's_lshl_b32 s{sT}, s{sT}, 15')
        a(f's_lshl_b32 s{sT2}, s{sW}, 11')
        a(f's_add_u32 s{sT}, s{sT}, s{sT2}')
        a(f's_add_u32 s{sWO+jp}, s{sT}, {L_WO}')
    a(f'''
    s_mov_b32 s{sS}, 0
    s_mov_b32 s{sSPIN}, 0
    s_mov_b32 s{sPLD}, {PART}
    s_mov_b32 s{sPPO}, {PART + 0x40000}
    s_mov_b32 s{sMCU}, {MEM}
    s_mov_b32 s{sMNX}, {MEM+8192}
    s_mov_b32 s{sMTH}, {MEM+16384}
    s_lshl_b32 s{sM0}, s{sW}, 11
    s_lshl_b32 s{sT}, s{sH}, 13
    s_lshl_b32 s{sT2}, s{sW}, 11
    s_add_u32 s{sKX}, s{sT}, s{sT2}
    s_lshr_b32 s{sKVM}, s{sKX}, 1
    s_sub_u32 s{sKVM}, s{sKVM}, 0x20000
    ''')
    for i in range(4):
        a(f's_mov_b32 s{PST_S[i]}, {PART + i*0x10000}')
    a('s_barrier')


def wo_addr(i, k2, hf):
    slot = i >> 1
    off = slot * 32768 + ((i & 1) * 2 + k2) * 8192 + hf * 1024
    return off


def emit_kv_poll(a, fail, tmp):
    lab = a.newlabel('R_kvw')
    ok = a.newlabel('R_kvok')
    a(f'''
    s_lshl_b32 s{sT}, s{sT}, 2
    s_add_u32 s{sT}, s{sT}, {D_QH*4}
    s_cmp_lg_u32 s{sW}, 0
    s_cbranch_scc1 {ok}
    {lab}:
    buffer_load_dword v{tmp}, v{vSEL+1}, {srd(S_DBG)}, s{sT} offen sc1
    s_waitcnt vmcnt(0)
    v_readfirstlane_b32 s{sT2}, v{tmp}
    s_lshr_b32 s{sT2}, s{sT2}, 16
    s_cmp_ge_u32 s{sT2}, 128
    s_cbranch_scc1 {ok}
    s_sleep 8
    ''')
    spin(a, fail)
    a(f'''
    s_branch {lab}
    {ok}:
    s_barrier
    ''')


def emit_r_loop(a, opts, fast, tag):
    sc = '' if fast else ' sc1'
    WSr = srd(S_WS)
    FAIL = 'R_fail'
    LOOP, DONE = f'R_loop_{tag}', f'R_done_{tag}'
    SLOW, SLOWRET = f'R_slow_{tag}', f'R_slowret_{tag}'
    RP, RPOK = f'R_rp_{tag}', f'R_rpok_{tag}'
    lq = Q(a, 'lgkmcnt', 15)
    vq = Q(a, 'vmcnt', 63)
    T = vT
    c0 = vX
    ZR = vSEL + 1
    nocomm = opts.get('nocomm', 0)
    if nocomm:
        a_real = a
        class Filt:
            def __call__(self, text):
                for line in text.strip().split('\n'):
                    l = line.strip()
                    if l.startswith('s_cbranch_vccnz R_rt'):
                        continue
                    if l.startswith('s_cbranch_vccz R_rpok') or l.startswith('s_cbranch_vccz R_mok'):
                        l = l.replace('s_cbranch_vccz', 's_branch')
                    if l.startswith('s_cbranch_vccnz R_slow'):
                        continue
                    if nocomm >= 2 and l.startswith('buffer_') and self.on:
                        continue
                    a_real(l)
            def label(self, n):
                if n == LOOP:
                    self.on = True
                if n == DONE:
                    self.on = False
                a_real.label(n)
            def newlabel(self, b='L'):
                return a_real.newlabel(b)
            def fence(self):
                a_real.fence()
        a = Filt()
        a.on = False
        lq.a = a
        vq.a = a

    def dma(second):
        return f'buffer_load_dwordx4 v{vL16}, {WSr}, s{sMCW} offen' + (' offset:1024' if second else '') + ' sc1 lds'

    ABASE = [vMRD, vX]
    WBASE = [vWOB, vWOH]

    def rdA(k, dst=None):
        return f'ds_read_b128 {v(AW(k) if dst is None else dst,4)}, v{ABASE[(k >> 1) & 1]} offset:{(k & 1)*1024}'

    def setA(jp):
        return f'v_add_u32 v{ABASE[jp & 1]}, s{sAO+jp}, v{vL16}'

    def setW(jp):
        return f'v_add_u32 v{WBASE[jp & 1]}, s{sWO+jp}, v{vL16}'

    def chk(k):
        r = AW(k)
        return [f'v_max3_u32 v{c0}, v{r}, v{r+1}, v{r+2}',
                f'v_max_u32 v{c0}, v{c0}, v{r+3}',
                f'v_cmp_eq_u32 vcc, s{sSENT}, v{c0}']

    STG = [vT, vKX, vVX]

    def wo_ij(p):
        return (p, 0) if p < 4 else ((p - 4) // 3, (p - 4) % 3 + 1)

    def wo_reg(p):
        ip, j = wo_ij(p)
        return vWV + (ip * 4 + j) * 8

    def wv_reg(g):
        return STG[g % 3] if g < 13 else vWS + 8 * (g - 13)

    def wv_rd(g):
        return [f'ds_read_b128 {v(wv_reg(g)+4*hf,4)}, v{WBASE[(g >> 2) & 1]} offset:{(g & 3) * 8192 + hf * 1024}' for hf in range(2)]

    def zero4(d):
        return f'ds_read_b128 {v(d,4)}, v{ZR} offset:{L_ZERO}'

    def Qs(k, u):
        return smf(vQ + 4 * u, AW(k), WQ(u, k))

    def Ks(k, u):
        return smf(vK + 4 * u, AW(k), WK(u, k))

    def add2(d, x, y):
        return [f'v_add_f32 v{d}, v{x}, v{y}', f'v_add_f32 v{d+1}, v{x+1}, v{y+1}']

    dp = 'row_mask:0xf bank_mask:0xf'
    SE = vL
    PZ = vRL
    sKB = sT2

    def kv_dma():
        return [f's_add_u32 s{sT}, s{sKX}, {KX}',
                f's_mov_b32 m0, s{sKVL}',
                f'buffer_load_dwordx4 v{vL16}, {WSr}, s{sT} offen sc1 lds',
                f'buffer_load_dwordx4 v{vL16}, {WSr}, s{sT} offen offset:1024 sc1 lds',
                f's_add_u32 s{sT}, s{sKX}, {VX}',
                f's_mov_b32 m0, s{sKVV}',
                f'buffer_load_dwordx4 v{vL16}, {WSr}, s{sT} offen sc1 lds',
                f'buffer_load_dwordx4 v{vL16}, {WSr}, s{sT} offen offset:1024 sc1 lds',
                f's_add_u32 s{sKX}, s{sKX}, {0 if opts.get("samekv") else 0x40000}']

    KRA, VRA = vP, vP + 1

    def kv_rd():
        return [f'ds_read_b128 {v(vKX+4*j,4)}, v{(KRA, VRA)[j >> 1]} offset:{(j & 1) * 1024}' for j in range(4)]

    sKV2, sVV2 = 44, 45

    def kv_flip():
        return [f'v_add_u32 v{KRA}, s{sKVL}, v{vL16}',
                f'v_add_u32 v{VRA}, s{sKVV}, v{vL16}',
                f's_mov_b32 s{sT}, s{sKVL}', f's_mov_b32 s{sKVL}, s{sKV2}', f's_mov_b32 s{sKV2}, s{sT}',
                f's_mov_b32 s{sT}, s{sKVV}', f's_mov_b32 s{sKVV}, s{sVV2}', f's_mov_b32 s{sVV2}, s{sT}']

    if not opts.get('no_kv_flags'):
        a(f's_mov_b32 s{sT}, 0')
        emit_kv_poll(a, FAIL, vT)
    a(f's_mov_b32 s{sFO}, 0x1000')
    a(f's_add_u32 s{sKVL}, s{sWO+3}, 8192')
    a(f's_add_u32 s{sKVV}, s{sWO+3}, 16384')
    a(f's_add_u32 s{sKV2}, s{sWO+3}, 24576')
    a(f's_add_u32 s{sVV2}, s{sM0}, 8192')
    a(setW(0))
    for s_ in kv_dma():
        a(s_)
    a('s_waitcnt vmcnt(0)')
    for s_ in kv_flip():
        a(s_)
    for g_ in range(3):
        for s_ in wv_rd(g_):
            a(s_)
    a(f'''
    s_lshl_b32 s{sT}, s{sW}, 11
    s_add_u32 s{sMCW}, s{sMCU}, s{sT}
    s_mov_b32 m0, s{sM0}
    s_mov_b32 s{sMPO}, s{sMTH}
    v_add_u32 v{PZ}, s{sM0}, v{vL16}
    v_mov_b32 v{PZ+1}, 0
    ''')
    for i in range(12):
        a(f'v_pk_mov_b32 {v(vQ+2*i,2)}, 0, 0')
    for r in range(4):
        a(f'v_mov_b32 v{SE+r}, s{sSENT}')
    a('s_waitcnt vmcnt(0) lgkmcnt(0)')
    if opts.get('stamps'):
        a(f's_memtime s[{sST}:{sST+1}]')
        a('s_waitcnt lgkmcnt(0)')
        a(f's_mov_b32 s{sFLG+1}, s{sST}')
        for i in range(10):
            a(f's_mov_b32 s{90+i}, 0')
    tl(a, opts, 2, vSEL + 1, vX, None)
    a('.p2align 6')
    a.label(LOOP)

    def retry_label(k):
        return f'R_rt{k}_{tag}'

    def go_label(k):
        return f'R_go{k}_{tag}'

    MS = [AW(0), AW(2), vQ]

    def mpoll(rs):
        a(f'buffer_load_dwordx4 {v(rs,4)}, v{vL16}, {WSr}, s{sMCW} offen sc1')
        a(f'buffer_load_dwordx4 {v(rs+4,4)}, v{vL16}, {WSr}, s{sMCW} offen offset:1024 sc1')

    def mchk(rs):
        a(f'ds_write_b128 v{PZ}, {v(rs,4)}')
        a(f'v_max3_u32 v{vX}, v{rs}, v{rs+1}, v{rs+2}')
        a(f'v_max3_u32 v{vX}, v{vX}, v{rs+3}, v{rs+4}')
        a(f'v_max3_u32 v{vX}, v{vX}, v{rs+5}, v{rs+6}')
        a(f'v_max_u32 v{vX}, v{vX}, v{rs+7}')
        a(f'v_cmp_eq_u32 vcc, s{sSENT}, v{vX}')
        a(f'ds_write_b128 v{PZ}, {v(rs+4,4)} offset:1024')
    MP, MOK = f'R_mp_{tag}', f'R_mok_{tag}'
    mg = opts.get('mgap', 16)
    mpoll(MS[0])
    if mg:
        a(f's_nop {mg-1}')
    a.label(MP)
    MOKs = [f'R_mok0_{tag}', f'R_mok1_{tag}']
    for i in range(2):
        mpoll(MS[1 - i])
        a('s_waitcnt vmcnt(2)')
        mchk(MS[i])
        a(f's_cbranch_vccz {MOKs[i]}')
    spin(a, FAIL)
    a(f's_branch {MP}')

    def Vs(k, u, areg=None):
        return smf(vV + 4 * u, AW(k) if areg is None else areg, v(wv_reg(2 * k + u), 8))
    kr = kv_rd()
    kd = kv_dma()
    hk = [[f's_add_u32 s{sT2}, s{sKVM}, {KVM_KT}',
           f'buffer_store_dwordx4 {v(vKV,4)}, v{vL16}, {WSr}, s{sT2} offen sc1',
           f's_add_u32 s{sKVM}, s{sKVM}, 0x20000']]
    if opts.get('nopub'):
        hk = [[]]
    for i in (1, 0):
        a.label(MOKs[i])
        r0_ = MS[i]
        a(smf(vQ, r0_, WQ(0, 0)))
        a(setA(1))
        a(smf(vQ + 4, r0_, WQ(1, 0)))
        a(smf(vK, r0_, WK(0, 0)))
        a(smf(vK + 4, r0_, WK(1, 0)))
        a('s_waitcnt lgkmcnt(0)')
        a('s_barrier')
        a(smf(vQ, r0_ + 4, WQ(0, 1)))
        a('s_waitcnt vmcnt(0)')
        o_ = MS[1 - i]
        a(f'ds_read_b128 {v(vL if False else o_,4)}, v{ABASE[1]}')
        a(f'ds_read_b128 {v(o_+4,4)}, v{ABASE[1]} offset:1024')
        a(smf(vQ + 4, r0_ + 4, WQ(1, 1)))
        a(kd[0]); a(kd[1])
        a(setA(2))
        a(smf(vK, r0_ + 4, WK(0, 1)))
        a(kd[2])
        a(smf(vK + 4, r0_ + 4, WK(1, 1)))
        a(kd[3]); a(kd[4]); a(kd[5])
        a(Vs(0, 0, r0_))
        for s_ in wv_rd(3):
            a(s_)
        a(setW(1))
        a(Vs(0, 1, r0_))
        for s_ in wv_rd(4):
            a(s_)
        a(Vs(1, 0, r0_ + 4))
        for s_ in wv_rd(5):
            a(s_)
        a('s_waitcnt lgkmcnt(4)')
        a(Vs(1, 1, r0_ + 4))
        for s_ in wv_rd(6):
            a(s_)
        if i == 1:
            for r in range(8):
                a(f'v_mov_b32 v{AW(2)+r}, v{AW(0)+r}')
            a(f's_branch {MOK}')
    a.label(MOK)
    stamp(a, opts, 0)
    if opts.get('abs'):
        lb = a.newlabel('R_ab')
        a(f's_cmp_lg_u32 s{sS}, 41')
        a(f's_cbranch_scc1 {lb}')
        a(f's_memrealtime s[{16+14}:{17+14}]')
        a.label(lb)
    lq.reset()
    lq.ops = ['g4', 'g4', 'g5', 'g5', 'g6', 'g6']
    def Vst(k, u):
        if opts.get('skipv'):
            return
        g = 2 * k + u
        if g < 13:
            lq.wait(f'g{g}')
        a(Vs(k, u))
        if g + 3 < 13:
            for s_ in wv_rd(g + 3):
                lq.issue(s_, f'g{g+3}')
    side = [[kd[6]], [kd[7], kd[8]], [], hk[0], [],
            [f's_mov_b64 exec, 1', f'buffer_store_dword v{PZ+1}, v{ZR}, {WSr}, s{sPRG} offen sc1', f's_mov_b64 exec, -1']]
    if opts.get('nopub'):
        side = side[:4]
    if opts.get('nokv'):
        side = side[4:]
    late = [f'buffer_store_dwordx4 {v(SE,4)}, v{vPLD}, {WSr}, s{sPPO} offen{sc}',
            f'buffer_store_dword v{SE}, v{vMST}, {WSr}, s{sMPO} offen{sc}',
            f'buffer_store_dwordx4 {v(SE,4)}, v{vPLD}, {WSr}, s{sPPO} offen offset:1024{sc}']
    for k in range(2, 8):
        lq.wait(f'A{k}')
        a(Qs(k, 0))
        if k + 2 < 8:
            lq.issue(rdA(k + 2), f'A{k+2}')
        else:
            lq.issue(rdA(k - 4, AW(k + 2)), f'B{k-4}')
        if k == 2:
            a(setW(2))
        if k == 3:
            a(setA(3))
        if k == 4:
            a(setW(3))
        if k == 5:
            a(setA(1))
        Vst(k, 0)
        a(Qs(k, 1))
        if side:
            for s_ in side.pop(0):
                a(s_)
        Vst(k, 1)
        if k == 5:
            for s_ in kr:
                lq.issue(s_, 'kv')
    stamp(a, opts, 1)
    if opts.get('abs'):
        lb = a.newlabel('R_ab')
        a(f's_cmp_lg_u32 s{sS}, 41')
        a(f's_cbranch_scc1 {lb}')
        a(f's_memrealtime s[{16+16}:{17+16}]')
        a.label(lb)
    a.label(go_label(7))
    for _ in range(opts.get('xdelay', 0)):
        a('s_nop 15')
    QP, QT, KT, SM = vQ + 2, vQ + 4, vK, vQ
    O0, O1 = T + 4, T + 8
    korder = [(k, u) for k in (6, 7, 2, 3, 4, 5) for u in range(2)]
    kbuf = {6: AW(2), 7: AW(3), 2: AW(0), 3: AW(1), 4: AW(2), 5: AW(3)}

    def K(n=1):
        for _ in range(n):
            if not korder:
                return
            k, u = korder.pop(0)
            if u == 0 and k < 6:
                lq.wait(f'B{k}')
            a(smf(vK + 4 * u, kbuf[k], WK(u, k)))
            if u == 1 and k >= 6:
                lq.issue(rdA(k - 2, kbuf[k - 2]), f'B{k-2}')
    WDl = [AW(0), AW(1), AW(2), AW(3)]

    def WD(i):
        return WDl[i]
    K()
    a(f'v_add_f32 v{vQ}, v{vQ}, v{vQ+2}')
    a(f'v_add_f32 v{vQ+1}, v{vQ+1}, v{vQ+3}')
    K()
    a(late[0])
    a(f'v_add_f32 v{vQ+4}, v{vQ+4}, v{vQ+6}')
    a(f'v_add_f32 v{vQ+5}, v{vQ+5}, v{vQ+7}')
    K()
    a(cvt(QP, vQ, vQ + 1))
    a(cvt(QP + 1, vQ + 4, vQ + 5))
    K()
    a(m16(T, QP, vSEL))
    a(m16(T + 4, QP, vSEL + 2))
    K()
    if not opts.get('no_kv_flags'):
        a(f'buffer_load_dword v{vWOH}, v{ZR}, {srd(S_DBG)}, s{sFO} offen sc1')
    a(f'v_add_f32 v{vV}, v{vV}, v{vV+2}')
    K()
    a(late[1])
    a(cvt(QT, T, T + 1))
    a(cvt(QT + 1, T + 2, T + 3))
    K()
    a(cvt(QT + 2, T + 4, T + 5))
    a(cvt(QT + 3, T + 6, T + 7))
    K()
    lq.wait('kv')
    a(m32(T, vKX, QT))
    a(f'v_add_f32 v{vV+1}, v{vV+1}, v{vV+3}')
    a(m32(T + 4, vKX + 4, QT))
    a(f'v_add_f32 v{vV+4}, v{vV+4}, v{vV+6}')
    K()
    a(f'v_add_f32 v{vV+5}, v{vV+5}, v{vV+7}')
    K()
    a(late[2])
    for r in range(4):
        a(f'v_cndmask_b32 v{T+r}, v{T+r}, v{T+4+r}, s[{sMB}:{sMB+1}]')
    K()
    lq.issue(f'ds_write_b128 v{vEXW}, {v(T,4)}', 'wx')
    a(cvt(vKV + 2, vV, vV + 1))
    K()
    a(cvt(vV + 2, vV + 4, vV + 5))
    a(cvt(vV + 3, vV + 4, vV + 5))
    a(cvt(vKV + 3, vV + 4, vV + 5))
    lq.wait('wx')
    a('s_barrier')
    X = [T, T + 4, vKX, vKX + 4]
    assert not korder
    for j in range(4):
        lq.issue(f'ds_read_b128 {v(X[j],4)}, v{vL16} offset:{L_EX + j*4096}', f'x{j}')
    a(f'v_add_f32 v{vK}, v{vK}, v{vK+2}')
    a(f'v_add_f32 v{vK+1}, v{vK+1}, v{vK+3}')
    a(cvt(vKV, vK, vK + 1))
    a(f'v_add_f32 v{vK+4}, v{vK+4}, v{vK+6}')
    a(f'v_add_f32 v{vK+5}, v{vK+5}, v{vK+7}')
    a(m16(T + 8, vKV, vSEL))
    a(cvt(vKV + 1, vK + 4, vK + 5))
    lq.issue(zero4(WD(0)), 'z0')
    lq.issue(zero4(WD(1)), 'z1')
    a(m16(vK + 4, vKV, vSEL + 2))
    lq.wait('x3')
    for s_ in add2(T, T, T + 4) + add2(T + 2, T + 2, T + 6):
        a(s_)
    a(cvt(KT, T + 8, T + 9))
    a(cvt(KT + 1, T + 10, T + 11))
    for s_ in add2(vKX, vKX, vKX + 4):
        a(s_)
    a(cvt(KT + 2, vK + 4, vK + 5))
    a(cvt(KT + 3, vK + 6, vK + 7))
    for s_ in add2(vKX + 2, vKX + 2, vKX + 6):
        a(s_)
    a(m32(SM, KT, QT))
    lq.issue(zero4(WD(2)), 'z2')
    lq.issue(zero4(WD(3)), 'z3')
    for r in range(4):
        a(f'v_add_f32 v{T+r}, v{T+r}, v{vKX+r}')
    for r in range(2):
        a(f'v_mul_f32 v{T+r}, s{sC}, v{T+r}')
    lq.issue(f'ds_write_b64 v{vEXW}, {v(SM,2)} offset:3072', 'wm')
    for r in range(2, 4):
        a(f'v_mul_f32 v{T+r}, s{sC}, v{T+r}')
    for r in range(4):
        a(f'v_exp_f32 v{T+r}, v{T+r}')
    lq.wait('wm')
    a('s_barrier')
    M = [vQ, vQ + 2, vK + 4, vK + 6]
    for j in range(4):
        lq.issue(f'ds_read_b64 {v(M[j],2)}, v{vL16} offset:{L_EX + j*4096 + 3072}', f'm{j}')
    XA = [None, vOR, vK, vK + 1]
    a(cvt(T + 4, T, T + 1))
    a(cvt(T + 5, T + 2, T + 3))
    for j in (2, 3):
        a(f'v_xor_b32 v{XA[j]}, {j << 12}, v{vEXW}')
    a(f's_cmp_eq_u32 s{sS}, 63')
    a(f's_cbranch_scc1 {DONE}')
    a(f'v_mov_b32_dpp v{vP}, v{T+4} quad_perm:[0,1,0,1] {dp}')
    a(f'v_mov_b32_dpp v{vP+2}, v{T+4} quad_perm:[2,3,2,3] {dp}')
    a(f'v_mov_b32_dpp v{vP+1}, v{T+5} quad_perm:[0,1,0,1] {dp}')
    a(f'v_mov_b32_dpp v{vP+3}, v{T+5} quad_perm:[2,3,2,3] {dp}')
    lq.wait('m3')
    a(pka(vQ, vQ, vQ + 2))
    a(pka(vK + 4, vK + 4, vK + 6))
    a(pka(vQ, vQ, vK + 4))
    a(f'v_pk_mul_f32 {v(vQ,2)}, {v(vQ,2)}, s[{sC}:{sC+1}]')
    a(m32(vL, vONE, vP))
    a(f'v_exp_f32 v{vQ}, v{vQ}')
    a(m32(O0, vVX, vP))
    a(f'v_exp_f32 v{vQ+1}, v{vQ+1}')
    a(m32(O1, vVX + 4, vP))
    a(cvt(vPM, vQ, vQ + 1))
    a(m16(vL, vONE, vPM, vL))
    a(m16(O0, vKV + 2, vPM, O0))
    a(m16(O1, vV + 2, vPM, O1))
    a(f'v_rcp_f32 v{vRL}, v{vL}')
    a(f'v_max_f32 v{vX}, v{vL}, v{vRL}')
    a(f'v_mov_b32 v{vRL+1}, v{vRL}')
    a(f'v_cmp_ngt_f32 vcc, s{sBIG}, v{vX}')
    for r_ in (O0, O0 + 2, O1, O1 + 2):
        a(f'v_pk_mul_f32 {v(r_,2)}, {v(r_,2)}, {v(vRL,2)}')
    OP = vV + 4
    a(cvt(OP, O0, O0 + 1))
    a(cvt(OP + 1, O0 + 2, O0 + 3))
    a(cvt(OP + 2, O1, O1 + 1))
    a(cvt(OP + 3, O1 + 2, O1 + 3))
    lq.issue(f'ds_write_b128 v{vEXW}, {v(OP,4)} offset:2048', 'wo')
    lq.wait('z3')
    a(smf(WD(0), OP, v(wo_reg(0), 8)))
    a(smf(WD(1), OP, v(wo_reg(1), 8)))
    a(smf(WD(2), OP, v(wo_reg(2), 8)))
    a(f's_cbranch_vccnz {SLOW}')
    a(f'R_noslow_{tag}:')
    stamp(a, opts, 2)
    WAl = [OP, T, T + 4, T + 8]

    def fin(i):
        d = WD(i)
        return [
                cvt(d, d, d + 1),
                cvt(d + 1, d + 2, d + 3),
                f'buffer_store_dwordx2 {v(d,2)}, v{vPST}, {WSr}, s{PST_S[i]} offen{sc}']

    def pl(rs):
        a(f'buffer_load_dwordx4 {v(rs,4)}, v{vPLD}, {WSr}, s{sPLD} offen sc1')
        a(f'buffer_load_dwordx4 {v(rs+4,4)}, v{vPLD}, {WSr}, s{sPLD} offen offset:1024 sc1')

    RS = [AW(0), vKX, AW(2)]
    paw = opts.get('paw', 2)
    lq.wait('wo')
    a('s_barrier')
    a(smf(WD(3), OP, v(wo_reg(3), 8)))
    for j in (1, 2, 3):
        lq.issue(f'ds_read_b128 {v(WAl[j],4)}, v{XA[j]} offset:2048', f'wa{j}')
    a(f's_add_u32 s{sMCW}, s{sMNX}, s{sM0}')
    for k in range(4):
        a(f'v_cndmask_b32 v{vP+k}, 0, v{vRV}, s[{sCOL+2*k}:{sCOL+2*k+1}]')
    pend = []
    for p in range(4, 16):
        ip, j = wo_ij(p)
        lq.wait(f'wa{j}')
        a(smf(WD(ip), WAl[j], v(wo_reg(p), 8)))
        if j == 2 and ip > 0:
            pend += fin(ip - 1)
        n = {2: 1, 3: 2, 1: 2}[j]
        for x_ in pend[:n]:
            a(x_)
        pend = pend[n:]
    for x_ in pend + fin(3):
        a(x_)
    stamp(a, opts, 3)
    D = vL

    def pchk(rs, ok):
        a(m32(D, rs, vP))
        a(f'v_max3_u32 v{vX}, v{rs}, v{rs+1}, v{rs+2}')
        a(f'v_max3_u32 v{vX}, v{vX}, v{rs+3}, v{rs+4}')
        a(m32(D, rs + 4, vP, D))
        a(f'v_max3_u32 v{vX}, v{vX}, v{rs+5}, v{rs+6}')
        a(f'v_max_u32 v{vX}, v{vX}, v{rs+7}')
        a(f'v_cmp_eq_u32 vcc, s{sSENT}, v{vX}')
        a(f'v_permlane32_swap_b32 v{D}, v{D+2}')
        a(f'v_permlane32_swap_b32 v{D+1}, v{D+3}')
        a(f's_cbranch_vccz {ok}')

    def prep():
        for i in range(12):
            a(f'v_pk_mov_b32 {v(vQ+2*i,2)}, 0, 0')
        a(f'''
        v_add_u32 v{PZ}, s{sM0}, v{vL16}
        v_mov_b32 v{PZ+1}, s{sS}
        s_mov_b32 s{sPPO}, s{sPLD}
        s_mov_b32 s{sMPO}, s{sMCU}
        ''')
        for i in range(4):
            a(f's_xor_b32 s{PST_S[i]}, s{PST_S[i]}, 0x40000')

    gap = opts.get('rgap', 8)
    prep()
    for _ in range(opts.get('rdel', 0)):
        a('s_nop 15')
    pl(RS[0])
    a(f's_nop 15')
    pl(RS[1])
    a(f's_nop 15')
    a.label(RP)
    for i in range(3):
        pl(RS[(i + 2) % 3])
        a('s_waitcnt vmcnt(4)')
        pchk(RS[i], RPOK)
        if gap:
            a(f's_nop {gap-1}')
    spin(a, FAIL)
    a(f's_branch {RP}')

    def publish():
        a(f'v_add_f32 v{D}, v{D}, v{D+2}')
        a(f'v_add_f32 v{D+1}, v{D+1}, v{D+3}')
        a(f'v_permlane16_swap_b32 v{D}, v{D+1}')
        a(f'v_add_f32 v{D}, v{D}, v{D+1}')
        a(f'v_mov_b32_dpp v{D+1}, v{D} quad_perm:[1,1,3,3] {dp}')
        a(cvt(vX, D, D + 1))
        a(f'buffer_store_dword v{vX}, v{vMST}, {WSr}, s{sMNX} offen{sc}')
        stamp(a, opts, 4)
    a.label(RPOK)
    publish()
    a.label(f'R_post_{tag}')
    if not opts.get('no_kv_flags'):
        lab = a.newlabel('R_nokv')
        a(f'''
        s_cmp_ge_u32 s{sFO}, 256
        s_cbranch_scc1 {lab}
        v_readfirstlane_b32 s{sT2}, v{vWOH}
        s_lshr_b32 s{sT2}, s{sT2}, 16
        s_cmp_ge_u32 s{sT2}, 128
        s_cbranch_scc1 {lab}
        ''')
        lp = a.newlabel('R_kvw')
        a.label(lp)
        a(f'''
        s_sleep 8
        buffer_load_dword v{vWOH}, v{ZR}, {srd(S_DBG)}, s{sFO} offen sc1
        s_waitcnt vmcnt(0)
        v_readfirstlane_b32 s{sT2}, v{vWOH}
        ''')
        spin(a, FAIL)
        a(f'''
        s_lshr_b32 s{sT2}, s{sT2}, 16
        s_cmp_lt_u32 s{sT2}, 128
        s_cbranch_scc1 {lp}
        ''')
        a.label(lab)
        a(f'''
        s_add_u32 s{sT}, s{sS}, 3
        s_lshr_b32 s{sFO}, s{sT}, 1
        s_add_u32 s{sFO}, s{sFO}, {D_QH*4}
        s_and_b32 s{sT2}, s{sT}, 0x47
        s_cmp_eq_u32 s{sT2}, 0
        s_cselect_b32 s{sFO}, s{sFO}, 0x1000
        ''')
    for s_ in kv_flip():
        a(s_)
    a(setW(0))
    for g_ in (0, 2):
        for s_ in wv_rd(g_):
            a(s_)
    for r in range(4):
        a(f'v_mov_b32 v{SE+r}, s{sSENT}')
    a(f'''
    s_add_u32 s{sS}, s{sS}, 1
    s_xor_b32 s{sPLD}, s{sPLD}, 0x40000
    s_mov_b32 s{sMCU}, s{sMNX}
    s_mov_b32 s{sMNX}, s{sMTH}
    s_mov_b32 s{sMTH}, s{sMPO}
    ''')
    for _ in range(opts.get('mdelay', 0)):
        a('s_nop 15')
    a('s_waitcnt vmcnt(1)')
    for s_ in wv_rd(1):
        a(s_)
    stamp(a, opts, 5)
    a(f's_branch {LOOP}')

    a.label(SLOW)
    a('s_waitcnt lgkmcnt(0)')
    a.fence()
    Xs = [AW(0), AW(1), AW(2), AW(3)]
    Ms = [vQ, vQ + 2, vQ + 4, vQ + 6]
    for j in range(4):
        a(f'ds_read_b128 {v(Xs[j],4)}, v{vL16} offset:{L_EX + j*4096}')
        a(f'ds_read_b64 {v(Ms[j],2)}, v{vL16} offset:{L_EX + j*4096 + 3072}')
    a('s_waitcnt lgkmcnt(0)')
    x0, m0_ = Xs[0], Ms[0]
    a(pka(x0, x0, Xs[1]))
    a(pka(x0 + 2, x0 + 2, Xs[1] + 2))
    a(pka(Xs[2], Xs[2], Xs[3]))
    a(pka(Xs[2] + 2, Xs[2] + 2, Xs[3] + 2))
    a(pka(x0, x0, Xs[2]))
    a(pka(x0 + 2, x0 + 2, Xs[2] + 2))
    a(pka(m0_, m0_, Ms[1]))
    a(pka(Ms[2], Ms[2], Ms[3]))
    a(pka(m0_, m0_, Ms[2]))
    mx, my = Xs[1], Xs[1] + 1
    a(f'''
    v_max3_f32 v{mx}, v{x0}, v{x0+1}, v{x0+2}
    v_max3_f32 v{mx}, v{mx}, v{x0+3}, v{m0_}
    v_max_f32 v{mx}, v{mx}, v{m0_+1}
    v_max_f32_dpp v{mx}, v{mx}, v{mx} quad_perm:[2,3,0,1] {dp}
    v_mov_b32 v{my}, v{mx}
    v_permlane32_swap_b32 v{mx}, v{my}
    v_max_f32 v{mx}, v{mx}, v{my}
    v_mov_b32 v{my}, v{mx}
    v_permlane16_swap_b32 v{mx}, v{my}
    v_max_f32 v{mx}, v{mx}, v{my}
    ''')
    for r in [x0, x0 + 1, x0 + 2, x0 + 3, m0_, m0_ + 1]:
        a(f'v_sub_f32 v{r}, v{r}, v{mx}')
        a(f'v_mul_f32 v{r}, s{sC}, v{r}')
        a(f'v_exp_f32 v{r}, v{r}')
    a(cvt(Xs[2], x0, x0 + 1))
    a(cvt(Xs[2] + 1, x0 + 2, x0 + 3))
    a(cvt(vPM, m0_, m0_ + 1))
    a(f'v_mov_b32_dpp v{vP}, v{Xs[2]} quad_perm:[0,1,0,1] {dp}')
    a(f'v_mov_b32_dpp v{vP+1}, v{Xs[2]+1} quad_perm:[0,1,0,1] {dp}')
    a(f'v_mov_b32_dpp v{vP+2}, v{Xs[2]} quad_perm:[2,3,2,3] {dp}')
    a(f'v_mov_b32_dpp v{vP+3}, v{Xs[2]+1} quad_perm:[2,3,2,3] {dp}')
    a(m32(O0, vVX, vP))
    a(m32(O1, vVX + 4, vP))
    a(m32(vL, vONE, vP))
    a(m16(O0, vKV + 2, vPM, O0))
    a(m16(O1, vV + 2, vPM, O1))
    a(m16(vL, vONE, vPM, vL))
    a(f'v_rcp_f32 v{vRL}, v{vL}')
    for r_ in range(8):
        a(f'v_mul_f32 v{O0+r_}, v{O0+r_}, v{vRL}')
    for i in range(4):
        a(zero4(WD(i)))
    a.fence()
    for j in (2, 3):
        a(f'v_xor_b32 v{XA[j]}, {j << 12}, v{vEXW}')
    a(cvt(OP, O0, O0 + 1))
    a(cvt(OP + 1, O0 + 2, O0 + 3))
    a(cvt(OP + 2, O1, O1 + 1))
    a(cvt(OP + 3, O1 + 2, O1 + 3))
    a(f'ds_write_b128 v{vEXW}, {v(OP,4)} offset:2048')
    a('s_waitcnt lgkmcnt(0)')
    a.fence()
    for i in range(3):
        a(smf(WD(i), OP, v(wo_reg(i), 8)))
    a(f's_branch R_noslow_{tag}')

    a.label(DONE)
    a(f'''
    s_add_u32 s{sT}, s{sKVM}, {KVM_KT}
    buffer_store_dwordx4 {v(vKV,4)}, v{vL16}, {WSr}, s{sT} offen sc1
    v_mov_b32 v{vRL}, 64
    s_waitcnt vmcnt(0)
    buffer_store_dword v{vRL}, v{ZR}, {WSr}, s{sPRG} offen sc1
    ''')
    tl(a, opts, 3, vSEL + 1, vX, None)
    if opts.get('stamps'):
        a(f'''
        s_memtime s[{sST+2}:{sST+3}]
        s_waitcnt lgkmcnt(0)
        s_sub_u32 s{sT}, s{sST+2}, s{sST}
        v_mov_b32 v{vX}, s{sT}
        s_lshl_b32 s{sT}, s{sH}, 4
        s_lshl_b32 s{sT2}, s{sW}, 2
        s_add_u32 s{sT}, s{sT}, s{sT2}
        s_add_u32 s{sT}, s{sT}, {STAMP}
        buffer_store_dword v{vX}, v{ZR}, {WSr}, s{sT} offen
        v_mov_b32 v{vRL}, s{sSPIN}
        buffer_store_dword v{vRL}, v{ZR}, {WSr}, s{sT} offen offset:512
        ''')
        for i in range(10):
            a(f'v_mov_b32 v{vT+i}, s{16+2*i if opts.get("abs") else 90+i}')
            a(f's_add_u32 s{sT2}, s{sT}, {1024+512*i}')
            a(f'buffer_store_dword v{vT+i}, v{ZR}, {WSr}, s{sT2} offen')
    a('s_endpgm')


def emit_r_role(a, opts):
    emit_r_init(a, opts)
    tl(a, opts, 1, vSEL + 1, vX, None)
    lab = a.newlabel('R_iw')
    a(f'''
    v_mov_b32 v{vX}, {D_RINIT*4}
    {lab}:
    buffer_load_dword v{vRL}, v{vX}, {srd(S_DBG)}, 0 offen sc1
    s_waitcnt vmcnt(0)
    v_readfirstlane_b32 s{sT}, v{vRL}
    ''')
    spin(a, 'R_fail')
    a(f'''
    s_and_b32 s{sT2}, s{sT}, 0xffff
    s_cmp_ge_u32 s{sT2}, 32
    s_cbranch_scc1 R_iw_ok
    s_sleep 8
    s_branch {lab}
    R_iw_ok:
    s_lshr_b32 s{sT}, s{sT}, 16
    s_cmp_eq_u32 s{sT}, 32
    s_cbranch_scc0 R_safe_entry
    ''')
    if opts.get('force_safe'):
        a('s_branch R_safe_entry')
    emit_r_loop(a, opts, True, 'f')
    a.label('R_safe_entry')
    emit_r_loop(a, opts, False, 's')
    a.label('R_fail')
    a(f'''
    v_mov_b32 v{vX}, {D_ERR*4}
    v_mov_b32 v{vRL}, 1
    s_mov_b64 exec, 1
    buffer_atomic_add v{vRL}, v{vX}, {srd(S_DBG)}, 0 offen
    s_waitcnt vmcnt(0)
    s_endpgm
    ''')
```

```python
import sys
sys.path.insert(0, 'gen')
from asm import Asm
from common import *
import rrole12 as rrole

NAME = 'parallel_sum__memory_aug_recurrent_mem_tr__dense_activation_silu__prompt'
HEADER = open('cdna_kernels/%s.s.ref' % NAME).read().split('; Override launch')[0]


def prologue(a):
    a('''
    s_load_dwordx16 s[64:79], s[0:1], 0
    s_load_dwordx8 s[80:87], s[0:1], 64
    s_load_dwordx2 s[88:89], s[0:1], 96
    s_getreg_b32 s90, hwreg(HW_REG_XCC_ID)
    s_and_b32 s90, s90, 7
    s_waitcnt lgkmcnt(0)
    ''')
    tab = [(S_X, 64, 2097152), (S_M0, 66, 8192), (S_WQ, 68, 4194304), (S_WK, 70, 4194304), (S_WV, 72, 4194304),
           (S_WO, 74, 4194304), (S_W1, 80, 1835008), (S_W2, 82, 1835008), (S_OUT, 84, 2097152), (S_DBG, 86, 256),
           (S_WS, 88, WS_BYTES)]
    for d, p, n in tab:
        a(f's_mov_b32 s{d}, s{p}')
        a(f's_and_b32 s{d+1}, s{p+1}, 0xffff')
        a(f's_mov_b32 s{d+2}, {n}')
        a(f's_mov_b32 s{d+3}, 0x20000')
    a(f'''
    s_mov_b32 s{rrole.sXCC}, s90
    v_lshrrev_b32 v1, 6, v0
    s_nop 0
    v_readfirstlane_b32 s92, v1
    s_cmp_lg_u32 s92, 0
    s_cbranch_scc1 L_role_skip
    s_mov_b64 exec, 1
    s_mov_b32 s93, 0
    v_mov_b32 v3, 0
    L_role_try:
    s_lshl_b32 s91, s90, 2
    v_mov_b32 v1, 1
    v_mov_b32 v2, s91
    buffer_atomic_add v1, v2, {srd(S_DBG)}, 0 offen sc0
    s_waitcnt vmcnt(0)
    v_readfirstlane_b32 s91, v1
    s_cmp_lt_u32 s91, 32
    s_cbranch_scc1 L_role_got
    L_role_scan:
    buffer_load_dwordx4 v[4:7], v3, {srd(S_DBG)}, 0 offen sc1
    buffer_load_dwordx4 v[8:11], v3, {srd(S_DBG)}, 0 offen offset:16 sc1
    s_waitcnt vmcnt(0)
    s_mov_b32 s90, 8
    s_mov_b32 s94, 0
    ''')
    for x in range(7, -1, -1):
        a(f'v_readfirstlane_b32 s92, v{4+x}')
        a(f's_min_u32 s95, s92, 64')
        a(f's_add_u32 s94, s94, s95')
        a(f's_cmp_lt_u32 s92, 32')
        a(f's_cselect_b32 s90, {x}, s90')
    a(f'''
    s_cmp_eq_u32 s90, 8
    s_cbranch_scc1 L_role_got
    s_cmp_ge_u32 s94, 256
    s_cbranch_scc1 L_role_try
    s_add_u32 s93, s93, 1
    s_cmp_gt_u32 s93, 2000
    s_cbranch_scc1 L_role_try
    s_sleep 32
    s_branch L_role_scan
    L_role_got:
    s_and_b32 s90, s90, 7
    s_lshl_b32 s92, s90, 16
    s_min_u32 s91, s91, 64
    s_or_b32 s92, s92, s91
    v_mov_b32 v1, s92
    ds_write_b32 v3, v1
    s_waitcnt lgkmcnt(0)
    s_mov_b64 exec, -1
    L_role_skip:
    s_barrier
    v_mov_b32 v2, 0
    ds_read_b32 v1, v2
    s_waitcnt lgkmcnt(0)
    v_readfirstlane_b32 s91, v1
    s_lshr_b32 s90, s91, 16
    s_and_b32 s91, s91, 0xffff
    s_barrier
    ''')
    a('s_lshl_b32 s95, s90, 5')
    a('s_add_u32 s95, s95, s91')


def add_trace(a, opts):
    from asm import Ins
    start, step, n = opts['trace'][:3]
    skip = opts['trace'][3] if len(opts['trace']) > 3 else 0
    items = a.items
    i0 = items.index(start + ':')
    out = items[:i0 + 1]
    cnt = 0
    m = 0
    names = []
    for it in items[i0 + 1:]:
        if m < n and not isinstance(it, str):
            if cnt >= skip and (cnt - skip) % step == 0:
                out.append(Ins(f's_memtime s[{16+2*m}:{17+2*m}]'))
                names.append('%3d ' % cnt + it.text[:56])
                m += 1
            cnt += 1
        out.append(it)
        if it == 'R_done_f:':
            out.append(Ins('s_waitcnt lgkmcnt(0)'))
            out.append(Ins(f's_lshl_b32 s63, s52, 9'))
            out.append(Ins(f's_lshl_b32 s64, s53, 7'))
            out.append(Ins(f's_add_u32 s63, s63, s64'))
            out.append(Ins(f's_add_u32 s63, s63, {STAMP + 0x4000}'))
            for j in range(n):
                out.append(Ins(f'v_mov_b32 v13, s{16+2*j}'))
                out.append(Ins(f'buffer_store_dword v13, v17, s[8:11], s63 offen offset:{4*j}'))
    a.items = out
    import json
    json.dump(names, open(sys.argv[1].replace('.s', '.json'), 'w'))


def build(opts):
    a = Asm()
    prologue(a)
    a(f'''
    s_cmp_ge_u32 s91, 32
    s_cbranch_scc1 L_exit
    ''')
    a('v_mov_b32 v2, 0')
    tl(a, opts, 0, 2, 1, None)
    a(f'''
    s_cmp_lg_u32 s90, 0
    s_cbranch_scc1 L_worker
    s_mov_b32 s{rrole.sH}, s91
    ''')
    if opts.get('no_r'):
        a('s_endpgm')
    else:
        rrole.emit_r_role(a, opts)
    a.label('L_worker')
    if opts.get('workers'):
        import wrole2 as wrole
        wrole.emit_w_role(a, opts)
    a.label('L_exit')
    a('s_endpgm')
    if opts.get('trace'):
        add_trace(a, opts)
    if opts.get('skipc'):
        out, on = [], False
        for it in a.items:
            if isinstance(it, str):
                if it in ('R_mok1_f:',):
                    on = True
                if it == 'R_rp_f:':
                    on = False
                out.append(it)
                continue
            if on and (it.cls == 'mfma' or (it.cls == 'ds' and opts['skipc'] >= 1) or (it.cls in ('valu', 'trans') and not it.text.startswith(('v_cndmask_b32 v2', 'v_add_u32', 'v_mov_b32', 'v_cvt_pk_bf16_f32 v3', 'v_cvt_pk_bf16_f32 v4'))) or it.text.startswith('s_cbranch_vccnz R_slow')):
                continue
            out.append(it)
        a.items = out
    body = a.render()
    txt = HEADER + '; @launch grid=(256,1,1) block=(256,1,1) lds=163840\n'
    txt += f'''.amdgcn_target "amdgcn-amd-amdhsa--gfx950"
.text
.globl {NAME}_kernel
.p2align 8
.type {NAME}_kernel,@function
{NAME}_kernel:
'''
    txt += body
    txt += f'''.section .rodata,"a"
.p2align 6
.amdhsa_kernel {NAME}_kernel
  .amdhsa_next_free_vgpr 512
  .amdhsa_next_free_sgpr 102
  .amdhsa_accum_offset 256
  .amdhsa_group_segment_fixed_size 0
  .amdhsa_kernarg_size 104
  .amdhsa_user_sgpr_count 2
  .amdhsa_user_sgpr_kernarg_segment_ptr 1
  .amdhsa_system_sgpr_workgroup_id_x 1
.end_amdhsa_kernel
'''
    return txt, a


if __name__ == '__main__':
    import json
    opts = json.loads(sys.argv[2]) if len(sys.argv) > 2 else {}
    txt, a = build(opts)
    open(sys.argv[1], 'w').write(txt)
    print('written', sys.argv[1], 'lines', txt.count('\n'), 'auto nops', a.auto_nops)
```

```python
from common import *
from asm import Q

L_MEM0, L_EX, L_WO = 0, 16384, 32768
L_ZERO = L_EX + 1024
L_KVB = L_WO
SENT = 0xFFBFFFBF

sH, sW, sS, sSPIN = 52, 53, 54, 55
sPLD, sMCW, sMNX, sMCU, sMTH = 57, 58, 59, 60, 61
sKX, sT, sT2, sKVM = 62, 63, 64, 65
sXCC = 66
sM0 = 67
sMB = 68
sCOL = 70
sC = 78
sST = 80
sFLG = 84
sSENT, sBIG, sPRG, sPPO = 86, 87, 88, 89
sPS = 2
PST_S = [2, 3, 4, 5, 6, 7, 56, 100]
sMPO = 101
sKVV = 6
sAO, sWO = 36, 40
sFO = 46
sKVL = 1

vL16, vIDX, vMRD, vEXW, vOR, vPST, vPLD, vMST, vWOB, vRV = range(10)
vRL = 10
vWOH, vX = 12, 13
vPM = 14
vSEL = 16
vONE = 20
vP = 24
vL = 28
vAW = 32
vKV = 48
vT = 52
vQ, vK, vV = 64, 72, 80
vKX, vVX = 88, 96
vWS = 104
vWV = 128

SPIN_MAX = 0x200000


def v(i, n=1):
    return 'v%d' % i if n == 1 else 'v[%d:%d]' % (i, i + n - 1)


def AW(k):
    return vAW + 4 * (k % 4)


def WQ(u, k):
    b = (u * 8 + k) * 8
    return 'a[%d:%d]' % (b, b + 7)


def WK(u, k):
    b = 128 + (u * 8 + k) * 8
    return 'a[%d:%d]' % (b, b + 7)


def WV(u, k):
    return v(vWV + (u * 8 + k) * 8, 8)


def mpos(k):
    return k


def smf(d, a, b):
    return 'v_smfmac_f32_16x16x64_bf16 %s, %s, %s, v%d' % (v(d, 4), v(a, 4), b, vIDX)


def m16(d, a, b, c=None):
    return 'v_mfma_f32_16x16x16_bf16 %s, %s, %s, %s' % (v(d, 4), v(a, 2), v(b, 2), '0' if c is None else v(c, 4))


def m32(d, a, b, c=None):
    return 'v_mfma_f32_16x16x32_bf16 %s, %s, %s, %s' % (v(d, 4), v(a, 4), v(b, 4), '0' if c is None else v(c, 4))


def cvt(d, x, y):
    return f'v_cvt_pk_bf16_f32 v{d}, v{x}, v{y}'


def pka(d, x, y):
    return f'v_pk_add_f32 {v(d,2)}, {v(x,2)}, {v(y,2)}'


def spin(a, fail):
    a('s_add_u32 s%d, s%d, 1' % (sSPIN, sSPIN))
    a('s_cmp_gt_u32 s%d, 0x%x' % (sSPIN, SPIN_MAX))
    a('s_cbranch_scc1 %s' % fail)


def stamp(a, opts, i):
    if opts.get('abs'):
        lb = a.newlabel('R_ab')
        a(f's_cmp_lg_u32 s{sS}, {41 if i == 5 else 40}')
        a(f's_cbranch_scc1 {lb}')
        a(f's_memrealtime s[{16+2*i}:{17+2*i}]')
        a.label(lb)
        return
    if not opts.get('fine'):
        return
    a(f'''
    s_memtime s[{sST+2}:{sST+3}]
    s_waitcnt lgkmcnt(0)
    s_sub_u32 s{sFLG}, s{sST+2}, s{sFLG+1}
    s_add_u32 s{90+i}, s{90+i}, s{sFLG}
    s_mov_b32 s{sFLG+1}, s{sST+2}
    ''')


def emit_r_init(a, opts):
    a('; ================= R role init =================')
    t = 104
    a(f'''
    v_lshrrev_b32 v{t}, 6, v0
    s_nop 0
    v_readfirstlane_b32 s{sW}, v{t}
    v_and_b32 v{t+1}, 63, v0
    v_and_b32 v{t+2}, 15, v0
    v_bfe_u32 v{t+3}, v0, 4, 2
    v_lshlrev_b32 v{vL16}, 4, v{t+1}
    ''')
    c, g = t + 2, t + 3
    x, y, z = t + 4, t + 5, t + 6
    a(f'''
    v_bfe_u32 v{x}, v{c}, 1, 1          ; b
    v_mul_u32_u24 v{y}, 0xAAAA, v{x}
    v_add_u32 v{vIDX}, 0x4444, v{y}
    ; MRD = g*256 + b*128 + m*16 , m = 2*(c>>2) + (c&1)
    v_lshlrev_b32 v{y}, 8, v{g}
    v_lshl_add_u32 v{y}, v{x}, 7, v{y}
    v_lshrrev_b32 v{z}, 2, v{c}
    v_lshl_add_u32 v{y}, v{z}, 5, v{y}
    v_and_b32 v{z}, 1, v{c}
    v_lshl_add_u32 v{vMRD}, v{z}, 4, v{y}
    s_lshl_b32 s{sT}, s{sW}, 12
    s_add_u32 s{sT}, s{sT}, {L_EX}
    v_add_u32 v{vEXW}, s{sT}, v{vL16}
    v_xor_b32 v{vOR}, 0x1000, v{vEXW}
    s_lshl_b32 s{sT}, s{sW}, 15
    s_add_u32 s{sT}, s{sT}, {L_WO}
    v_add_u32 v{vWOB}, s{sT}, v{vL16}
    ; PST = (8w + 2g + (c>>3))*2048 + h*64 + (c&7)*8
    s_lshl_b32 s{sT}, s{sH}, 6
    s_lshl_b32 s{sT2}, s{sW}, 14
    s_add_u32 s{sT}, s{sT}, s{sT2}
    v_lshrrev_b32 v{y}, 3, v{c}
    v_lshl_add_u32 v{y}, v{g}, 1, v{y}
    v_lshlrev_b32 v{y}, 11, v{y}
    v_and_b32 v{z}, 7, v{c}
    v_lshl_add_u32 v{y}, v{z}, 3, v{y}
    v_add_u32 v{vPST}, s{sT}, v{y}
    s_lshl_b32 s{sT}, s{sH}, 11
    s_lshl_b32 s{sT2}, s{sW}, 16
    s_add_u32 s{sT}, s{sT}, s{sT2}
    v_add_u32 v{vPLD}, s{sT}, v{vL16}
    ''')
    m0o = t + 7
    a(f'''
    s_lshl_b32 s{sT}, s{sW}, 11
    s_lshl_b32 s{sT2}, s{sH}, 5                ; (gA*16 + 4*((h>>1)&3) + 2*(h&1))*16 = h*32
    s_add_u32 s{sT}, s{sT}, s{sT2}
    s_and_b32 s{sT2}, s{sH}, 6
    v_bfe_u32 v{z}, v{c}, 2, 1
    v_add_u32 v{m0o}, s{sT2}, v{z}             ; m
    v_lshlrev_b32 v{y}, 4, v{z}
    v_lshl_add_u32 v{y}, v{x}, 10, v{y}        ; + t*1024   (x = (c>>1)&1)
    v_lshl_add_u32 v{y}, v{g}, 2, v{y}
    v_add_u32 v{y}, s{sT}, v{y}
    v_and_b32 v{z}, 9, v{c}
    v_cmp_eq_u32 vcc, 0, v{z}
    v_mov_b32 v{z}, 0x40000000
    v_cndmask_b32 v{vMST}, v{z}, v{y}, vcc
    s_lshl_b32 s{sT}, s{sW}, 8
    s_lshr_b32 s{sT2}, s{sH}, 3
    s_lshl_b32 s{sT2}, s{sT2}, 5
    s_add_u32 s{sT}, s{sT}, s{sT2}
    s_and_b32 s{sT2}, s{sH}, 1
    s_lshl_b32 s{sT2}, s{sT2}, 4
    s_add_u32 s{sT}, s{sT}, s{sT2}
    v_lshlrev_b32 v{m0o}, 10, v{m0o}
    v_lshl_add_u32 v{m0o}, v{x}, 7, v{m0o}
    v_lshl_add_u32 v{m0o}, v{g}, 2, v{m0o}
    v_add_u32 v{m0o}, s{sT}, v{m0o}
    buffer_load_dword v{t+8}, v{m0o}, {srd(S_M0)}, 0 offen
    ''')
    a(f'''
    v_bfe_u32 v{y}, v{c}, 2, 1
    v_lshlrev_b32 v{y}, 4, v{y}
    v_mov_b32 v{z}, 0x3F80
    v_lshlrev_b32 v{vRV}, v{y}, v{z}
    ; SEL: S = (g == c>>2) ? ((c&1) ? 0x3F800000 : 0x3F80) : 0
    v_and_b32 v{y}, 1, v{c}
    v_lshlrev_b32 v{y}, 4, v{y}
    v_lshlrev_b32 v{y}, v{y}, v{z}
    v_lshrrev_b32 v{z}, 2, v{c}
    v_cmp_eq_u32 vcc, v{z}, v{g}
    v_mov_b32 v{vSEL+1}, 0
    v_mov_b32 v{vSEL+2}, 0
    v_cndmask_b32 v{vSEL}, 0, v{y}, vcc
    v_mov_b32 v{vSEL+3}, v{vSEL}
    v_mov_b32 v{vONE}, 0x3F803F80
    v_mov_b32 v{vONE+1}, 0x3F803F80
    v_mov_b32 v{vONE+2}, 0x3F803F80
    v_mov_b32 v{vONE+3}, 0x3F803F80
    v_mov_b32 v{vPM}, 0
    v_mov_b32 v{vPM+1}, 0
    v_mov_b32 v{vKV}, 0
    v_mov_b32 v{vKV+1}, 0
    v_mov_b32 v{vKV+2}, 0
    v_mov_b32 v{vKV+3}, 0
    s_mov_b32 s{sMB}, 0xCCCCCCCC
    s_mov_b32 s{sMB+1}, 0xCCCCCCCC
    s_mov_b32 s{sC}, 0x{f32bits(SCALE_LOG2E):x}
    s_mov_b32 s{sC+1}, 0x{f32bits(SCALE_LOG2E):x}
    s_mov_b32 s{sSENT}, 0x{SENT:x}
    s_mov_b32 s{sBIG}, 0x{f32bits(2.0**opts.get('biglog', 60)):x}
    ''')
    for k in range(4):
        m = 0x11111111 << [0, 2, 1, 3][k]
        a(f's_mov_b32 s{sCOL+2*k}, 0x{m:x}')
        a(f's_mov_b32 s{sCOL+2*k+1}, 0x{m:x}')
    r0, r1, f3, rowb = t + 9, t + 10, t + 11, t + 12
    wv = vT
    wo = vT + 4
    a(f'''
    v_bfe_u32 v{r0}, v{c}, 2, 1
    v_bfe_u32 v{r1}, v{c}, 3, 1
    v_lshrrev_b32 v{y}, 1, v{g}
    v_lshlrev_b32 v{rowb}, 4, v{y}
    v_and_b32 v{y}, 1, v{g}
    v_lshl_add_u32 v{rowb}, v{y}, 2, v{rowb}
    v_add_u32 v{rowb}, v{rowb}, v{r0}
    v_lshl_add_u32 v{rowb}, v{r1}, 3, v{rowb}
    v_lshl_add_u32 v{f3}, v{y}, 1, v{r0}
    v_lshl_add_u32 v{f3}, v{r1}, 2, v{f3}
    s_lshl_b32 s{sT}, s{sW}, 1
    v_xor_b32 v{y}, s{sT}, v{f3}
    v_lshlrev_b32 v{y}, 5, v{y}
    v_lshl_add_u32 v{y}, v{rowb}, 8, v{y}
    v_and_b32 v{z}, 3, v{c}
    v_lshl_add_u32 v{y}, v{z}, 3, v{y}
    v_add_u32 v{wv}, {L_WO}, v{y}
    v_xor_b32 v{wv+1}, 32, v{wv}
    v_add_u32 v{wv+2}, 0x10000, v{wv}
    v_add_u32 v{wv+3}, 0x10000, v{wv+1}
    v_and_b32 v{y}, 1, v{g}
    v_lshlrev_b32 v{rowb}, 4, v{y}
    v_lshrrev_b32 v{y}, 1, v{g}
    v_lshl_add_u32 v{rowb}, v{y}, 2, v{rowb}
    v_add_u32 v{rowb}, v{rowb}, v{r0}
    v_xor_b32 v{y}, s{sW}, v{f3}
    v_lshlrev_b32 v{y}, 5, v{y}
    v_lshl_add_u32 v{y}, v{rowb}, 8, v{y}
    v_lshl_add_u32 v{y}, v{z}, 3, v{y}
    v_add_u32 v{wo}, {L_WO}, v{y}
    v_xor_b32 v{wo+1}, 128, v{wo}         ; odd w'
    v_add_u32 v{wo+2}, 0x10000, v{wo}
    v_add_u32 v{wo+3}, 0x10000, v{wo+1}
    ''')
    woj = 96
    for j in range(4):
        a(f'''
        s_xor_b32 s{sT}, s{sW}, {j}
        s_and_b32 s{sT2}, s{sT}, 1
        s_lshl_b32 s{sT2}, s{sT2}, 7
        v_xor_b32 v{woj+j}, s{sT2}, v{wo}
        s_lshl_b32 s{sT}, s{sT}, 13
        v_add_u32 v{woj+j}, s{sT}, v{woj+j}
        v_add_u32 v{woj+4+j}, 0x10000, v{woj+j}
        ''')
    dq, dw = vT + 8, vT + 9
    a(f'''
    v_and_b32 v{y}, 1, v{g}
    s_lshl_b32 s{sT}, s{sW}, 1
    v_or_b32 v{y}, s{sT}, v{y}
    v_lshlrev_b32 v{y}, 1, v{y}
    v_xor_b32 v{y}, v{y}, v{c}
    v_lshlrev_b32 v{y}, 4, v{y}
    s_lshl_b32 s{sT}, s{sW}, 15
    s_lshl_b32 s{sT2}, s{sH}, 8
    s_add_u32 s{sT}, s{sT}, s{sT2}
    v_lshl_add_u32 v{dq}, v{g}, 13, v{y}
    v_add_u32 v{dq}, s{sT}, v{dq}
    s_lshl_b32 s{sT}, s{sW}, 14
    s_lshl_b32 s{sT2}, s{sH}, 17
    s_add_u32 s{sT}, s{sT}, s{sT2}
    v_lshl_add_u32 v{dw}, v{g}, 10, v{y}
    v_add_u32 v{dw}, s{sT}, v{dw}
    s_lshl_b32 s{sT}, s{sW}, 11
    s_add_u32 s{sT}, s{sT}, {L_WO}
    v_add_u32 v{vWOB}, s{sT}, v{vL16}
    v_add_u32 v{vWOH}, 0x10000, v{vWOB}
    ''')
    nt = ' nt' if opts.get('nt') else ''

    def issue(cn):
        slot = cn & 3
        kind = (0, 1, 3, 2)[cn >> 2]
        for j in range(8):
            if kind != 3:
                so = ((cn & 3) * 128 + 16 * j) * 8192
                a(f's_lshl_b32 s{sT}, s{sW}, 10')
                a(f's_add_u32 m0, s{sT}, {L_WO + slot * 32768 + j * 4096}')
                a(f's_mov_b32 s{sT2}, {so}')
                sr = (S_WQ, S_WV, S_WK)[kind]
                a(f'buffer_load_dwordx4 v{dq}, {srd(sr)}, s{sT2} offen{nt} lds')
            else:
                jh, jl = j >> 2, j & 3
                so = (64 * jh + 4 * jl) * 1024 + (cn & 3) * 256
                a(f's_lshl_b32 s{sT}, s{sW}, 12')
                a(f's_add_u32 m0, s{sT}, {L_WO + slot * 32768 + (64 * jh + 4 * jl) * 256}')
                a(f's_mov_b32 s{sT2}, {so}')
                a(f'buffer_load_dwordx4 v{dw}, {srd(S_WO)}, s{sT2} offen{nt} lds')

    def consume(cn):
        slot = cn & 3
        kind = (0, 1, 3, 2)[cn >> 2]
        if kind < 2:
            end = a.newlabel('R_cend')
            for wv_ in range(4):
                nxt = a.newlabel('R_cw')
                if wv_ < 3:
                    a(f's_cmp_lg_u32 s{sW}, {wv_}')
                    a(f's_cbranch_scc1 {nxt}')
                for kk in range(2):
                    k = 2 * (cn & 3) + kk
                    j = k ^ (2 * wv_)
                    for u in range(2):
                        for q in range(4):
                            off = (64 * (k & 3) + 32 * (q >> 1) + 2 * (q & 1)) * 256
                            b = kind * 128 + (u * 8 + j) * 8 + 2 * q
                            a(f'ds_read_b64_tr_b16 a[{b}:{b+1}], v{wv + (k >> 2) * 2 + u} offset:{off}')
                if wv_ < 3:
                    a(f's_branch {end}')
                    a.label(nxt)
            a.label(end)
        elif kind == 2:
            for kk in range(2):
                k = 2 * (cn & 3) + kk
                for u in range(2):
                    for q in range(4):
                        off = (64 * (k & 3) + 32 * (q >> 1) + 2 * (q & 1)) * 256
                        a(f'ds_read_b64_tr_b16 {v(64 + (kk * 2 + u) * 8 + 2 * q, 2)}, v{wv + (k >> 2) * 2 + u} offset:{off}')
        else:
            for j in range(4):
                for q in range(4):
                    off = (slot & 1) * 32768 + (8 * (q >> 1) + 2 * (q & 1)) * 256
                    a(f'ds_read_b64_tr_b16 {v(vWV+(slot*4+j)*8+2*q,2)}, v{woj + (slot>>1)*4 + j} offset:{off}')

    for cn in range(4):
        issue(cn)
    se = vAW
    a(f'''
    v_mov_b32 v{se}, s{sSENT}
    v_mov_b32 v{se+1}, s{sSENT}
    v_mov_b32 v{se+2}, s{sSENT}
    v_mov_b32 v{se+3}, s{sSENT}
    s_mov_b32 s{sT}, {PART}
    s_mov_b32 s{sT2}, {PART + 0x40000}
    buffer_store_dwordx4 {v(se,4)}, v{vPLD}, {srd(S_WS)}, s{sT} offen sc1
    buffer_store_dwordx4 {v(se,4)}, v{vPLD}, {srd(S_WS)}, s{sT} offen offset:1024 sc1
    buffer_store_dwordx4 {v(se,4)}, v{vPLD}, {srd(S_WS)}, s{sT2} offen sc1
    buffer_store_dwordx4 {v(se,4)}, v{vPLD}, {srd(S_WS)}, s{sT2} offen offset:1024 sc1
    s_mov_b32 s{sT}, {MEM + 8192}
    s_mov_b32 s{sT2}, {MEM + 16384}
    buffer_store_dword v{se}, v{vMST}, {srd(S_WS)}, s{sT} offen sc1
    buffer_store_dword v{se}, v{vMST}, {srd(S_WS)}, s{sT2} offen sc1
    s_lshl_b32 s{sT}, s{sW}, 11
    v_add_u32 v{y}, s{sT}, v{vL16}
    ds_write_b128 v{y}, {v(se,4)} offset:{L_MEM0}
    ds_write_b128 v{y}, {v(se,4)} offset:{L_MEM0+1024}
    ds_write_b128 v{y}, {v(se,4)} offset:{L_MEM0+8192}
    ds_write_b128 v{y}, {v(se,4)} offset:{L_MEM0+8192+1024}
    v_pk_mov_b32 {v(se+4,2)}, 0, 0
    v_pk_mov_b32 {v(se+6,2)}, 0, 0
    ds_write_b128 v{vEXW}, {v(se+4,4)} offset:1024
    s_waitcnt vmcnt(38)
    v_cmp_eq_u32 vcc, s{sSENT}, v{t+8}
    v_xor_b32 v{y}, 0x00400040, v{t+8}
    v_cndmask_b32 v{t+8}, v{t+8}, v{y}, vcc
    s_mov_b32 s{sT}, {MEM}
    buffer_store_dword v{t+8}, v{vMST}, {srd(S_WS)}, s{sT} offen sc1
    s_lshl_b32 s{sT}, s{sH}, 7
    s_lshl_b32 s{sT2}, s{sW}, 2
    s_add_u32 s{sT}, s{sT}, s{sT2}
    s_add_u32 s{sPRG}, s{sT}, {PROG}
    buffer_store_dword v{vSEL+1}, v{vSEL+1}, {srd(S_WS)}, s{sPRG} offen sc1
    ''')
    for cn in range(16):
        if cn <= 3:
            n = 32
        elif cn <= 12:
            n = 24
        else:
            n = 8 * (15 - cn)
        a(f's_waitcnt vmcnt({n})')
        a('s_barrier')
        if cn == 4:
            lab = a.newlabel('R_noarr')
            a(f'''
            s_cmp_lg_u32 s{sW}, 0
            s_cbranch_scc1 {lab}
            s_cmp_eq_u32 s{sXCC}, 0
            s_cselect_b32 s{sT}, 0x10001, 1
            v_mov_b32 v{y}, s{sT}
            v_mov_b32 v{z}, {D_RINIT*4}
            s_mov_b64 exec, 1
            buffer_atomic_add v{y}, v{z}, {srd(S_DBG)}, 0 offen
            s_mov_b64 exec, -1
            {lab}:
            ''')
        consume(cn)
        a('s_waitcnt lgkmcnt(0)')
        a('s_barrier')
        if cn < 12:
            issue(cn + 4)
        else:
            slot = cn & 3
            if slot >= 2:
                a(f'v_add_u32 v{y}, 0x10000, v{vWOB}')
            else:
                a(f'v_mov_b32 v{y}, v{vWOB}')
            for hf in range(2):
                a(f'ds_write_b128 v{y}, {v(64+hf*4,4)} offset:{(slot&1)*32768 + hf*1024}')
            lres, lend = a.newlabel('R_res'), a.newlabel('R_rese')
            a(f's_cmp_eq_u32 s{sW}, {3 ^ slot}')
            a(f's_cbranch_scc1 {lres}')
            for f in range(1, 4):
                for hf in range(2):
                    a(f'ds_write_b128 v{y}, {v(64+f*8+hf*4,4)} offset:{(slot&1)*32768 + f*8192 + hf*1024}')
            a(f's_branch {lend}')
            a.label(lres)
            for r in range(24):
                a(f'v_mov_b32 v{24+r}, v{72+r}')
            a.label(lend)
            a('s_waitcnt lgkmcnt(0)')
    for r in range(24):
        a(f'v_mov_b32 v{vWS+r}, v{24+r}')
    for jp in range(4):
        a(f's_xor_b32 s{sT}, s{sW}, {jp}')
        a(f's_lshl_b32 s{sAO+jp}, s{sT}, 11')
        a(f's_lshl_b32 s{sT}, s{sT}, 15')
        a(f's_lshl_b32 s{sT2}, s{sW}, 11')
        a(f's_add_u32 s{sT}, s{sT}, s{sT2}')
        a(f's_add_u32 s{sWO+jp}, s{sT}, {L_WO}')
    a(f'''
    s_mov_b32 s{sS}, 0
    s_mov_b32 s{sSPIN}, 0
    s_mov_b32 s{sPLD}, {PART}
    s_mov_b32 s{sPPO}, {PART + 0x40000}
    s_mov_b32 s{sMCU}, {MEM}
    s_mov_b32 s{sMNX}, {MEM+8192}
    s_mov_b32 s{sMTH}, {MEM+16384}
    s_lshl_b32 s{sM0}, s{sW}, 11
    s_lshl_b32 s{sT}, s{sH}, 13
    s_lshl_b32 s{sT2}, s{sW}, 11
    s_add_u32 s{sKX}, s{sT}, s{sT2}
    s_lshr_b32 s{sKVM}, s{sKX}, 1
    s_sub_u32 s{sKVM}, s{sKVM}, 0x20000
    ''')
    for i in range(4):
        a(f's_mov_b32 s{PST_S[i]}, {PART + i*0x10000}')
    a('s_barrier')


def wo_addr(i, k2, hf):
    slot = i >> 1
    off = slot * 32768 + ((i & 1) * 2 + k2) * 8192 + hf * 1024
    return off


def emit_kv_poll(a, fail, tmp):
    lab = a.newlabel('R_kvw')
    ok = a.newlabel('R_kvok')
    a(f'''
    s_lshl_b32 s{sT}, s{sT}, 2
    s_add_u32 s{sT}, s{sT}, {D_QH*4}
    s_cmp_lg_u32 s{sW}, 0
    s_cbranch_scc1 {ok}
    {lab}:
    buffer_load_dword v{tmp}, v{vSEL+1}, {srd(S_DBG)}, s{sT} offen sc1
    s_waitcnt vmcnt(0)
    v_readfirstlane_b32 s{sT2}, v{tmp}
    s_lshr_b32 s{sT2}, s{sT2}, 16
    s_cmp_ge_u32 s{sT2}, 128
    s_cbranch_scc1 {ok}
    s_sleep 8
    ''')
    spin(a, fail)
    a(f'''
    s_branch {lab}
    {ok}:
    s_barrier
    ''')


def emit_r_loop(a, opts, fast, tag):
    sc = '' if fast else ' sc1'
    WSr = srd(S_WS)
    FAIL = 'R_fail'
    LOOP, DONE = f'R_loop_{tag}', f'R_done_{tag}'
    SLOW, SLOWRET = f'R_slow_{tag}', f'R_slowret_{tag}'
    RP, RPOK = f'R_rp_{tag}', f'R_rpok_{tag}'
    lq = Q(a, 'lgkmcnt', 15)
    vq = Q(a, 'vmcnt', 63)
    T = vT
    c0 = vX
    ZR = vSEL + 1
    nocomm = opts.get('nocomm', 0)
    if nocomm:
        a_real = a
        class Filt:
            def __call__(self, text):
                for line in text.strip().split('\n'):
                    l = line.strip()
                    if l.startswith('s_cbranch_vccnz R_rt'):
                        continue
                    if l.startswith('s_cbranch_vccz R_rpok') or l.startswith('s_cbranch_vccz R_mok'):
                        l = l.replace('s_cbranch_vccz', 's_branch')
                    if l.startswith('s_cbranch_vccnz R_slow'):
                        continue
                    if nocomm >= 2 and l.startswith('buffer_') and self.on:
                        continue
                    a_real(l)
            def label(self, n):
                if n == LOOP:
                    self.on = True
                if n == DONE:
                    self.on = False
                a_real.label(n)
            def newlabel(self, b='L'):
                return a_real.newlabel(b)
            def fence(self):
                a_real.fence()
        a = Filt()
        a.on = False
        lq.a = a
        vq.a = a

    def dma(second):
        return f'buffer_load_dwordx4 v{vL16}, {WSr}, s{sMCW} offen' + (' offset:1024' if second else '') + ' sc1 lds'

    ABASE = [vMRD, vX]
    WBASE = [vWOB, vWOH]

    def rdA(k, dst=None):
        return f'ds_read_b128 {v(AW(k) if dst is None else dst,4)}, v{ABASE[(k >> 1) & 1]} offset:{(k & 1)*1024}'

    def setA(jp):
        return f'v_add_u32 v{ABASE[jp & 1]}, s{sAO+jp}, v{vL16}'

    def setW(jp):
        return f'v_add_u32 v{WBASE[jp & 1]}, s{sWO+jp}, v{vL16}'

    def chk(k):
        r = AW(k)
        return [f'v_max3_u32 v{c0}, v{r}, v{r+1}, v{r+2}',
                f'v_max_u32 v{c0}, v{c0}, v{r+3}',
                f'v_cmp_eq_u32 vcc, s{sSENT}, v{c0}']

    STG = [vT, vKX, vVX]

    def wo_ij(p):
        return (p, 0) if p < 4 else ((p - 4) // 3, (p - 4) % 3 + 1)

    def wo_reg(p):
        ip, j = wo_ij(p)
        return vWV + (ip * 4 + j) * 8

    def wv_reg(g):
        return STG[g % 3] if g < 13 else vWS + 8 * (g - 13)

    def wv_rd(g):
        return [f'ds_read_b128 {v(wv_reg(g)+4*hf,4)}, v{WBASE[(g >> 2) & 1]} offset:{(g & 3) * 8192 + hf * 1024}' for hf in range(2)]

    def zero4(d):
        return f'ds_read_b128 {v(d,4)}, v{ZR} offset:{L_ZERO}'

    def Qs(k, u):
        return smf(vQ + 4 * u, AW(k), WQ(u, k))

    def Ks(k, u):
        return smf(vK + 4 * u, AW(k), WK(u, k))

    def add2(d, x, y):
        return [f'v_add_f32 v{d}, v{x}, v{y}', f'v_add_f32 v{d+1}, v{x+1}, v{y+1}']

    dp = 'row_mask:0xf bank_mask:0xf'
    SE = vL
    PZ = vRL
    sKB = sT2

    def kv_dma():
        return [f's_add_u32 s{sT}, s{sKX}, {KX}',
                f's_mov_b32 m0, s{sKVL}',
                f'buffer_load_dwordx4 v{vL16}, {WSr}, s{sT} offen sc1 lds',
                f'buffer_load_dwordx4 v{vL16}, {WSr}, s{sT} offen offset:1024 sc1 lds',
                f's_add_u32 s{sT}, s{sKX}, {VX}',
                f's_mov_b32 m0, s{sKVV}',
                f'buffer_load_dwordx4 v{vL16}, {WSr}, s{sT} offen sc1 lds',
                f'buffer_load_dwordx4 v{vL16}, {WSr}, s{sT} offen offset:1024 sc1 lds',
                f's_add_u32 s{sKX}, s{sKX}, {0 if opts.get("samekv") else 0x40000}']

    KRA, VRA = vP, vP + 1

    def kv_rd():
        return [f'ds_read_b128 {v(vKX+4*j,4)}, v{(KRA, VRA)[j >> 1]} offset:{(j & 1) * 1024}' for j in range(4)]

    sKV2, sVV2 = 44, 45

    def kv_flip():
        return [f'v_add_u32 v{KRA}, s{sKVL}, v{vL16}',
                f'v_add_u32 v{VRA}, s{sKVV}, v{vL16}',
                f's_mov_b32 s{sT}, s{sKVL}', f's_mov_b32 s{sKVL}, s{sKV2}', f's_mov_b32 s{sKV2}, s{sT}',
                f's_mov_b32 s{sT}, s{sKVV}', f's_mov_b32 s{sKVV}, s{sVV2}', f's_mov_b32 s{sVV2}, s{sT}']

    if not opts.get('no_kv_flags'):
        a(f's_mov_b32 s{sT}, 0')
        emit_kv_poll(a, FAIL, vT)
    a(f's_mov_b32 s{sFO}, 0x1000')
    a(f's_add_u32 s{sKVL}, s{sWO+3}, 8192')
    a(f's_add_u32 s{sKVV}, s{sWO+3}, 16384')
    a(f's_add_u32 s{sKV2}, s{sWO+3}, 24576')
    a(f's_add_u32 s{sVV2}, s{sM0}, 8192')
    a(setW(0))
    for s_ in kv_dma():
        a(s_)
    a('s_waitcnt vmcnt(0)')
    for s_ in kv_flip():
        a(s_)
    for g_ in range(3):
        for s_ in wv_rd(g_):
            a(s_)
    a(f'''
    s_lshl_b32 s{sT}, s{sW}, 11
    s_add_u32 s{sMCW}, s{sMCU}, s{sT}
    s_mov_b32 m0, s{sM0}
    s_mov_b32 s{sMPO}, s{sMTH}
    v_add_u32 v{PZ}, s{sM0}, v{vL16}
    v_mov_b32 v{PZ+1}, 0
    ''')
    for i in range(12):
        a(f'v_pk_mov_b32 {v(vQ+2*i,2)}, 0, 0')
    for r in range(4):
        a(f'v_mov_b32 v{SE+r}, s{sSENT}')
    a('s_waitcnt vmcnt(0) lgkmcnt(0)')
    if opts.get('stamps'):
        a(f's_memtime s[{sST}:{sST+1}]')
        a('s_waitcnt lgkmcnt(0)')
        a(f's_mov_b32 s{sFLG+1}, s{sST}')
        for i in range(10):
            a(f's_mov_b32 s{90+i}, 0')
    tl(a, opts, 2, vSEL + 1, vX, None)
    a('.p2align 6')
    a.label(LOOP)

    def retry_label(k):
        return f'R_rt{k}_{tag}'

    def go_label(k):
        return f'R_go{k}_{tag}'

    MS = [AW(0), AW(2), vQ]

    def mpoll(rs):
        a(f'buffer_load_dwordx4 {v(rs,4)}, v{vL16}, {WSr}, s{sMCW} offen sc1')
        a(f'buffer_load_dwordx4 {v(rs+4,4)}, v{vL16}, {WSr}, s{sMCW} offen offset:1024 sc1')

    def mchk(rs):
        a(f'ds_write_b128 v{PZ}, {v(rs,4)}')
        a(f'v_max3_u32 v{vX}, v{rs}, v{rs+1}, v{rs+2}')
        a(f'v_max3_u32 v{vX}, v{vX}, v{rs+3}, v{rs+4}')
        a(f'v_max3_u32 v{vX}, v{vX}, v{rs+5}, v{rs+6}')
        a(f'v_max_u32 v{vX}, v{vX}, v{rs+7}')
        a(f'v_cmp_eq_u32 vcc, s{sSENT}, v{vX}')
        a(f'ds_write_b128 v{PZ}, {v(rs+4,4)} offset:1024')
    MP, MOK = f'R_mp_{tag}', f'R_mok_{tag}'
    mg = opts.get('mgap', 16)
    mpoll(MS[0])
    if mg:
        a(f's_nop {mg-1}')
    a.label(MP)
    MOKs = [f'R_mok0_{tag}', f'R_mok1_{tag}']
    for i in range(2):
        mpoll(MS[1 - i])
        a('s_waitcnt vmcnt(2)')
        mchk(MS[i])
        a(f's_cbranch_vccz {MOKs[i]}')
    spin(a, FAIL)
    a(f's_branch {MP}')

    def KL(k, u, areg=None):
        return smf(vK + 4 * u, AW(k) if areg is None else areg, v(wv_reg(2 * k + u), 8))
    kr = kv_rd()
    kd = kv_dma()
    hk = [[f's_add_u32 s{sT2}, s{sKVM}, {KVM_KT}',
           f'buffer_store_dwordx4 {v(vKV,4)}, v{vL16}, {WSr}, s{sT2} offen sc1',
           f's_add_u32 s{sKVM}, s{sKVM}, 0x20000']]
    NVO = opts.get('nvo', 4)
    for i in (1, 0):
        a.label(MOKs[i])
        r0_ = MS[i]
        a(smf(vQ, r0_, WQ(0, 0)))
        a(setA(1))
        a(smf(vQ + 4, r0_, WQ(1, 0)))
        a(smf(vQ, r0_ + 4, WQ(0, 1)))
        a(smf(vQ + 4, r0_ + 4, WQ(1, 1)))
        a('s_waitcnt lgkmcnt(0)')
        a('s_barrier')
        a(KL(0, 0, r0_))
        a('s_waitcnt vmcnt(0)')
        o_ = MS[1 - i]
        a(f'ds_read_b128 {v(o_,4)}, v{ABASE[1]}')
        a(f'ds_read_b128 {v(o_+4,4)}, v{ABASE[1]} offset:1024')
        for s_ in wv_rd(3):
            a(s_)
        a(setW(1))
        a(KL(0, 1, r0_))
        a(kd[0]); a(kd[1])
        for s_ in wv_rd(4):
            a(s_)
        a(KL(1, 0, r0_ + 4))
        a(kd[2])
        for s_ in wv_rd(5):
            a(s_)
        a(setA(2))
        for j_ in range(NVO):
            a(smf(vV + 4 * (j_ & 1), r0_ + 4 * (j_ >> 1), WK(j_ & 1, j_ >> 1)))
            if j_ == 0:
                a(kd[3]); a(kd[4]); a(kd[5])
        if NVO == 0:
            a(kd[3]); a(kd[4]); a(kd[5])
        a('s_waitcnt lgkmcnt(4)')
        a(KL(1, 1, r0_ + 4))
        for s_ in wv_rd(6):
            a(s_)
        if i == 1:
            for r in range(8):
                a(f'v_mov_b32 v{AW(2)+r}, v{AW(0)+r}')
            a(f's_branch {MOK}')
    a.label(MOK)
    stamp(a, opts, 0)
    lq.reset()
    lq.ops = ['g4', 'g4', 'g5', 'g5', 'g6', 'g6']

    def Kst(k, u):
        g = 2 * k + u
        if g < 13:
            lq.wait(f'g{g}')
        a(KL(k, u))
        if g + 3 < 13:
            for s_ in wv_rd(g + 3):
                lq.issue(s_, f'g{g+3}')
    side = [[kd[6]], [kd[7], kd[8]], [], hk[0], [],
            [f's_mov_b64 exec, 1', f'buffer_store_dword v{PZ+1}, v{ZR}, {WSr}, s{sPRG} offen sc1', f's_mov_b64 exec, -1']]
    late = [f'buffer_store_dwordx4 {v(SE,4)}, v{vPLD}, {WSr}, s{sPPO} offen{sc}',
            f'buffer_store_dword v{SE}, v{vMST}, {WSr}, s{sMPO} offen{sc}',
            f'buffer_store_dwordx4 {v(SE,4)}, v{vPLD}, {WSr}, s{sPPO} offen offset:1024{sc}']
    for k in range(2, 8):
        lq.wait(f'A{k}')
        a(Qs(k, 0))
        if k + 2 < 8:
            lq.issue(rdA(k + 2), f'A{k+2}')
        if k == 2:
            a(setW(2))
        if k == 3:
            a(setA(3))
        if k == 4:
            a(setW(3))
        if k == 6:
            a(setA(1))
        if k == 7 and NVO < 4:
            a(setA(0))
        Kst(k, 0)
        a(Qs(k, 1))
        if side:
            for s_ in side.pop(0):
                a(s_)
        Kst(k, 1)
        if k == 5:
            for s_ in kr:
                lq.issue(s_, 'kv')
    stamp(a, opts, 1)
    a.label(go_label(7))
    for _ in range(opts.get('xdelay', 0)):
        a('s_nop 15')
    QP, QT, KT, SM = vQ + 2, vQ + 4, vK, vQ
    O0, O1 = T + 4, T + 8
    vpos = [4, 5, 6, 7, 2, 3] + ([0, 1] if NVO == 0 else [])
    vorder = [(k, u) for k in vpos for u in range(2)]
    vbuf = {4: AW(0), 5: AW(1), 6: AW(2), 7: AW(3), 2: AW(0), 3: AW(1), 0: AW(2), 1: AW(3)}
    nxt = {4: 2, 5: 3, 6: 0, 7: 1}

    def V(n=1):
        for _ in range(n):
            if not vorder:
                return
            k, u = vorder.pop(0)
            if u == 0 and k < 4:
                lq.wait(f'B{k}')
            a(smf(vV + 4 * u, vbuf[k], WK(u, k)))
            if u == 1 and k in nxt and nxt[k] in vpos:
                lq.issue(rdA(nxt[k], vbuf[nxt[k]]), f'B{nxt[k]}')
    WDl = [AW(2), AW(3), AW(0), AW(1)]

    def WD(i):
        return WDl[i]
    XA = [None, vOR, vK + 4, vK + 5]
    V()
    a(f'v_add_f32 v{vQ}, v{vQ}, v{vQ+2}')
    a(f'v_add_f32 v{vQ+1}, v{vQ+1}, v{vQ+3}')
    a(cvt(QP, vQ, vQ + 1))
    a(f'v_add_f32 v{vQ+4}, v{vQ+4}, v{vQ+6}')
    a(f'v_add_f32 v{vQ+5}, v{vQ+5}, v{vQ+7}')
    a(cvt(QP + 1, vQ + 4, vQ + 5))
    a(f'v_add_f32 v{vK}, v{vK}, v{vK+2}')
    a(f'v_add_f32 v{vK+1}, v{vK+1}, v{vK+3}')
    a(m16(T, QP, vSEL))
    a(cvt(vKV, vK, vK + 1))
    a(f'v_add_f32 v{vK+4}, v{vK+4}, v{vK+6}')
    a(m16(T + 4, QP, vSEL + 2))
    a(f'v_add_f32 v{vK+5}, v{vK+5}, v{vK+7}')
    a(cvt(vKV + 1, vK + 4, vK + 5))
    a(m16(T + 8, vKV, vSEL))
    a(cvt(QT, T, T + 1))
    a(cvt(QT + 1, T + 2, T + 3))
    a(m16(vK + 4, vKV, vSEL + 2))
    a(cvt(QT + 2, T + 4, T + 5))
    a(cvt(QT + 3, T + 6, T + 7))
    lq.wait('kv')
    V()
    a(m32(T, vKX, QT))
    a(cvt(KT, T + 8, T + 9))
    a(cvt(KT + 1, T + 10, T + 11))
    a(m32(T + 4, vKX + 4, QT))
    a(cvt(KT + 2, vK + 4, vK + 5))
    a(cvt(KT + 3, vK + 6, vK + 7))
    V()
    a(m32(SM, KT, QT))
    for r in range(4):
        a(f'v_cndmask_b32 v{T+r}, v{T+r}, v{T+4+r}, s[{sMB}:{sMB+1}]')
    lq.issue(f'ds_write_b128 v{vEXW}, {v(T,4)}', 'wx')
    V()
    lq.issue(f'ds_write_b64 v{vEXW}, {v(SM,2)} offset:3072', 'wm')
    V()
    if not opts.get('pzpost'):
        a(late[0])
    V()
    a(f'v_xor_b32 v{XA[2]}, {2 << 12}, v{vEXW}')
    V()
    a(f'v_xor_b32 v{XA[3]}, {3 << 12}, v{vEXW}')
    V()
    lq.wait('wm')
    a('s_barrier')
    X = [T, T + 4, vKX, vKX + 4]
    M = [vQ, vQ + 2, vQ + 4, vQ + 6]
    for j in range(4):
        lq.issue(f'ds_read_b128 {v(X[j],4)}, v{vL16} offset:{L_EX + j*4096}', f'x{j}')
    for j in range(4):
        lq.issue(f'ds_read_b64 {v(M[j],2)}, v{vL16} offset:{L_EX + j*4096 + 3072}', f'm{j}')
    V()
    if not opts.get('no_kv_flags'):
        a(f'buffer_load_dword v{vWOH}, v{ZR}, {srd(S_DBG)}, s{sFO} offen sc1')
    V()
    a(late[1])
    V(16)
    lq.wait('x3')
    for s_ in add2(T, T, T + 4) + add2(T + 2, T + 2, T + 6):
        a(s_)
    lq.issue(zero4(WD(0)), 'z0')
    lq.issue(zero4(WD(1)), 'z1')
    a(pka(vKX, vKX, vKX + 4))
    a(pka(vKX + 2, vKX + 2, vKX + 6))
    a(pka(T, T, vKX))
    a(pka(T + 2, T + 2, vKX + 2))
    lq.wait('m3')
    a(f'v_pk_mul_f32 {v(T,2)}, {v(T,2)}, s[{sC}:{sC+1}]')
    a(f'v_pk_mul_f32 {v(T+2,2)}, {v(T+2,2)}, s[{sC}:{sC+1}]')
    a(pka(vQ, vQ, vQ + 2))
    a(f'v_exp_f32 v{T}, v{T}')
    a(f'v_exp_f32 v{T+1}, v{T+1}')
    a(pka(vQ + 4, vQ + 4, vQ + 6))
    a(f'v_exp_f32 v{T+2}, v{T+2}')
    a(f'v_exp_f32 v{T+3}, v{T+3}')
    a(pka(vQ, vQ, vQ + 4))
    a(cvt(T + 4, T, T + 1))
    a(cvt(T + 5, T + 2, T + 3))
    a(f'v_pk_mul_f32 {v(vQ,2)}, {v(vQ,2)}, s[{sC}:{sC+1}]')
    a(f'v_mov_b32_dpp v{vP}, v{T+4} quad_perm:[0,1,0,1] {dp}')
    a(f'v_mov_b32_dpp v{vP+2}, v{T+4} quad_perm:[2,3,2,3] {dp}')
    a(f'v_mov_b32_dpp v{vP+1}, v{T+5} quad_perm:[0,1,0,1] {dp}')
    a(f'v_mov_b32_dpp v{vP+3}, v{T+5} quad_perm:[2,3,2,3] {dp}')
    a(pka(vV, vV, vV + 2))
    a(pka(vV + 4, vV + 4, vV + 6))
    if not opts.get('pzpost'):
        a(late[2])
    a(m32(O0, vVX, vP))
    a(f'v_exp_f32 v{vQ}, v{vQ}')
    lq.issue(zero4(WD(2)), 'z2')
    a(m32(O1, vVX + 4, vP))
    a(f'v_exp_f32 v{vQ+1}, v{vQ+1}')
    lq.issue(zero4(WD(3)), 'z3')
    a(m32(vL, vONE, vP))
    a(cvt(vKV + 2, vV, vV + 1))
    a(cvt(vPM, vQ, vQ + 1))
    a(cvt(vV + 2, vV + 4, vV + 5))
    a(cvt(vV + 3, vV + 4, vV + 5))
    a(cvt(vKV + 3, vV + 4, vV + 5))
    a(f's_cmp_eq_u32 s{sS}, 63')
    a(f's_cbranch_scc1 {DONE}')
    a(m16(vL, vONE, vPM, vL))
    a(m16(O0, vKV + 2, vPM, O0))
    a(m16(O1, vV + 2, vPM, O1))
    a(f'v_rcp_f32 v{vRL}, v{vL}')
    a(f'v_max_f32 v{vX}, v{vL}, v{vRL}')
    a(f'v_mov_b32 v{vRL+1}, v{vRL}')
    a(f'v_cmp_ngt_f32 vcc, s{sBIG}, v{vX}')
    for r_ in (O0, O0 + 2, O1, O1 + 2):
        a(f'v_pk_mul_f32 {v(r_,2)}, {v(r_,2)}, {v(vRL,2)}')
    OP = vV + 4
    a(cvt(OP, O0, O0 + 1))
    a(cvt(OP + 1, O0 + 2, O0 + 3))
    a(cvt(OP + 2, O1, O1 + 1))
    a(cvt(OP + 3, O1 + 2, O1 + 3))
    lq.issue(f'ds_write_b128 v{vEXW}, {v(OP,4)} offset:2048', 'wo')
    lq.wait('z3')
    a(smf(WD(0), OP, v(wo_reg(0), 8)))
    a(smf(WD(1), OP, v(wo_reg(1), 8)))
    a(smf(WD(2), OP, v(wo_reg(2), 8)))
    a(f's_cbranch_vccnz {SLOW}')
    a(f'R_noslow_{tag}:')
    stamp(a, opts, 2)
    WAl = [OP, T, T + 4, T + 8]

    def fin(i):
        d = WD(i)
        return [
                cvt(d, d, d + 1),
                cvt(d + 1, d + 2, d + 3),
                f'buffer_store_dwordx2 {v(d,2)}, v{vPST}, {WSr}, s{PST_S[i]} offen{sc}']

    def pl(rs):
        a(f'buffer_load_dwordx4 {v(rs,4)}, v{vPLD}, {WSr}, s{sPLD} offen sc1')
        a(f'buffer_load_dwordx4 {v(rs+4,4)}, v{vPLD}, {WSr}, s{sPLD} offen offset:1024 sc1')

    RS = [AW(0), vKX, AW(2)]
    paw = opts.get('paw', 2)
    lq.wait('wo')
    a('s_barrier')
    a(smf(WD(3), OP, v(wo_reg(3), 8)))
    for j in (1, 2, 3):
        lq.issue(f'ds_read_b128 {v(WAl[j],4)}, v{XA[j]} offset:2048', f'wa{j}')
    a(f's_add_u32 s{sMCW}, s{sMNX}, s{sM0}')
    for k in range(4):
        a(f'v_cndmask_b32 v{vP+k}, 0, v{vRV}, s[{sCOL+2*k}:{sCOL+2*k+1}]')
    pend = []
    for p in range(4, 16):
        ip, j = wo_ij(p)
        lq.wait(f'wa{j}')
        a(smf(WD(ip), WAl[j], v(wo_reg(p), 8)))
        if j == 2 and ip > 0:
            pend += fin(ip - 1)
        n = {2: 1, 3: 2, 1: 2}[j]
        for x_ in pend[:n]:
            a(x_)
        pend = pend[n:]
    for x_ in pend + fin(3):
        a(x_)
    stamp(a, opts, 3)
    D = vL

    def pchk(rs, ok):
        a(m32(D, rs, vP))
        a(f'v_max3_u32 v{vX}, v{rs}, v{rs+1}, v{rs+2}')
        a(f'v_max3_u32 v{vX}, v{vX}, v{rs+3}, v{rs+4}')
        a(m32(D, rs + 4, vP, D))
        a(f'v_max3_u32 v{vX}, v{vX}, v{rs+5}, v{rs+6}')
        a(f'v_max_u32 v{vX}, v{vX}, v{rs+7}')
        a(f'v_cmp_eq_u32 vcc, s{sSENT}, v{vX}')
        a(f'v_permlane32_swap_b32 v{D}, v{D+2}')
        a(f'v_permlane32_swap_b32 v{D+1}, v{D+3}')
        a(f's_cbranch_vccz {ok}')

    def prep():
        for i in range(12):
            a(f'v_pk_mov_b32 {v(vQ+2*i,2)}, 0, 0')
        a(f'''
        v_add_u32 v{PZ}, s{sM0}, v{vL16}
        v_mov_b32 v{PZ+1}, s{sS}
        s_mov_b32 s{sPPO}, s{sPLD}
        s_mov_b32 s{sMPO}, s{sMCU}
        ''')
        for i in range(4):
            a(f's_xor_b32 s{PST_S[i]}, s{PST_S[i]}, 0x40000')

    gap = opts.get('rgap', 8)
    prep()
    for _ in range(opts.get('rdel', 0)):
        a('s_nop 15')
    pl(RS[0])
    a(f's_nop 15')
    pl(RS[1])
    a(f's_nop 15')
    a.label(RP)
    for i in range(3):
        pl(RS[(i + 2) % 3])
        a('s_waitcnt vmcnt(4)')
        pchk(RS[i], RPOK)
        if gap:
            a(f's_nop {gap-1}')
    spin(a, FAIL)
    a(f's_branch {RP}')

    def publish():
        a(f'v_add_f32 v{D}, v{D}, v{D+2}')
        a(f'v_add_f32 v{D+1}, v{D+1}, v{D+3}')
        a(f'v_permlane16_swap_b32 v{D}, v{D+1}')
        a(f'v_add_f32 v{D}, v{D}, v{D+1}')
        a(f'v_mov_b32_dpp v{D+1}, v{D} quad_perm:[1,1,3,3] {dp}')
        a(cvt(vX, D, D + 1))
        a(f'buffer_store_dword v{vX}, v{vMST}, {WSr}, s{sMNX} offen{sc}')
        stamp(a, opts, 4)
    a.label(RPOK)
    publish()
    a.label(f'R_post_{tag}')
    if not opts.get('no_kv_flags'):
        lab = a.newlabel('R_nokv')
        a(f'''
        s_cmp_ge_u32 s{sFO}, 256
        s_cbranch_scc1 {lab}
        v_readfirstlane_b32 s{sT2}, v{vWOH}
        s_lshr_b32 s{sT2}, s{sT2}, 16
        s_cmp_ge_u32 s{sT2}, 128
        s_cbranch_scc1 {lab}
        ''')
        lp = a.newlabel('R_kvw')
        a.label(lp)
        a(f'''
        s_sleep 8
        buffer_load_dword v{vWOH}, v{ZR}, {srd(S_DBG)}, s{sFO} offen sc1
        s_waitcnt vmcnt(0)
        v_readfirstlane_b32 s{sT2}, v{vWOH}
        ''')
        spin(a, FAIL)
        a(f'''
        s_lshr_b32 s{sT2}, s{sT2}, 16
        s_cmp_lt_u32 s{sT2}, 128
        s_cbranch_scc1 {lp}
        ''')
        a.label(lab)
        a(f'''
        s_add_u32 s{sT}, s{sS}, 3
        s_lshr_b32 s{sFO}, s{sT}, 1
        s_add_u32 s{sFO}, s{sFO}, {D_QH*4}
        s_and_b32 s{sT2}, s{sT}, 0x47
        s_cmp_eq_u32 s{sT2}, 0
        s_cselect_b32 s{sFO}, s{sFO}, 0x1000
        ''')
    for s_ in kv_flip():
        a(s_)
    a(setW(0))
    for g_ in (0, 2):
        for s_ in wv_rd(g_):
            a(s_)
    for r in range(4):
        a(f'v_mov_b32 v{SE+r}, s{sSENT}')
    if opts.get('pzpost'):
        a('s_waitcnt vmcnt(1)')
        a(late[0])
        a(late[2])
    a(f'''
    s_add_u32 s{sS}, s{sS}, 1
    s_xor_b32 s{sPLD}, s{sPLD}, 0x40000
    s_mov_b32 s{sMCU}, s{sMNX}
    s_mov_b32 s{sMNX}, s{sMTH}
    s_mov_b32 s{sMTH}, s{sMPO}
    ''')
    for _ in range(opts.get('mdelay', 0)):
        a('s_nop 15')
    if not opts.get('pzpost'):
        a('s_waitcnt vmcnt(1)')
    for s_ in wv_rd(1):
        a(s_)
    stamp(a, opts, 5)
    a(f's_branch {LOOP}')

    a.label(SLOW)
    a('s_waitcnt lgkmcnt(0)')
    a.fence()
    Xs = [AW(0), AW(1), AW(2), AW(3)]
    Ms = [vQ, vQ + 2, vQ + 4, vQ + 6]
    for j in range(4):
        a(f'ds_read_b128 {v(Xs[j],4)}, v{vL16} offset:{L_EX + j*4096}')
        a(f'ds_read_b64 {v(Ms[j],2)}, v{vL16} offset:{L_EX + j*4096 + 3072}')
    a('s_waitcnt lgkmcnt(0)')
    x0, m0_ = Xs[0], Ms[0]
    a(pka(x0, x0, Xs[1]))
    a(pka(x0 + 2, x0 + 2, Xs[1] + 2))
    a(pka(Xs[2], Xs[2], Xs[3]))
    a(pka(Xs[2] + 2, Xs[2] + 2, Xs[3] + 2))
    a(pka(x0, x0, Xs[2]))
    a(pka(x0 + 2, x0 + 2, Xs[2] + 2))
    a(pka(m0_, m0_, Ms[1]))
    a(pka(Ms[2], Ms[2], Ms[3]))
    a(pka(m0_, m0_, Ms[2]))
    mx, my = Xs[1], Xs[1] + 1
    a(f'''
    v_max3_f32 v{mx}, v{x0}, v{x0+1}, v{x0+2}
    v_max3_f32 v{mx}, v{mx}, v{x0+3}, v{m0_}
    v_max_f32 v{mx}, v{mx}, v{m0_+1}
    v_max_f32_dpp v{mx}, v{mx}, v{mx} quad_perm:[2,3,0,1] {dp}
    v_mov_b32 v{my}, v{mx}
    v_permlane32_swap_b32 v{mx}, v{my}
    v_max_f32 v{mx}, v{mx}, v{my}
    v_mov_b32 v{my}, v{mx}
    v_permlane16_swap_b32 v{mx}, v{my}
    v_max_f32 v{mx}, v{mx}, v{my}
    ''')
    for r in [x0, x0 + 1, x0 + 2, x0 + 3, m0_, m0_ + 1]:
        a(f'v_sub_f32 v{r}, v{r}, v{mx}')
        a(f'v_mul_f32 v{r}, s{sC}, v{r}')
        a(f'v_exp_f32 v{r}, v{r}')
    a(cvt(Xs[2], x0, x0 + 1))
    a(cvt(Xs[2] + 1, x0 + 2, x0 + 3))
    a(cvt(vPM, m0_, m0_ + 1))
    a(f'v_mov_b32_dpp v{vP}, v{Xs[2]} quad_perm:[0,1,0,1] {dp}')
    a(f'v_mov_b32_dpp v{vP+1}, v{Xs[2]+1} quad_perm:[0,1,0,1] {dp}')
    a(f'v_mov_b32_dpp v{vP+2}, v{Xs[2]} quad_perm:[2,3,2,3] {dp}')
    a(f'v_mov_b32_dpp v{vP+3}, v{Xs[2]+1} quad_perm:[2,3,2,3] {dp}')
    a(m32(O0, vVX, vP))
    a(m32(O1, vVX + 4, vP))
    a(m32(vL, vONE, vP))
    a(m16(O0, vKV + 2, vPM, O0))
    a(m16(O1, vV + 2, vPM, O1))
    a(m16(vL, vONE, vPM, vL))
    a(f'v_rcp_f32 v{vRL}, v{vL}')
    for r_ in range(8):
        a(f'v_mul_f32 v{O0+r_}, v{O0+r_}, v{vRL}')
    for i in range(4):
        a(zero4(WD(i)))
    a.fence()
    for j in (2, 3):
        a(f'v_xor_b32 v{XA[j]}, {j << 12}, v{vEXW}')
    a(cvt(OP, O0, O0 + 1))
    a(cvt(OP + 1, O0 + 2, O0 + 3))
    a(cvt(OP + 2, O1, O1 + 1))
    a(cvt(OP + 3, O1 + 2, O1 + 3))
    a(f'ds_write_b128 v{vEXW}, {v(OP,4)} offset:2048')
    a('s_waitcnt lgkmcnt(0)')
    a.fence()
    for i in range(3):
        a(smf(WD(i), OP, v(wo_reg(i), 8)))
    a(f's_branch R_noslow_{tag}')

    a.label(DONE)
    a(f'''
    s_add_u32 s{sT}, s{sKVM}, {KVM_KT}
    buffer_store_dwordx4 {v(vKV,4)}, v{vL16}, {WSr}, s{sT} offen sc1
    v_mov_b32 v{vRL}, 64
    s_waitcnt vmcnt(0)
    buffer_store_dword v{vRL}, v{ZR}, {WSr}, s{sPRG} offen sc1
    ''')
    tl(a, opts, 3, vSEL + 1, vX, None)
    if opts.get('stamps'):
        a(f'''
        s_memtime s[{sST+2}:{sST+3}]
        s_waitcnt lgkmcnt(0)
        s_sub_u32 s{sT}, s{sST+2}, s{sST}
        v_mov_b32 v{vX}, s{sT}
        s_lshl_b32 s{sT}, s{sH}, 4
        s_lshl_b32 s{sT2}, s{sW}, 2
        s_add_u32 s{sT}, s{sT}, s{sT2}
        s_add_u32 s{sT}, s{sT}, {STAMP}
        buffer_store_dword v{vX}, v{ZR}, {WSr}, s{sT} offen
        v_mov_b32 v{vRL}, s{sSPIN}
        buffer_store_dword v{vRL}, v{ZR}, {WSr}, s{sT} offen offset:512
        ''')
        for i in range(10):
            a(f'v_mov_b32 v{vT+i}, s{16+2*i if opts.get("abs") else 90+i}')
            a(f's_add_u32 s{sT2}, s{sT}, {1024+512*i}')
            a(f'buffer_store_dword v{vT+i}, v{ZR}, {WSr}, s{sT2} offen')
    a('s_endpgm')


def emit_r_role(a, opts):
    emit_r_init(a, opts)
    tl(a, opts, 1, vSEL + 1, vX, None)
    lab = a.newlabel('R_iw')
    a(f'''
    v_mov_b32 v{vX}, {D_RINIT*4}
    {lab}:
    buffer_load_dword v{vRL}, v{vX}, {srd(S_DBG)}, 0 offen sc1
    s_waitcnt vmcnt(0)
    v_readfirstlane_b32 s{sT}, v{vRL}
    ''')
    spin(a, 'R_fail')
    a(f'''
    s_and_b32 s{sT2}, s{sT}, 0xffff
    s_cmp_ge_u32 s{sT2}, 32
    s_cbranch_scc1 R_iw_ok
    s_sleep 8
    s_branch {lab}
    R_iw_ok:
    s_lshr_b32 s{sT}, s{sT}, 16
    s_cmp_eq_u32 s{sT}, 32
    s_cbranch_scc0 R_safe_entry
    ''')
    if opts.get('force_safe'):
        a('s_branch R_safe_entry')
    emit_r_loop(a, opts, True, 'f')
    a.label('R_safe_entry')
    emit_r_loop(a, opts, False, 's')
    a.label('R_fail')
    a(f'''
    v_mov_b32 v{vX}, {D_ERR*4}
    v_mov_b32 v{vRL}, 1
    s_mov_b64 exec, 1
    buffer_atomic_add v{vRL}, v{vX}, {srd(S_DBG)}, 0 offen
    s_waitcnt vmcnt(0)
    s_endpgm
    ''')
```

```python
import sys
sys.path.insert(0, 'gen')
from asm import Asm
from common import *
import rrole14 as rrole

NAME = 'parallel_sum__memory_aug_recurrent_mem_tr__dense_activation_silu__prompt'
HEADER = open('cdna_kernels/%s.s.ref' % NAME).read().split('; Override launch')[0]


def prologue(a):
    a('''
    s_load_dwordx16 s[64:79], s[0:1], 0
    s_load_dwordx8 s[80:87], s[0:1], 64
    s_load_dwordx2 s[88:89], s[0:1], 96
    s_getreg_b32 s90, hwreg(HW_REG_XCC_ID)
    s_and_b32 s90, s90, 7
    s_waitcnt lgkmcnt(0)
    ''')
    tab = [(S_X, 64, 2097152), (S_M0, 66, 8192), (S_WQ, 68, 4194304), (S_WK, 70, 4194304), (S_WV, 72, 4194304),
           (S_WO, 74, 4194304), (S_W1, 80, 1835008), (S_W2, 82, 1835008), (S_OUT, 84, 2097152), (S_DBG, 86, 256),
           (S_WS, 88, WS_BYTES)]
    for d, p, n in tab:
        a(f's_mov_b32 s{d}, s{p}')
        a(f's_and_b32 s{d+1}, s{p+1}, 0xffff')
        a(f's_mov_b32 s{d+2}, {n}')
        a(f's_mov_b32 s{d+3}, 0x20000')
    a(f'''
    s_mov_b32 s{rrole.sXCC}, s90
    v_lshrrev_b32 v1, 6, v0
    s_nop 0
    v_readfirstlane_b32 s92, v1
    s_cmp_lg_u32 s92, 0
    s_cbranch_scc1 L_role_skip
    s_mov_b64 exec, 1
    s_mov_b32 s93, 0
    v_mov_b32 v3, 0
    L_role_try:
    s_lshl_b32 s91, s90, 2
    v_mov_b32 v1, 1
    v_mov_b32 v2, s91
    buffer_atomic_add v1, v2, {srd(S_DBG)}, 0 offen sc0
    s_waitcnt vmcnt(0)
    v_readfirstlane_b32 s91, v1
    s_cmp_lt_u32 s91, 32
    s_cbranch_scc1 L_role_got
    L_role_scan:
    buffer_load_dwordx4 v[4:7], v3, {srd(S_DBG)}, 0 offen sc1
    buffer_load_dwordx4 v[8:11], v3, {srd(S_DBG)}, 0 offen offset:16 sc1
    s_waitcnt vmcnt(0)
    s_mov_b32 s90, 8
    s_mov_b32 s94, 0
    ''')
    for x in range(7, -1, -1):
        a(f'v_readfirstlane_b32 s92, v{4+x}')
        a(f's_min_u32 s95, s92, 64')
        a(f's_add_u32 s94, s94, s95')
        a(f's_cmp_lt_u32 s92, 32')
        a(f's_cselect_b32 s90, {x}, s90')
    a(f'''
    s_cmp_eq_u32 s90, 8
    s_cbranch_scc1 L_role_got
    s_cmp_ge_u32 s94, 256
    s_cbranch_scc1 L_role_try
    s_add_u32 s93, s93, 1
    s_cmp_gt_u32 s93, 2000
    s_cbranch_scc1 L_role_try
    s_sleep 32
    s_branch L_role_scan
    L_role_got:
    s_and_b32 s90, s90, 7
    s_lshl_b32 s92, s90, 16
    s_min_u32 s91, s91, 64
    s_or_b32 s92, s92, s91
    v_mov_b32 v1, s92
    ds_write_b32 v3, v1
    s_waitcnt lgkmcnt(0)
    s_mov_b64 exec, -1
    L_role_skip:
    s_barrier
    v_mov_b32 v2, 0
    ds_read_b32 v1, v2
    s_waitcnt lgkmcnt(0)
    v_readfirstlane_b32 s91, v1
    s_lshr_b32 s90, s91, 16
    s_and_b32 s91, s91, 0xffff
    s_barrier
    ''')
    a('s_lshl_b32 s95, s90, 5')
    a('s_add_u32 s95, s95, s91')


def add_trace(a, opts):
    from asm import Ins
    start, step, n = opts['trace'][:3]
    skip = opts['trace'][3] if len(opts['trace']) > 3 else 0
    items = a.items
    i0 = items.index(start + ':')
    out = items[:i0 + 1]
    cnt = 0
    m = 0
    names = []
    for it in items[i0 + 1:]:
        if m < n and not isinstance(it, str):
            if cnt >= skip and (cnt - skip) % step == 0:
                out.append(Ins(f's_memtime s[{16+2*m}:{17+2*m}]'))
                names.append('%3d ' % cnt + it.text[:56])
                m += 1
            cnt += 1
        out.append(it)
        if it == 'R_done_f:':
            out.append(Ins('s_waitcnt lgkmcnt(0)'))
            out.append(Ins(f's_lshl_b32 s63, s52, 9'))
            out.append(Ins(f's_lshl_b32 s64, s53, 7'))
            out.append(Ins(f's_add_u32 s63, s63, s64'))
            out.append(Ins(f's_add_u32 s63, s63, {STAMP + 0x4000}'))
            for j in range(n):
                out.append(Ins(f'v_mov_b32 v13, s{16+2*j}'))
                out.append(Ins(f'buffer_store_dword v13, v17, s[8:11], s63 offen offset:{4*j}'))
    a.items = out
    import json
    json.dump(names, open(sys.argv[1].replace('.s', '.json'), 'w'))


def build(opts):
    a = Asm()
    prologue(a)
    a(f'''
    s_cmp_ge_u32 s91, 32
    s_cbranch_scc1 L_exit
    ''')
    a('v_mov_b32 v2, 0')
    tl(a, opts, 0, 2, 1, None)
    a(f'''
    s_cmp_lg_u32 s90, 0
    s_cbranch_scc1 L_worker
    s_mov_b32 s{rrole.sH}, s91
    ''')
    if opts.get('no_r'):
        a('s_endpgm')
    else:
        rrole.emit_r_role(a, opts)
    a.label('L_worker')
    if opts.get('workers'):
        import wrole2 as wrole
        wrole.emit_w_role(a, opts)
    a.label('L_exit')
    a('s_endpgm')
    if opts.get('trace'):
        add_trace(a, opts)
    if opts.get('skipc'):
        out, on = [], False
        for it in a.items:
            if isinstance(it, str):
                if it in ('R_mok1_f:',):
                    on = True
                if it == 'R_rp_f:':
                    on = False
                out.append(it)
                continue
            if on and (it.cls == 'mfma' or (it.cls == 'ds' and opts['skipc'] >= 1) or (it.cls in ('valu', 'trans') and not it.text.startswith(('v_cndmask_b32 v2', 'v_add_u32', 'v_mov_b32', 'v_cvt_pk_bf16_f32 v3', 'v_cvt_pk_bf16_f32 v4'))) or it.text.startswith('s_cbranch_vccnz R_slow')):
                continue
            out.append(it)
        a.items = out
    body = a.render()
    txt = HEADER + '; @launch grid=(256,1,1) block=(256,1,1) lds=163840\n'
    txt += f'''.amdgcn_target "amdgcn-amd-amdhsa--gfx950"
.text
.globl {NAME}_kernel
.p2align 8
.type {NAME}_kernel,@function
{NAME}_kernel:
'''
    txt += body
    txt += f'''.section .rodata,"a"
.p2align 6
.amdhsa_kernel {NAME}_kernel
  .amdhsa_next_free_vgpr 512
  .amdhsa_next_free_sgpr 102
  .amdhsa_accum_offset 256
  .amdhsa_group_segment_fixed_size 0
  .amdhsa_kernarg_size 104
  .amdhsa_user_sgpr_count 2
  .amdhsa_user_sgpr_kernarg_segment_ptr 1
  .amdhsa_system_sgpr_workgroup_id_x 1
.end_amdhsa_kernel
'''
    return txt, a


if __name__ == '__main__':
    import json
    opts = json.loads(sys.argv[2]) if len(sys.argv) > 2 else {}
    txt, a = build(opts)
    if opts.get('align'):
        import align
        txt, ch = align.align(txt, [('R_loop_f', 'R_slow_f')], *opts['align'])
        print('aligned', ch)
    open(sys.argv[1], 'w').write(txt)
    print('written', sys.argv[1], 'lines', txt.count('\n'), 'auto nops', a.auto_nops)
```
